```python
import torch

def _softmax(x, axis=-1):
    return torch.softmax(x, dim=axis)
def _gelu(x):
    return torch.nn.functional.gelu(x, approximate="tanh")
def _silu(x):
    return torch.nn.functional.silu(x)
def _sigmoid(x):
    return torch.sigmoid(x)
def _layernorm(x, axis=-1, eps=1e-5):
    m = x.mean(dim=axis, keepdim=True)
    v = x.var(dim=axis, keepdim=True, unbiased=False)
    return (x - m) / torch.sqrt(v + eps)
def _scatter_add(tgt, idx, src, axis=0):
    return tgt.clone().index_add_(axis, idx, src)
def _segment_sum(src, seg, n):
    out = torch.zeros((n,) + src.shape[1:], dtype=src.dtype)
    return out.index_add_(0, seg, src)
def _pad(x, pw):
    flat = tuple(v for pair in reversed(pw) for v in pair)
    return torch.nn.functional.pad(x, flat)

kernel_name = 'concat_heads__mha_block_cached__gqa_block_cached__near_ridge'

def setup_inputs():

    _w = (lambda a: (lambda t: t.to(torch.bfloat16) if t.is_floating_point() else t)(torch.as_tensor(a)))
    def _A_setup():
        B, Sq, D = 8, 304, 512
        H, Sk, Dh = 32, 1024, 128
        return {
            "x": _w((lambda *s: torch.randn(*s, dtype=torch.bfloat16) * 0.8)(B, Sq, D)),
            "k_cache": _w((lambda *s: torch.randn(*s, dtype=torch.bfloat16) * 0.8)(B, H, Sk, Dh)),
            "v_cache": _w((lambda *s: torch.randn(*s, dtype=torch.bfloat16) * 0.05)(B, H, Sk, Dh)),
            "wq": _w((lambda *s: torch.randn(*s, dtype=torch.bfloat16) * 0.8)(D, H * Dh) * (D ** -0.5)),
            "wo": _w((lambda *s: torch.randn(*s, dtype=torch.bfloat16) * 0.05)(H * Dh, D) * ((H * Dh) ** -0.5)),
        }
    _A_in = _A_setup()

    def _B_setup():
        B, Sq, D = 8, 304, 512
        Hq, Hkv, Sk, Dh = 32, 32, 1024, 128
        assert Hq % Hkv == 0, (Hq, Hkv)
        return {
            "x": _w((lambda *s: torch.randn(*s, dtype=torch.bfloat16) * 0.8)(B, Sq, D)),
            "k_cache": _w((lambda *s: torch.randn(*s, dtype=torch.bfloat16) * 0.8)(B, Hkv, Sk, Dh)),
            "v_cache": _w((lambda *s: torch.randn(*s, dtype=torch.bfloat16) * 0.05)(B, Hkv, Sk, Dh)),
            "wq": _w((lambda *s: torch.randn(*s, dtype=torch.bfloat16) * 0.8)(D, Hq * Dh) * (D ** -0.5)),
            "wo": _w((lambda *s: torch.randn(*s, dtype=torch.bfloat16) * 0.05)(Hq * Dh, D) * ((Hq * Dh) ** -0.5)),
        }
    _B_in = _B_setup()

    return {
        "A_x": _A_in["x"],
        "A_k_cache": _A_in["k_cache"],
        "A_v_cache": _A_in["v_cache"],
        "A_wq": _A_in["wq"],
        "A_wo": _A_in["wo"],
        "B_x": _B_in["x"],
        "B_k_cache": _B_in["k_cache"],
        "B_v_cache": _B_in["v_cache"],
        "B_wq": _B_in["wq"],
        "B_wo": _B_in["wo"],
    }

def reference(A_x, A_k_cache, A_v_cache, A_wq, A_wo, B_x, B_k_cache, B_v_cache, B_wq, B_wo):
    def _A_ref(x, k_cache, v_cache, wq, wo):
        B, Sq, D = x.shape
        H, Dh = 32, 128
        q = (lambda x, *d: x.permute(*d))((x @ wq).reshape(B, Sq, H, Dh), 0, 2, 1, 3)
        scores = torch.einsum("bhqd,bhkd->bhqk", q, k_cache) * (Dh ** -0.5)
        p = _softmax(scores, axis=-1)
        o = torch.einsum("bhqk,bhkd->bhqd", p, v_cache)
        return (lambda x, *d: x.permute(*d))(o, 0, 2, 1, 3).reshape(B, Sq, H * Dh) @ wo

    def _B_ref(x, k_cache, v_cache, wq, wo):
        B, Sq, D = x.shape
        Hq, Dh = 32, 128
        Hkv = k_cache.shape[1]
        rep = Hq // Hkv
        q = (lambda x, *d: x.permute(*d))((x @ wq).reshape(B, Sq, Hq, Dh), 0, 2, 1, 3)
        k = (lambda x, n, axis: torch.repeat_interleave(x, n, dim=axis))(k_cache, rep, axis=1)
        v = (lambda x, n, axis: torch.repeat_interleave(x, n, dim=axis))(v_cache, rep, axis=1)
        scores = torch.einsum("bhqd,bhkd->bhqk", q, k) * (Dh ** -0.5)
        p = _softmax(scores, axis=-1)
        o = torch.einsum("bhqk,bhkd->bhqd", p, v)
        return (lambda x, *d: x.permute(*d))(o, 0, 2, 1, 3).reshape(B, Sq, Hq * Dh) @ wo

    a = _A_ref(A_x, A_k_cache, A_v_cache, A_wq, A_wo)
    b = _B_ref(B_x, B_k_cache, B_v_cache, B_wq, B_wo)
    return torch.concatenate([a, b], axis=-1)
```

```python
NAME = "concat_heads__mha_block_cached__gqa_block_cached__near_ridge"
WS_BYTES = 290193408
STAMP_OFF = WS_BYTES - (1 << 20)

class Asm:
    def __init__(self):
        self.lines = []
    def __call__(self, s):
        for l in s.split("\n"):
            self.lines.append("    " + l.strip() if not l.strip().endswith(":") else l.strip())
    def label(self, s):
        self.lines.append(s + ":")
    def text(self):
        return "\n".join(self.lines) + "\n"

def header(launches):
    out = []
    for (k, g, b, lds) in launches:
        out.append(f"; @launch kernel={k} grid=({g[0]},{g[1]},{g[2]}) block=({b[0]},{b[1]},{b[2]}) lds={lds}")
    out.append('.amdgcn_target "amdgcn-amd-amdhsa--gfx950"')
    out.append(".text")
    return "\n".join(out) + "\n"

def kernel_open(name):
    return f".globl {name}\n.p2align 8\n.type {name},@function\n{name}:\n"

def kernel_desc(name, nvgpr, accum, nsgpr=102):
    return f""".p2align 6
.amdhsa_kernel {name}
  .amdhsa_next_free_vgpr {nvgpr}
  .amdhsa_next_free_sgpr {nsgpr}
  .amdhsa_accum_offset {accum}
  .amdhsa_group_segment_fixed_size 0
  .amdhsa_kernarg_size 104
  .amdhsa_user_sgpr_count 2
  .amdhsa_user_sgpr_kernarg_segment_ptr 1
  .amdhsa_system_sgpr_workgroup_id_x 1
.end_amdhsa_kernel
"""

def stamp_start(a, sbase):
    a(f"s_memrealtime s[{sbase}:{sbase+1}]")
    a(f"s_memtime s[{sbase+2}:{sbase+3}]")

def stamp_end(a, sbase, s_ws, v0, v_tid, s_wg, stmp):
    a(f"s_memrealtime s[{sbase+4}:{sbase+5}]")
    a(f"s_memtime s[{sbase+6}:{sbase+7}]")
    a("s_waitcnt lgkmcnt(0)")
    a(f"v_mov_b32 v{v0}, s{sbase}")
    a(f"v_mov_b32 v{v0+1}, s{sbase+1}")
    a(f"v_mov_b32 v{v0+2}, s{sbase+4}")
    a(f"v_mov_b32 v{v0+3}, s{sbase+5}")
    a(f"v_mov_b32 v{v0+4}, s{sbase+2}")
    a(f"v_mov_b32 v{v0+5}, s{sbase+3}")
    a(f"v_mov_b32 v{v0+6}, s{sbase+6}")
    a(f"v_mov_b32 v{v0+7}, s{sbase+7}")
    a(f"s_lshl_b32 s{stmp}, s{s_wg}, 5")
    a(f"s_add_u32 s{stmp}, s{stmp}, {STAMP_OFF}")
    a(f"v_mov_b32 v{v0+8}, s{stmp}")
    a(f"v_cmp_eq_u32 vcc, 0, v{v_tid}")
    a(f"s_and_saveexec_b64 s[{sbase}:{sbase+1}], vcc")
    a(f"s_cbranch_execz L_stamp_skip_{id(a)%100000}_{len(a.lines)}")
    lbl = f"L_stamp_skip_{id(a)%100000}_{len(a.lines)-1}"
    a(f"global_store_dwordx4 v{v0+8}, v[{v0}:{v0+3}], s[{s_ws}:{s_ws+1}]")
    a(f"global_store_dwordx4 v{v0+8}, v[{v0+4}:{v0+7}], s[{s_ws}:{s_ws+1}] offset:16")
    a("s_waitcnt vmcnt(0)")
    a.label(lbl)
    a(f"s_mov_b64 exec, s[{sbase}:{sbase+1}]")
```

```python
import re
def regs(tok):
    tok = tok.strip()
    m = re.fullmatch(r"([vas])\[(\d+):(\d+)\]", tok)
    if m: return {(m.group(1), i) for i in range(int(m.group(2)), int(m.group(3)) + 1)}
    m = re.fullmatch(r"-?\|?([vas])(\d+)\|?", tok)
    if m: return {(m.group(1), int(m.group(2)))}
    if tok in ("vcc", "exec", "m0", "scc"): return {(tok, 0)}
    return set()
TRANS = ("v_exp_f32", "v_log_f32", "v_rcp_f32", "v_rsq_f32", "v_sqrt_f32")
def parse(line):
    line = line.split(";")[0].strip()
    if not line or line.endswith(":") or line.startswith("."): return None
    parts = line.split(None, 1)
    op = parts[0]
    ops = []
    if len(parts) > 1:
        ops = [o.strip() for o in re.split(r",(?![^\[]*\])", parts[1])]
        last = ops[-1].split()
        ops[-1] = last[0] if last else ""
    d = dict(op=op, ops=ops, line=line, w=set(), r=set(), srcc=set(), ab=set())
    R = [regs(o) for o in ops]
    if op.startswith("v_mfma"):
        d["kind"] = "mfma"; d["w"] = R[0]; d["ab"] = R[1] | R[2]; d["srcc"] = R[3]; d["r"] = R[1] | R[2] | R[3]
        d["passes"] = 8 if "32x32" in op else 4
    elif op.startswith("v_smfmac"):
        d["kind"] = "mfma"; d["w"] = R[0]; d["ab"] = R[1] | R[2] | R[3]; d["srcc"] = R[0]; d["r"] = R[0] | R[1] | R[2] | R[3]
        d["passes"] = 4
    elif op.startswith("v_cmp"):
        d["kind"] = "valu"; d["w"] = R[0]; d["r"] = set().union(*R[1:])
    elif op.startswith("v_permlane") and "swap" in op:
        d["kind"] = "valu"; d["w"] = R[0] | R[1]; d["r"] = R[0] | R[1]; d["perm"] = True
    elif op.startswith("v_readfirstlane") or op.startswith("v_readlane"):
        d["kind"] = "valu"; d["w"] = R[0]; d["r"] = set().union(*R[1:]); d["rl"] = True
    elif op.startswith("v_"):
        d["kind"] = "valu"; d["w"] = R[0]; d["r"] = set().union(*R[1:]) if len(R) > 1 else set()
        if op.startswith("v_fmac") or op.startswith("v_dot2c"): d["r"] |= R[0]
        if op.startswith("v_cndmask") and len(R) == 3: d["r"] |= {("vcc", 0)}
        if any(op.startswith(t) for t in TRANS): d["trans"] = True
    elif op.startswith("ds_read") or op.startswith("ds_bperm"):
        d["kind"] = "ds"; d["w"] = R[0]; d["r"] = set().union(*R[1:])
    elif op.startswith("ds_"):
        d["kind"] = "ds"; d["r"] = set().union(*R)
    elif op.startswith("buffer_load") or op.startswith("global_load"):
        d["kind"] = "vmem"
        if " lds" in line or "_lds_" in op:
            d["r"] = set().union(*R) | {("m0", 0)}; d["dma"] = True
        else:
            d["w"] = R[0]; d["r"] = set().union(*R[1:])
    elif op.startswith("buffer_store") or op.startswith("global_store") or op.startswith("global_atomic") or op.startswith("buffer_atomic"):
        d["kind"] = "vmem"; d["r"] = set().union(*R); d["store"] = True
        d["wide"] = "x4" in op or "x3" in op
        d["sdata"] = R[0] if op.startswith("buffer") else R[1]
    elif op in ("buffer_wbl2", "buffer_inv"):
        d["kind"] = "vmem"
    elif op == "s_nop":
        d["kind"] = "nop"; d["n"] = int(ops[0], 0) + 1
    elif op.startswith("s_"):
        d["kind"] = "salu"
        if op.startswith("s_cmp") or op.startswith("s_cbranch") or op in ("s_waitcnt", "s_barrier", "s_branch", "s_endpgm", "s_setprio", "s_sleep"):
            d["r"] = set().union(*R) if R else set()
        else:
            d["w"] = R[0] if R else set(); d["r"] = set().union(*R[1:]) if len(R) > 1 else set()
    else:
        raise RuntimeError("unknown op " + line)
    return d

def check(lines, name=""):
    ins = [p for p in (parse(l) for l in lines) if p]
    errs = []
    for j, c in enumerate(ins):
        dist = 0
        for i in range(j - 1, max(-1, j - 24), -1):
            p = ins[i]
            need = 0
            vw = {r for r in p["w"] if r[0] in "va"}
            if p["kind"] == "mfma":
                big = p["passes"] == 8
                if c["kind"] == "mfma":
                    if vw & c["ab"]: need = 12 if big else 8
                    elif vw & c["srcc"] and not (vw == c["srcc"] and c["passes"] == p["passes"]): need = 10 if big else 6
                    elif vw & c["w"] and not (vw == c["srcc"]): need = max(need, 0)
                elif c["kind"] in ("valu", "ds", "vmem"):
                    if vw & (c["r"] | c["w"]): need = 12 if big else 8
                    if c["kind"] == "valu" and (p["srcc"] & c["w"]): need = max(need, 7 if big else 3)
            elif p["kind"] == "valu":
                if c["kind"] == "mfma" and vw & c["r"]: need = 2
                if c["kind"] == "valu":
                    if p.get("trans") and not c.get("trans") and vw & c["r"]: need = max(need, 1)
                    if c.get("perm") and vw & c["r"]: need = max(need, 2)
                    if c.get("rl") and vw & c["r"]: need = max(need, 1)
                    sw = {r for r in p["w"] if r[0] in ("s", "vcc")}
                    if sw & c["r"]: need = max(need, 2)
                if c["kind"] == "vmem":
                    sw = {r for r in p["w"] if r[0] == "s"}
                    if sw & c["r"]: need = max(need, 5)
            elif p["kind"] == "salu":
                if ("m0", 0) in p["w"] and c.get("dma"): need = 1
            elif p["kind"] == "vmem" and p.get("store") and p.get("wide"):
                if p["sdata"] & c["w"]: need = 2
            if dist < need:
                errs.append(f"{name}: need {need} have {dist}: [{p['line']}] -> [{c['line']}]")
            dist += p.get("n", 1)
    return errs
```

```python
class F:
    __slots__ = ("text", "cost", "lo", "hi", "deps", "gap", "prio", "depgap")
    def __init__(self, text, cost=4, lo=0, hi=10**9, deps=(), prio=0, depgap=1):
        self.text = text; self.cost = cost; self.lo = lo; self.hi = hi
        self.deps = list(deps); self.gap = None; self.prio = prio; self.depgap = depgap

def schedule(mfmas, fillers, cap=8, pre=None):
    pre = pre or {}
    n = len(mfmas)
    out = []
    pending = list(fillers)
    over = 0
    for g in range(n):
        for l in pre.get(g, []):
            out.append(l)
        out.append(mfmas[g])
        room = cap - 4 * len(pre.get(g + 1, [])) - (4 if "smfmac" in mfmas[g] else 0)
        while True:
            ready = [f for f in pending if f.lo <= g and all(d.gap is not None and d.gap + f.depgap <= g for d in f.deps)]
            if not ready: break
            ready.sort(key=lambda f: (f.hi, f.prio))
            pick = None
            for f in ready:
                if f.cost <= room or f.hi <= g:
                    pick = f; break
            if pick is None: break
            if pick.cost > room: over += pick.cost - max(room, 0)
            pick.gap = g
            room -= pick.cost
            out.extend(pick.text.split("\n"))
            pending.remove(pick)
    if pending:
        raise RuntimeError("unscheduled fillers: " + str([(f.text, f.lo, f.hi) for f in pending[:5]]))
    for f in fillers:
        if f.gap > f.hi:
            raise RuntimeError(f"deadline miss {f.text} gap {f.gap} > {f.hi}")
    return out, over
```

```python
import hazard
def insert_lgkm(body, loop=True):
    import re
    need = {}
    def run(state):
        out = state
        for idx, l in enumerate(body):
            p = hazard.parse(l)
            if p is None: continue
            if p["op"] == "s_waitcnt":
                m = re.search(r"lgkmcnt\((\d+)\)", l)
                if m:
                    k = int(m.group(1))
                    out = out[len(out) - k:] if k < len(out) else out
                    if k == 0: out = []
                continue
            touched = p["r"] | p["w"]
            last = -1
            for j, d in enumerate(out):
                if d & touched: last = j
            if idx in need:
                k = need[idx]
                if last >= 0:
                    k = min(k, len(out) - 1 - last)
                    need[idx] = k
                out = out[len(out) - k:] if 0 < k < len(out) else ([] if k == 0 else out)
            elif last >= 0:
                k = min(14, len(out) - 1 - last)
                need[idx] = k
                out = out[len(out) - k:] if k > 0 else []
            if p["kind"] == "ds":
                out = out + [set(p["w"])]
        return out
    st = run([])
    if loop:
        st = run(st)
        st = run(st)
    res = []
    for idx, l in enumerate(body):
        if idx in need: res.append(f"s_waitcnt lgkmcnt({need[idx]})")
        res.append(l)
    return res

def resolve_vm(segments):
    import re
    seq = []
    need = {}
    for si, (lines, niter, per) in enumerate(segments):
        for it in range(niter):
            for li, l in enumerate(lines):
                m = re.search(r"vmcnt\(\?(\w+):(-?\d+)\)", l)
                if m:
                    tag = (m.group(1), int(m.group(2)) + it * per.get(m.group(1), 0))
                    idx = [i for i, t in enumerate(seq) if t == tag]
                    if not idx: raise RuntimeError(f"tag {tag} never issued before wait: {l}")
                    n = len(seq) - 1 - idx[-1]
                    need[(si, li)] = min(need.get((si, li), 63), n)
                    continue
                s = l.strip()
                if s.startswith("buffer_") or s.startswith("global_"):
                    m = re.search(r"; tag=(\w+):(-?\d+)", l)
                    seq.append((m.group(1), int(m.group(2)) + it * per.get(m.group(1), 0)) if m else None)
    out = []
    for si, (lines, niter, per) in enumerate(segments):
        res = []
        for li, l in enumerate(lines):
            if (si, li) in need: l = re.sub(r"vmcnt\(\?\w+:-?\d+\)", f"vmcnt({need[(si, li)]})", l)
            res.append(l)
        out.append(res)
    return out
```

```python
import sys, math, struct, re
sys.path.insert(0, "tools")
from asmlib import *
from sched import *
import hazard, waits, align

def f2u(x): return struct.unpack("<I", struct.pack("<f", x))[0]
SCALE = math.log2(math.e) / math.sqrt(128.0)

class Opt:
    stamps = False
    clk = False
    nt_kv = " nt"
    nt_x = " nt"
    st_o = " sc1"
    ld_o = " sc1"
    st_out = ""
    ld_wo = " sc1"
    delay = 4
    ldscost = 8
    wo_pf = True
    sig_it = 1
    st_spread = False
    poll_ks = 9
    noadv = 0
    nomf = False
    bpos = 3
    sig_st = 1
    bal = True
    dbg_start = False
    al = True
    rot = 1
    summ = 0
    dotcost = 4
    nost2 = False
    code_pf = True
    wo_when = 2
    ring8 = False
    w3nost = False
    wswap = False
    nost = False
    st_per = 2
    drop = ""
    thr = 32

def vq(b): return f"v[{b}:{b+3}]"
def aq(b): return f"a[{b}:{b+3}]"
MF = "v_mfma_f32_16x16x32_bf16"
MF32 = "v_mfma_f32_32x32x16_bf16"

def dstamp(k):
    return [f"s_memrealtime s[{72+2*k}:{73+2*k}]"] if Opt.dbg_start else []
def pstamp(a, k):
    if Opt.dbg_start and 1 <= k <= 5: return
    if Opt.stamps: a(f"{'s_memtime' if Opt.clk else 's_memrealtime'} s[{72+2*k}:{73+2*k}]")
def pdump(a, ws, n, rec):
    if not Opt.stamps: return
    a("s_waitcnt lgkmcnt(0)")
    for k in range(16): a(f"v_mov_b32 v{32+k}, s{72+2*min(k, n-1)}")
    a(f"s_lshl_b32 s48, s{rec}, 6\ns_add_u32 s48, s48, {STAMP_OFF + 65536}\nv_mov_b32 v48, s48")
    a("v_cmp_eq_u32 vcc, 0, v0\ns_and_saveexec_b64 s[46:47], vcc")
    a(f"s_cbranch_execz L_pd")
    for k in range(4): a(f"global_store_dwordx4 v48, v[{32+4*k}:{35+4*k}], s[{ws}:{ws+1}] offset:{16*k}")
    a("s_waitcnt vmcnt(0)")
    a.label("L_pd")
    a("s_mov_b64 exec, s[46:47]")

def fix_hazards(lines, prefix=()):
    out = list(prefix)
    npre = len(out)
    for l in lines:
        while True:
            win = out[-26:] + [l]
            new = hazard.check(win)[len(hazard.check(win[:-1])):]
            if not new: break
            need = max(int(m.group(1)) - int(m.group(2)) for m in (re.search(r"need (\d+) have (\d+)", e) for e in new))
            out.append(f"s_nop {need-1}")
        out.append(l)
    return out[npre:]

def flat(items):
    r = []
    for (t, c) in items: r += t.split("\n")
    return r

def spread(fl, items, lo, hi, prio):
    prev = None
    n = len(items)
    for k, (txt, cost) in enumerate(items):
        p = lo + (k * (hi - lo + 1)) // n
        nx = max(p, lo + ((k + 1) * (hi - lo + 1)) // n - 1)
        f = F(txt, cost, p, nx, deps=[prev] if prev else [], prio=prio + k, depgap=1 if (hi - lo + 1) >= n else 0)
        fl.append(f); prev = f

VKA, VVA, VDA, VDB, VXD, VXA = 4, 8, 16, 20, 24, 28
VPK, VPV = 240, 244
VOD, VWD = 24, 25
S0, P0, NM0, QLO, QTOP = 32, 56, 76, 96, 176
VL = 25
sONE = 55
A_O, A_K, A_V, A_L, A_ONES, A_Z = 0, 160, 192, 224, 244, 248
A_X, A_W = 96, 176
XB, XBUF = 65536, 40960
SLOT2 = 53248
FLAG = XB + 2 * XBUF
LDS1 = FLAG + 64
sWAVE = 3
sDOFF, sINC0, sINC1, sXOFF, sM0X, sCNT, sHEAD, sREDO, sLAST, sSIG = 30, 31, 32, 33, 34, 35, 36, 37, 26, 27
sSC = 38
sT0, sT1, sOOFF, sTHR = 48, 49, 50, 51
sG1, sG2, sG3 = 52, 53, 54
sDBG = 56
sOUT = 58
sWS = 60
sBR, sB1, sH0, sB2, sQG, sN4 = 62, 63, 64, 65, 66, 67
sWO = 68
sHO, sM2 = 70, 71
sRAW, sROT, sMH, sML = 0, 1, 44, 45
sHALF = 55

def O(i, dt): return aq(A_O + (i * 8 + dt) * 4)
def Q(i, s, base=QTOP): return vq(base + (i * 4 + s) * 4)
def Sreg(i, t): return S0 + (i % 3) * 8 + t * 4

def acc_loc(eta, i, s):
    fi = i * 4 + s
    if eta == 0: return ("v", 32 + 8 * (8 + fi))
    if fi >= 12: return ("v", 32 + 8 * (fi - 12))
    return ("a", 8 * fi)
def acc(eta, i, nt):
    f, b = acc_loc(eta, i, nt // 2)
    b += (nt % 2) * 4
    return f"{f}[{b}:{b+3}]"

def ring_dma(slot, inc, tag=0):
    res = []
    for g in range(4):
        srd = "s[12:15]" if g < 2 else "s[16:19]"
        vb = VDA if g < 2 else VDB
        for j in range(4):
            t = ""; c = 4
            so = f"s{sDOFF}" if g == 0 else f"s{sT1}"
            if j == 0:
                t = f"s_mov_b32 m0, {slot*16384 + g*4096}\n"
                t += f"s_add_u32 s{sT1}, s{sDOFF}, s{sG1 + g - 1}\n" if g else "s_nop 0\n"
                c = 8
            t += f"buffer_load_dwordx4 v{vb+j}, {srd}, {so} offen offset:{j*1024}{Opt.nt_kv} lds ; tag=R:{tag}"
            if g == 3 and j == 3:
                t += f"\ns_add_u32 s{sRAW}, s{sRAW}, {inc}"; c = 8
            res.append((t, c))
    res.append(("\n".join(doff_update()), 8))
    return res

def doff_update():
    return [f"s_add_u32 s{sT1}, s{sRAW}, s{sROT}", f"s_and_b32 s{sT1}, s{sT1}, s{sML}", f"s_and_b32 s{sDOFF}, s{sRAW}, s{sMH}", f"s_or_b32 s{sDOFF}, s{sDOFF}, s{sT1}"]

def kv_dma(w3, slot, half=None):
    nt = Opt.nt_kv
    def m0(off):
        return f"s_add_u32 m0, s{sHALF}, {off + slot*16384 + (half or 0)*65536}"
    if not w3:
        res = [(m0(0), 4)]
        for j in range(3):
            t = f"buffer_load_dwordx4 v{VDA+j}, s[16:19], s{sDOFF} offen offset:{j*1024}{nt} lds"
            if j == 2: t += f"\ns_add_u32 s{sDOFF}, s{sDOFF}, 0x2000"
            res.append((t, 8 if j == 2 else 4))
        return res
    res = [(m0(6144), 4)]
    for j in range(2): res.append((f"buffer_load_dwordx4 v{VDA+j}, s[12:15], s{sDOFF} offen offset:{j*1024}{nt} lds", 4))
    res.append((m0(8192 + 3072), 4))
    for j in range(4): res.append((f"buffer_load_dwordx4 v{VDB+j%2}, s[16:19], s{sDOFF} offen offset:{j*1024}{nt} lds", 4))
    res.append((m0(8192 + 7168), 4))
    res.append((f"buffer_load_dwordx4 v{VDB+2}, s[16:19], s{sDOFF} offen{nt} lds\ns_add_u32 s{sDOFF}, s{sDOFF}, 0x2000", 8))
    return res

def kv_setup(w3):
    L = []
    def kpat(dst, p, add):
        return ["v_xor_b32 v1, v30, v31", f"v_xor_b32 v1, {4*(p%4)}, v1", "v_lshlrev_b32 v1, 4, v1", "v_lshl_add_u32 v1, v31, 8, v1", f"v_add_u32 v{dst}, {add}, v1"]
    def vpat(dst, p, add):
        return ["v_lshrrev_b32 v1, 1, v30", "v_xor_b32 v1, v1, v31", f"v_xor_b32 v1, {4*(p%2)}, v1", "v_lshlrev_b32 v1, 5, v1", "v_and_b32 v2, 1, v30",
                "v_lshl_add_u32 v1, v2, 4, v1", "v_lshl_add_u32 v1, v31, 8, v1", f"v_add_u32 v{dst}, {add}, v1"]
    if w3:
        L += kpat(VDA, 6, 6144) + kpat(VDA + 1, 7, 6144) + vpat(VDB, 3, 3072) + vpat(VDB + 1, 4, 3072) + vpat(VDB + 2, 7, 7168)
        L += [f"s_mov_b32 s{sHALF}, 0"]
        return {3: L}
    r = {}
    r[0] = sum((kpat(VDA + j, j, 0) for j in range(3)), []) + ["s_mov_b32 s16, s24", "s_mov_b32 s17, s25", f"s_mov_b32 s{sHALF}, 0"]
    r[1] = sum((kpat(VDA + j, 3 + j, 3072) for j in range(3)), []) + ["s_mov_b32 s16, s24", "s_mov_b32 s17, s25", f"s_movk_i32 s{sHALF}, 3072"]
    r[2] = sum((vpat(VDA + j, j, 0) for j in range(3)), []) + [f"s_movk_i32 s{sHALF}, 8192"]
    return r

def x_dma(nq, buf, tag, js=None):
    res = []
    js = list(range(2 * nq)) if js is None else js
    for j in js:
        G, jj = j // 4, j % 4
        t = ""; c = 4
        if jj == 0 or j == js[0]:
            t = f"s_add_u32 m0, s{sM0X}, {buf*XBUF + G*4096}\ns_add_u32 s{sT0}, s{sXOFF}, {G*32768}\n"; c = 8
        t += f"buffer_load_dwordx4 v{VXD+jj}, s[8:11], s{sT0} offen offset:{jj*1024}{Opt.nt_x} lds ; tag=X:{tag}"
        if j == 2 * nq - 1:
            t += f"\ns_add_u32 s{sXOFF}, s{sXOFF}, 128"; c = 8
        res.append((t, c))
    return res

def w_reads(slot, nt):
    st = nt % 4
    r = []
    for kk in range(2):
        for h in range(2):
            b = A_W + st * 8 + kk * 4 + h * 2
            r.append(f"ds_read_b64_tr_b16 a[{b}:{b+1}], v{VVA + (nt if Opt.wswap else nt//2)} offset:{slot*16384 + kk*8192 + h*1024 + (0 if Opt.wswap else (nt%2)*8)}")
    return r
def x_reads(nq, xset, buf):
    r = []
    for i in range(nq):
        for kk in range(2):
            b = A_X + xset * 40 + (i * 2 + kk) * 4
            r.append(f"ds_read_b128 a[{b}:{b+3}], v{VXA+kk} offset:{buf*XBUF + i*2048}")
    return r
def k_reads(slot):
    r = []
    for t in range(2):
        for s in range(4):
            b = A_K + (t * 4 + s) * 4
            r.append(f"ds_read_b128 a[{b}:{b+3}], v{VKA+s} offset:{slot*16384 + t*4096}")
    return r

def qproj_unit(nq, u):
    slot, eta, xset = u % 4, u % 2, (u // 2) % 2
    G = 2 * nq
    mf = []
    for nt in range(8):
        for i in range(nq):
            for kk in range(2):
                c = acc(eta, i, nt)
                mf.append(f"{MF} {c}, {aq(A_W + (nt%4)*8 + kk*4)}, {aq(A_X + xset*40 + (i*2+kk)*4)}, {c}")
    n = len(mf)
    fl = []
    for nt in range(8):
        n2 = nt + 2
        rs = w_reads(slot, n2) if n2 < 8 else w_reads((slot + 1) % 4, n2 - 8)
        for k, r in enumerate(rs):
            fl.append(F(r, 4, nt * G + 1, nt * G + 4, prio=k))
    pre = {}
    if eta == 1:
        pre[3 * G] = [f"s_waitcnt vmcnt(?X:{u//2 + 1})"]
        for k, r in enumerate(x_reads(nq, xset ^ 1, xset ^ 1)):
            fl.append(F(r, 4, 3 * G + 2, 5 * G + 3, prio=100 + k))
    items = x_dma(nq, xset, u // 2 + 2, list(range(eta * nq, eta * nq + nq)))
    if nq == 4:
        pre[6 * G] = [f"s_waitcnt vmcnt(?R:{u+1}) lgkmcnt(0)", "s_barrier"]
        items += ring_dma((slot - 1) % 4, f"s{sINC0 + (1 - eta)}", u + 3)
        spread(fl, items, 0, n - 1, 200)
    else:
        pre[6 * G] = [f"s_waitcnt lgkmcnt(0)", "s_barrier"]
        spread(fl, items, 3, 5 * G, 200)
    out, over = schedule(mf, fl, 8, pre)
    return out

def attn_step(nq, slot):
    nslot = (slot + 1) % 4
    mf = []
    for i in range(nq):
        for t in range(2):
            for s in range(4):
                d = vq(Sreg(i, t))
                c = vq(NM0 + i * 4) if s == 0 else d
                mf.append(f"{MF} {d}, {aq(A_K + (t*4+s)*4)}, {Q(i,s)}, {c}")
    nA = len(mf)
    per = {0: 9, 1: 8, 2: 8}[Opt.summ]
    for i in range(nq):
        for dt in range(8):
            t = f"{MF} {O(i,dt)}, {aq(A_V + dt*4)}, {vq(P0 + i*4)}, {O(i,dt)}"
            mf.append(t)
        if Opt.summ == 0: mf.append(f"{MF} {aq(A_L+i*4)}, {aq(A_ONES)}, {vq(P0 + i*4)}, {aq(A_L+i*4)}")
    n = len(mf)
    fl = []
    so = slot * 16384
    for dt in range(8):
        for t in range(2):
            b = A_V + dt * 4 + t * 2
            fl.append(F(f"ds_read_b64_tr_b16 a[{b}:{b+1}], v{VVA+dt} offset:{so + 8192 + t*4096}", 4, 0, 12, prio=dt))
    for i in range(nq):
        dl = nA + per * i
        for t in range(2):
            dlc = dl - 3
            if i + 3 < nq: dlc = min(dlc, 8 * (i + 3) + 4 * t - 1)
            es = []
            for r in range(4):
                v = Sreg(i, t) + r
                e = F(f"v_exp_f32 v{v}, v{v}", 8, i * 8 + t * 4 + 3 + Opt.delay, dlc - 1, prio=i * 8 + t * 4 + r)
                es.append(e); fl.append(e)
            for h in range(2):
                v = Sreg(i, t) + 2 * h
                cf = F(f"v_cvt_pk_bf16_f32 v{P0+i*4+t*2+h}, v{v}, v{v+1}", 4, 0, dlc, deps=es[2*h:2*h+2], prio=i * 8 + t * 4 + 2*h + 1)
                fl.append(cf)
                if Opt.summ == 1:
                    fl.append(F(f"v_dot2c_f32_bf16 v{VL+i}, s{sONE}, v{P0+i*4+t*2+h}", Opt.dotcost, 0, n - 1, deps=[cf], prio=2000 + (t*2+h)*10 + i))
            if Opt.summ == 2:
                pb = P0 + i * 4 + t * 2
                fl.append(F(f"v_mfma_f32_4x4x4_16b_bf16 {aq(A_L+i*4)}, a[{A_ONES}:{A_ONES+1}], v[{pb}:{pb+1}], {aq(A_L+i*4)}", 8, dl + 4 * t, min(n - 1, dl + 4 * t + 2 + (n if False else 0)), prio=2000))
    for k, r in enumerate(k_reads(nslot)):
        fl.append(F(r, Opt.ldscost if nq == 5 else 4, nA, n - 10, prio=500 + k))
    pre = {0: ["s_waitcnt lgkmcnt(0)"]}
    w3 = nq == 4
    if not Opt.ring8:
        if w3: spread(fl, ring_dma(slot, "0x2000"), nA, n - 1, 600)
        pre[nA] = [f"s_waitcnt {'vmcnt(32) ' if w3 else ''}lgkmcnt(0)", "s_barrier"]
        out, over = schedule(mf, fl, 8, pre)
        return out
    kd = kv_dma(w3, slot)
    if w3: spread(fl, kd, nA, n - 1, 600)
    else:
        fl.append(F(kd[0][0], 4, 0, nA + 8, prio=900))
        spread(fl, kd[1:], nA + 9, n - 1, 600)
    pre[nA] = [f"s_waitcnt vmcnt({42 if w3 else 18}) lgkmcnt(0)", "s_barrier"]
    if slot == 3:
        for r in range(8): fl.append(F(f"v_xor_b32 v{VVA+r}, 0x10000, v{VVA+r}", 4, nA, n - 1, prio=950))
    if slot == 2:
        for r in range(4): fl.append(F(f"v_xor_b32 v{VKA+r}, 0x10000, v{VKA+r}", 4, n - 9, n - 1, prio=950))
    out, over = schedule(mf, fl, 8, pre)
    return out

def max_finish(nq, mreg, tmp):
    L = []
    for sw in ("v_permlane32_swap_b32", "v_permlane16_swap_b32"):
        for i in range(nq): L.append(f"v_mov_b32 v{tmp+i}, v{mreg(i)}")
        for i in range(nq): L.append(f"{sw} v{mreg(i)}, v{tmp+i}")
        for i in range(nq): L.append(f"v_max_f32 v{mreg(i)}, v{mreg(i)}, v{tmp+i}")
    for i in range(nq):
        for r in range(4):
            L.append(f"v_xor_b32 v{NM0+i*4+r}, 0x80000000, v{mreg(i)}")
    return L

def zero_OL(nq):
    z = aq(A_Z)
    L = [f"{MF32} a[{A_O+16*k}:{A_O+16*k+15}], {z}, {z}, 0" for k in range(2 * nq)]
    if Opt.summ == 1:
        L[-1] += "".join(f"\nv_mov_b32 v{VL+i}, 0" for i in range(nq))
        return L
    L.append(f"{MF32} a[{A_L}:{A_L+15}], {z}, {z}, 0")
    if nq == 5: L.append(f"{MF} {aq(A_L+16)}, {z}, {z}, 0")
    return L

WOP = 2 * 8 * 19 * 131072
_Q = [("v", 176 + 4 * k) for k in range(20)] + [("a", 160 + 4 * k) for k in range(24)]
AQ = [_Q[0:8], _Q[8:16], _Q[20:28], [("v", 32 + 4 * k) for k in range(8)]]
BQ = [_Q[16:20] + _Q[28:44], [("v", 96 + 4 * k) for k in range(20)]]
def _q(t): return f"{t[0]}[{t[1]}:{t[1]+3}]"
def fa(st, nu): return _q(AQ[st][nu])
def fb(hb, st, i): return _q(BQ[hb][st * 5 + i])
VO2, VW2, VRW, VRR = 4, 9, 13, 16
sHW = sM2
def ld_a(st, nu, tag):
    so = f"s{sHW}" if st == 0 else f"s{sG1 + st - 1}"
    return f"buffer_load_dwordx4 {fa(st, nu)}, v{VW2 + nu//2}, s[4:7], {so} offen offset:{(nu%2)*1024}{Opt.ld_wo} ; tag=A{st}{nu//2}:{tag}"
def ld_b(hb, st, i, tag):
    return f"buffer_load_dwordx4 {fb(hb, st, i)}, v{VO2 + i}, s[8:11], s{sHO} offen offset:{st*1024}{Opt.ld_o} ; tag=B{st}:{tag}"
def op_wsoff():
    return [f"s_add_u32 s{sG1 + st - 1}, s{sHW}, {st*8192}" for st in range(1, 4)]
def op_setup():
    L = ["v_and_b32 v1, 63, v0", "v_lshlrev_b32 v2, 4, v1"]
    for i in range(5): L.append(f"v_add_u32 v{VO2+i}, {i*131072}, v2")
    for p in range(4):
        L += [f"s_add_u32 s{sT0}, s{sWAVE}, {p}", f"s_and_b32 s{sT0}, s{sT0}, 3", f"s_lshl_b32 s{sT1}, s{sT0}, 11", f"v_add_u32 v{VW2+p}, s{sT1}, v2"]
        if p: L += [f"s_mul_i32 s{sT0}, s{sT0}, 30720", f"s_add_u32 s{sT0}, s{sT0}, {(p-1)*10240}", f"v_add_u32 v{VRW+p-1}, s{sT0}, v2"]
    L += [f"s_mul_i32 s{sT0}, s{sWAVE}, 30720", f"v_add_u32 v{VRR}, s{sT0}, v2"]
    L += [f"s_lshl_b32 s{sHO}, s{sWAVE}, 13", f"s_lshl_b32 s{sHW}, s{sWAVE}, 16"] + op_wsoff()
    return L
def op_advance_w():
    if Opt.noadv & 1: return []
    return [f"s_add_u32 s{sHW}, s{sHW}, 0x40000", f"s_cmp_ge_u32 s{sHW}, 0x100000", f"s_cselect_b32 s{sT0}, {0x100000 - 0x8000}, 0", f"s_sub_u32 s{sHW}, s{sHW}, s{sT0}"] + op_wsoff()
def op_advance_o():
    if Opt.noadv & 2: return []
    return [f"s_add_u32 s{sHO}, s{sHO}, 0x8000", f"s_cmp_ge_u32 s{sHO}, 0x20000", f"s_cselect_b32 s{sT0}, {0x20000 - 0x1000}, 0", f"s_sub_u32 s{sHO}, s{sHO}, s{sT0}"]

def o_stores(a, tiles, off):
    for i in tiles:
        a(f"s_add_u32 s{sT1}, s{sOOFF}, {(i*131072 + off) & 0xffffffff}")
        for s in range(4):
            b = QLO + (i * 4 + s) * 4
            a(f"buffer_store_dwordx4 v[{b}:{b+3}], v{VOD}, s[20:23], s{sT1} offen offset:{s*1024}{Opt.st_o}")

FLW = WOP + 0x800000
def own_word(val):
    return [f"s_lshl_b32 s{sT0}, s{sBR}, 3", f"s_add_u32 s{sT0}, s{sT0}, s{sB1}", f"s_lshl_b32 s{sT0}, s{sT0}, 7", f"s_lshl_b32 s{sT1}, s{sH0}, 1",
            f"s_add_u32 s{sT0}, s{sT0}, s{sT1}", f"s_add_u32 s{sT0}, s{sT0}, {FLW}", f"v_mov_b32 v1, s{sT0}", f"v_mov_b32 v2, {val}", "s_mov_b64 exec, 1",
            f"global_store_dword v1, v2, s[{sWS}:{sWS+1}] sc0 sc1", "s_mov_b64 exec, -1"]
def signal(a, parity):
    if parity == 1:
        for l in own_word(16): a(l)
        return
    a(f"s_lshl_b32 s{sT0}, s{sBR}, 3\ns_add_u32 s{sT0}, s{sT0}, s{sB1}\ns_lshl_b32 s{sT0}, s{sT0}, 2")
    a(f"v_mov_b32 v1, s{sT0}\nv_mov_b32 v2, 1\ns_mov_b64 exec, 1")
    a(f"global_atomic_add v1, v2, s[{sDBG}:{sDBG+1}] sc1\ns_mov_b64 exec, -1")
def poll_issue(a, parity):
    if parity == 0:
        a(f"s_lshl_b32 s{sT0}, s{sBR}, 5\nv_and_b32 v30, 7, v0\nv_lshl_add_u32 v30, v30, 2, s{sT0}")
        if Opt.bal:
            a(f"s_and_b32 s{sT0}, s2, 7\ns_lshl_b32 s{sT0}, s{sT0}, 2\ns_add_u32 s{sT0}, s{sT0}, 136\nv_writelane_b32 v30, s{sT0}, 8")
    else:
        a(f"s_lshl_b32 s{sT0}, s{sBR}, 3\ns_add_u32 s{sT0}, s{sT0}, s{sB2}\ns_lshl_b32 s{sT0}, s{sT0}, 7\ns_add_u32 s{sT0}, s{sT0}, {FLW}")
        a(f"v_and_b32 v30, 15, v0\nv_lshl_add_u32 v30, v30, 2, s{sT0}")
    b = sWS if parity else sDBG
    a(f"global_load_dword v31, v30, s[{b}:{b+1}] sc0 sc1")
def poll_wait(a, parity, lbl, first_wait="vmcnt(0)"):
    b = sWS if parity else sDBG
    a(f"s_mov_b32 s{sT1}, 0x20000\ns_waitcnt {first_wait}")
    a.label(lbl)
    a(f"v_cmp_gt_u32 vcc, 16, v31\ns_sub_u32 s{sT1}, s{sT1}, 1\ns_cmp_eq_u32 s{sT1}, 0\ns_cbranch_scc1 {lbl}_ok")
    a(f"s_nop 2\ns_cbranch_vccz {lbl}_ok")
    a(f"global_load_dword v31, v30, s[{b}:{b+1}] sc0 sc1\ns_sleep 4\ns_waitcnt vmcnt(0)\ns_branch {lbl}")
    a.label(lbl + "_ok")

def op_tile():
    L = []
    if Opt.bal:
        L += [f"v_readfirstlane_b32 s{sT0}, v2", f"s_lshr_b32 s{sT1}, s2, 5", "s_nop 2", f"s_and_b32 s{sT0}, s{sT0}, 3", f"s_lshl_b32 s{sQG}, s{sT0}, 3",
              f"s_add_u32 s{sQG}, s{sQG}, s{sT1}", f"s_mul_i32 s{sB2}, s{sQG}, 43", f"s_lshr_b32 s{sB2}, s{sB2}, 7", f"s_mul_i32 s10, s{sB2}, 3",
              f"s_sub_u32 s{sQG}, s{sQG}, s10", f"s_cmp_eq_u32 s{sT0}, 3", f"s_cselect_b32 s{sB2}, s{sT1}, s{sB2}", f"s_cselect_b32 s{sQG}, 3, s{sQG}"]
    L += [f"s_lshl_b32 s{sT0}, s{sBR}, 3", f"s_add_u32 s{sT0}, s{sT0}, s{sB2}", f"s_mul_i32 s{sT0}, s{sT0}, 19", f"s_mul_i32 s{sT1}, s{sQG}, 5",
          f"s_add_u32 s{sT0}, s{sT0}, s{sT1}", f"s_lshl_b32 s{sT0}, s{sT0}, 17", f"s_add_u32 s8, s{sWS}, s{sT0}", f"s_addc_u32 s9, s{sWS+1}, 0",
          f"s_sub_u32 s10, 19, s{sT1}", "s_lshl_b32 s10, s10, 17"]
    return L

def op_preload():
    L = op_tile() + op_setup()
    for st in range(4):
        L += [ld_b(0, st, i, 0) for i in range(5)]
        if st < 3: L += [ld_a(st, nu, 0) for nu in range(8)]
    return L

def oproj(a):
    a.label("L_op")
    pstamp(a, 9)
    pro = [ld_a(3, nu, 0) for nu in range(8)]
    pro += ["v_mov_b64 v[64:65], 0", "v_mov_b64 v[66:67], 0"] + op_advance_w() + op_advance_o() + [f"s_mov_b32 s{sCNT}, 8"]
    pro += [f"{MF32} a[{16*k}:{16*k+15}], v[64:67], v[64:67], 0" for k in range(10)]
    def kstep_mf(hb, st):
        return [f"{MF} {aq((i*8+nu)*4)}, {fa(st, nu)}, {fb(hb, st, i)}, {aq((i*8+nu)*4)}" for nu in range(8) for i in range(5)]
    def kstep_waits(st, tag):
        pre = {10 * p: [f"s_waitcnt vmcnt(?A{st}{p}:{tag})"] for p in range(4)}
        pre[0] = [f"s_waitcnt vmcnt(?B{st}:{tag})"] + pre[0]
        return pre
    halves = []
    for hb in range(2):
        body = []
        for st in range(4):
            fl = []
            for i in range(5): fl.append(F(ld_b(hb ^ 1, st, i, hb + 1), 4, Opt.bpos * i + 2, Opt.bpos * i + 4, prio=i))
            for nu in range(8): fl.append(F(ld_a(st, nu, hb + 1), 4, min(39, 5 * nu + 5), min(39, 5 * nu + 8), prio=100 + nu))
            out, over = schedule(kstep_mf(hb, st), fl, 4, kstep_waits(st, hb))
            body += [f"@HOOK{hb}{st}@:"] + out
        body += op_advance_w() + op_advance_o() + [f"s_sub_u32 s{sCNT}, s{sCNT}, 1"]
        halves.append(body)
    mf = kstep_mf(1, 0)
    fl = []
    RQ = [176 + 4 * k for k in range(8)] + [240 + 4 * k for k in range(4)] + [96, 100] + [104, 108, 112] + [208 + 4 * k for k in range(8)] + [116 + 4 * k for k in range(5)]
    AC = 56
    for p in (1, 2, 3, 0):
        for i in range(5):
            for e in range(2):
                nu = 2 * p + e
                b = (i * 8 + nu) * 4
                for st in (1, 2, 3): mf.append(f"{MF} {aq(b)}, {fa(st, nu)}, {fb(1, st, i)}, {aq(b)}")
                g = len(mf) - 1
                if p: fl.append(F(f"ds_write_b128 v{VRW+p-1}, a[{b}:{b+3}] offset:{(i*2+e)*1024}", 8, g + 6, g + 8))
                elif g + 6 < 159:
                    for r in range(4): fl.append(F(f"v_accvgpr_read_b32 v{AC+(i*2+e)*4+r}, a{b+r}", 4, g + 5, 159, prio=50))
    misc = ["v_and_b32 v1, 63, v0", "v_and_b32 v3, 15, v1", "v_lshrrev_b32 v1, 4, v1",
            f"s_mul_i32 s{sT0}, s{sB2}, 304", f"s_mul_i32 s{sT1}, s{sQG}, 80", f"s_add_u32 s{sT0}, s{sT0}, s{sT1}",
            f"s_lshl_b32 s{sT0}, s{sT0}, 11", f"s_lshl_b32 s{sT1}, s{sBR}, 10", f"s_add_u32 s{sT0}, s{sT0}, s{sT1}", f"s_lshl_b32 s{sT1}, s{sN4}, 8",
            f"s_add_u32 s{sT0}, s{sT0}, s{sT1}", f"s_lshl_b32 s{sT1}, s{sWAVE}, 6", f"s_add_u32 s{sT0}, s{sT0}, s{sT1}",
            "v_lshlrev_b32 v2, 11, v3", "v_lshl_add_u32 v2, v1, 4, v2", f"v_add_u32 v2, s{sT0}, v2",
            f"s_mov_b32 s16, s{sOUT}", f"s_mov_b32 s17, s{sOUT+1}", f"s_mov_b32 s18, {8*304*1024*2}"]
    spread(fl, [(m, 4) for m in misc], 0, 38, 10)
    BG = 146
    rds = []
    for i in range(5):
        for p in range(3):
            for e in range(2):
                b = RQ[i * 6 + p * 2 + e]
                rds.append(f"ds_read_b128 v[{b}:{b+3}], v{VRR} offset:{p*10240 + (i*2+e)*1024}")
    for k, r in enumerate(rds[:14]): fl.append(F(r, 4, BG + k, BG + k, prio=k))
    tpre = kstep_waits(0, 7)
    tpre.update({40: ["s_waitcnt vmcnt(?A31:7)"], (58 if Opt.bpos == 8 else 39): ["s_waitcnt vmcnt(?B3:7)"], 70: ["s_waitcnt vmcnt(?A32:7)"], 100: ["s_waitcnt vmcnt(0)"], BG: ["s_waitcnt lgkmcnt(0)", "s_barrier"]})
    tail, over = schedule(mf, fl, 8, tpre)
    done = {l for l in tail}
    tail += rds[14:]
    for i in range(5):
        for e in range(2):
            for r in range(4):
                l = f"v_accvgpr_read_b32 v{AC+(i*2+e)*4+r}, a{(i*8+e)*4+r}"
                if l not in done: tail.append(l)
    OF = 32
    for i in range(5):
        if i != 1: tail.append(f"s_waitcnt lgkmcnt({min(14, 6 * (4 - i))})")
        for p in range(3):
            for e in range(2):
                for r in range(0, 4, 2):
                    d = AC + (i * 2 + e) * 4 + r; b = RQ[i * 6 + p * 2 + e] + r
                    tail.append(f"v_pk_add_f32 v[{d}:{d+1}], v[{d}:{d+1}], v[{b}:{b+1}]")
        b = AC + i * 8; d = OF + i * 4
        for r in range(4): tail.append(f"v_cvt_pk_bf16_f32 v{d+r}, v{b+2*r}, v{b+2*r+1}")
    for sw in ("v_permlane32_swap_b32", "v_permlane16_swap_b32"):
        for i in range(5):
            d = OF + i * 4
            tail += [f"{sw} v{d}, v{d+2}", f"{sw} v{d+1}, v{d+3}"]
    tail = waits.insert_lgkm(tail, loop=False)
    per = {f"B{st}": 2 for st in range(4)}
    per.update({f"A{st}{p}": 2 for st in range(4) for p in range(4)})
    body = halves[0] + ["@MID@:"] + halves[1]
    last = [re.sub(r"(tag=\w+|\?\w+):(\d)", lambda m: f"{m.group(1)}:{int(m.group(2)) + 6}", l) for l in halves[0]]
    _, pro, body, last, tail = waits.resolve_vm([(op_preload(), 1, {}), (pro, 1, {}), (body, 3, per), (last, 1, {}), (tail, 1, {})])
    for l1, l2 in zip(body, last):
        if "vmcnt" in l1: assert int(re.search(r"vmcnt\((\d+)", l1).group(1)) <= int(re.search(r"vmcnt\((\d+)", l2).group(1))
    for l in fix_hazards(pro): a(l)
    o_stores(a, range(4), 0)
    a(f"s_cmp_eq_u32 s{sWAVE}, 3\ns_cbranch_scc1 L_opl")
    o_stores(a, [4], 0)
    for e in hazard.check(body + body, "op")[:10]: print(e)
    a.label("L_opl")
    a("; noalign")
    for l in body:
        if Opt.nomf and l.startswith("v_mfma"): continue
        if l == "@MID@:":
            a(f"s_cmp_eq_u32 s{sCNT}, 1\ns_cbranch_scc1 L_opt"); continue
        m = re.match(r"@HOOK(\d)(\d)@:", l)
        if not m: a(l); continue
        hb, st = int(m.group(1)), int(m.group(2))
        ks = Opt.poll_ks
        if (hb, st) == ((ks // 4) % 2, ks % 4):
            a(f"s_cmp_lg_u32 s{sCNT}, {8 - ks // 4}\ns_cbranch_scc1 L_oph_pi")
            poll_issue(a, 1)
            a.label("L_oph_pi")
        if (hb, st) == (1, Opt.sig_st):
            a(f"s_cmp_lg_u32 s{sCNT}, 7\ns_cbranch_scc1 L_oph_sig")
            pstamp(a, 10)
            a(f"v_mov_b32 v1, {FLAG + 8}\nv_mov_b32 v2, 1\ns_mov_b64 exec, 1\nds_add_rtn_u32 v3, v1, v2\ns_mov_b64 exec, -1\ns_waitcnt lgkmcnt(0)")
            a(f"v_readfirstlane_b32 s{sT0}, v3\ns_nop 3\ns_cmp_lg_u32 s{sT0}, 3\ns_cbranch_scc1 L_oph_sig")
            signal(a, 1)
            a.label("L_oph_sig")
        if (hb, st) == (1, 0):
            a(f"s_cmp_lg_u32 s{sCNT}, 5\ns_cbranch_scc1 L_oph_pw")
            pstamp(a, 11)
            poll_wait(a, 1, "L_pw1", f"vmcnt({13 * (12 - ks)})")
            pstamp(a, 12)
            a.label("L_oph_pw")
    a("s_branch L_opl")
    a.label("L_opt")
    body = halves[0]
    pstamp(a, 13)
    tl = fix_hazards(tail, body[-26:])
    k = max(j for j, l in enumerate(tl) if l.startswith("v_mfma"))
    for l in tl[:k + 1]: a(l)
    a("; align")
    for l in tl[k + 1:]: a(l)
    for i in range(5):
        d = OF + i * 4
        if i == 4: a(f"s_cmp_eq_u32 s{sQG}, 3\ns_cbranch_scc1 L_fin")
        a(f"s_mov_b32 s{sT0}, {i*32768}\nbuffer_store_dwordx4 v[{d}:{d+3}], v2, s[16:19], s{sT0} offen{Opt.st_out}")

def variant(a, nq, tag):
    w3 = nq == 4
    pro = late_setup_w3() if w3 else flat(x_dma(nq, 1, 1))
    pro += dstamp(3) + ["s_waitcnt vmcnt(?X:0) lgkmcnt(0)"] + dstamp(4) + ["s_barrier"] + dstamp(5)
    pro += x_reads(nq, 0, 0) + w_reads(0, 0) + w_reads(0, 1)
    if w3: pro += flat(x_dma(nq, 1, 1)) + flat(ring_dma(2, f"s{sINC0}", 2))
    pro += [f"s_mov_b32 s{sCNT}, 4", "s_waitcnt lgkmcnt(0)"]
    body = []
    for u in range(4):
        if u == 1: body.append("@SWITCH@:")
        body += qproj_unit(nq, u)
    body = waits.insert_lgkm(body)
    _, pro, body = waits.resolve_vm([(first_loads(), 1, {}), (pro, 1, {}), (body, 4, {"R": 4, "X": 2})])
    for l in fix_hazards(pro): a(l)
    pstamp(a, 1)
    for e in hazard.check(body + body, f"q{tag}")[:10]: print(e)
    a.label(f"L_q{tag}")
    a("; noalign")
    a(f"s_cmp_eq_u32 s{sCNT}, 1\ns_cselect_b32 s10, 0, s10\ns_cselect_b32 s{sM0X}, 0x28000, s{sM0X}")
    if Opt.wo_pf and Opt.wo_when == 1 and not w3:
        a(f"s_cmp_lg_u32 s{sCNT}, 3\ns_cbranch_scc1 L_nwo{tag}")
        for l in fix_hazards(wo_touch()): a(l)
        a.label(f"L_nwo{tag}")
    for l in body:
        if l == "@SWITCH@:":
            if not w3: continue
            a(f"s_cmp_lg_u32 s{sCNT}, 1\ns_cbranch_scc1 L_qn{tag}")
            for l2 in kv_switch(): a(l2)
            for j in range(4): a(f"v_mov_b32 v{VDA+j}, v{VPK+j}\nv_mov_b32 v{VDB+j}, v{VPV+j}")
            a.label(f"L_qn{tag}")
        else: a(l)
    a(f"s_sub_u32 s{sCNT}, s{sCNT}, 1\ns_cmp_lg_u32 s{sCNT}, 0\ns_cbranch_scc1 L_q{tag}")
    a("; align")
    pstamp(a, 2)
    cv = ["s_waitcnt lgkmcnt(0)"] + k_reads(0)
    for l in fix_hazards(cv, body[-26:]): a(l)
    if not w3:
        for l in kv_switch(): a(l)
        a(f"s_movk_i32 s{sDOFF}, 0x6000")
    ks = kv_setup(w3) if Opt.ring8 else {}
    for w in sorted(ks):
        if not w3 and w < 2: a(f"s_cmp_lg_u32 s{sWAVE}, {w}\ns_cbranch_scc1 L_ks{w}")
        for l in ks[w]: a(l)
        if not w3 and w < 2:
            a("s_branch L_ksd"); a.label(f"L_ks{w}")
    if not w3 and Opt.ring8: a.label("L_ksd")
    cv = ["s_nop 1"]
    if Opt.ring8:
        for tl in range(3, 8): cv += flat(kv_dma(w3, tl % 4, tl // 4))
    elif w3: cv += flat(ring_dma(3, "0x2000")) + own_word(0)
    groups = []
    for k in range(27, -1, -1):
        fi = k - 8 if k >= 8 else k + 12
        if fi // 4 < nq: groups.append(("v", 32 + 8 * k, 144 + 4 * k))
    for fi in range(12): groups.append(("a", 8 * fi, QLO + 4 * fi))
    tsel = 0
    pend = []
    for (kind, sb, d) in groups:
        if kind == "a":
            tb = 32 + 8 * tsel; tsel = (tsel + 1) % 4
            for r in range(8): cv.append(f"v_accvgpr_read_b32 v{tb+r}, a{sb+r}")
            sb = tb
        for r in range(0, 8, 2): cv.append(f"v_pk_mul_f32 v[{sb+r}:{sb+r+1}], v[{sb+r}:{sb+r+1}], s[{sSC}:{sSC+1}]")
        cv += pend[:2]
        for r in range(3, -1, -1): cv.append(f"v_cvt_pk_bf16_f32 v{d+r}, v{sb+2*r}, v{sb+2*r+1}")
        cv += pend[2:]
        if Opt.wswap:
            pend = [f"v_permlane32_swap_b32 v{d}, v{d+2}", f"v_permlane32_swap_b32 v{d+1}, v{d+3}",
                    f"v_permlane16_swap_b32 v{d}, v{d+2}", f"v_permlane16_swap_b32 v{d+1}, v{d+3}"]
    cv += pend
    cv += ["v_and_b32 v1, 63, v0", "v_and_b32 v30, 15, v1", "v_lshrrev_b32 v31, 4, v1",
           "v_lshrrev_b32 v2, 2, v30", "v_lshl_add_u32 v2, v31, 2, v2", "v_and_b32 v3, 7, v2", "v_lshlrev_b32 v2, 8, v2",
           "v_and_b32 v32, 3, v30", "v_lshl_add_u32 v2, v32, 3, v2"]
    for dt in range(8): cv += [f"v_xor_b32 v32, {dt}, v3", f"v_lshl_add_u32 v{VVA+dt}, v32, 5, v2"]
    cv.append(f"v_lshlrev_b32 v{VOD}, 4, v1")
    cv += ["v_lshrrev_b32 v2, 1, v30", "v_xor_b32 v2, v2, v31", "v_and_b32 v3, 1, v30", "v_lshlrev_b32 v3, 4, v3"]
    for jj in range(4):
        cv += [f"v_xor_b32 v32, {4*(jj%2)}, v2", "v_lshl_add_u32 v32, v32, 5, v3", "v_lshl_add_u32 v32, v31, 10, v32", f"v_add_u32 v{VWD+jj}, {jj*3072}, v32"]
    cv.append("v_mov_b32 v1, 0x3f803f80")
    for r in range(4): cv.append(f"v_accvgpr_write_b32 a{A_ONES+r}, v1")
    cv += [
           f"s_lshl_b32 s{sT0}, s{sB1}, 4", f"s_lshr_b32 s{sT1}, s{sH0}, 1", f"s_add_u32 s{sHO}, s{sT0}, s{sT1}",
           f"s_and_b32 s{sT0}, s{sHO}, 3", f"s_lshl_b32 s{sT0}, s{sT0}, 8", f"s_add_u32 s4, s{sWO}, s{sT0}", f"s_addc_u32 s5, s{sWO+1}, 0",
           f"s_sub_u32 s6, 0x400000, s{sT0}", f"s_lshr_b32 s{sT0}, s{sHO}, 2", f"s_lshl_b32 s{sT0}, s{sT0}, 2", f"s_add_u32 s{sT0}, s{sT0}, s{sWAVE}",
           f"s_lshl_b32 s{sT0}, s{sT0}, 15", f"s_mul_i32 s{sM0X}, s{sWAVE}, 10240", f"s_add_u32 s{sM0X}, s{sM0X}, {XB}"]
    for G in range(2):
        cv += [f"s_add_u32 m0, s{sM0X}, {G*4096}", f"s_add_u32 s{sT1}, s{sT0}, {G*16384}"]
        for jj in range(4): cv.append(f"buffer_load_dwordx4 v{VWD+jj}, s[4:7], s{sT1} offen offset:{jj*1024} nt lds")
    cv.append(f"s_mov_b32 s{sONE}, 0x3f803f80")
    cv += [f"s_mov_b32 s{sHEAD}, 0", f"s_mov_b32 s{sREDO}, 0", f"s_mov_b32 s{sLAST}, 0", f"s_mov_b32 s{sSIG}, 0"]
    for l in fix_hazards(cv): a(l)
    pstamp(a, 3)
    a.label(f"L_head{tag}")
    mp = ["s_waitcnt lgkmcnt(0)", "s_nop 1"]
    for i in range(nq):
        for s in range(4):
            d = vq(S0 + 4 * i)
            mp.append(f"{MF} {d}, {aq(A_K + s*4)}, {Q(i,s)}, {d if s else 0}")
    z = zero_OL(nq)
    vv = []
    for i in range(nq):
        b = S0 + 4 * i
        vv.append(f"v_max3_f32 v{b}, v{b}, v{b+1}, v{b+2}")
    for i in range(nq):
        b = S0 + 4 * i
        vv.append(f"v_max_f32 v{b}, v{b}, v{b+3}")
    vv += max_finish(nq, lambda i: S0 + 4 * i, P0)
    per = -(-len(vv) // len(z))
    for k, zz in enumerate(z):
        mp += zz.split("\n"); mp += vv[k * per:(k + 1) * per]
    for l in fix_hazards(mp): a(l)
    a.label(f"L_main{tag}")
    pstamp(a, 6)
    a(f"s_mov_b32 s{sCNT}, 8\ns_nop 1")
    body = []
    for st in range(4): body += attn_step(nq, st)
    for d in Opt.drop.split(): body = [l for l in body if not l.startswith(d)]
    for e in hazard.check(mp[-26:] + body + body, f"a{tag}")[:10]: print(e)
    a.label(f"L_loop{tag}")
    if w3 or Opt.ring8: a(f"s_cmp_le_u32 s{sCNT}, s{sLAST}\ns_cselect_b32 s18, 0, s18")
    if w3: a("s_cselect_b32 s14, 0, s14")
    a(f"s_cmp_eq_u32 s{sSIG}, 0\ns_cbranch_scc1 L_ls{tag}")
    a(f"s_add_u32 s{sSIG}, s{sSIG}, 1")
    if Opt.bal and not w3:
        a(f"s_cmp_lg_u32 s{sSIG}, 3\ns_cbranch_scc1 L_tk{tag}\ns_lshr_b32 s{sT0}, s2, 3\ns_or_b32 s{sT0}, s{sT0}, s{sWAVE}\ns_cmp_lg_u32 s{sT0}, 0\ns_cbranch_scc1 L_tk{tag}")
        a(f"s_lshl_b32 s{sT0}, s{sBR}, 2\nv_mov_b32 v1, s{sT0}\nv_mov_b32 v2, 1\ns_mov_b64 exec, 1")
        a(f"global_atomic_add v31, v1, v2, s[{sDBG}:{sDBG+1}] offset:128 sc0 sc1\ns_mov_b64 exec, -1")
        a.label(f"L_tk{tag}")
    for k in range(3):
        tiles = list(range(k * 2, min(nq, k * 2 + 2)))
        if not tiles: continue
        a(f"s_cmp_lg_u32 s{sSIG}, {2 + k}\ns_cbranch_scc1 L_lst{tag}_{k}")
        if not (w3 and Opt.w3nost) and not Opt.nost: o_stores(a, tiles, -4096)
        a(f"s_branch L_ls{tag}")
        a.label(f"L_lst{tag}_{k}")
    if not w3:
        if not Opt.ring8:
            a(f"s_cmp_lg_u32 s{sSIG}, 5\ns_cbranch_scc1 L_l3{tag}\ns_waitcnt vmcnt(0)")
            if Opt.bal:
                a(f"s_lshr_b32 s{sT0}, s2, 3\ns_or_b32 s{sT0}, s{sT0}, s{sWAVE}\ns_cmp_lg_u32 s{sT0}, 0\ns_cbranch_scc1 L_l3{tag}")
                a(f"s_lshl_b32 s{sT0}, s2, 2\nv_mov_b32 v1, s{sT0}\nv_add_u32 v2, 16, v31\ns_mov_b64 exec, 1")
                a(f"global_store_dword v1, v2, s[{sDBG}:{sDBG+1}] offset:136 sc0 sc1\ns_mov_b64 exec, -1")
            a.label(f"L_l3{tag}")
        a(f"s_cmp_lg_u32 s{sWAVE}, 0\ns_cbranch_scc1 L_ls{tag}")
        a(f"s_cmp_lg_u32 s{sSIG}, 6\ns_cbranch_scc1 L_l6{tag}")
        signal(a, 0)
        a.label(f"L_l6{tag}")
        a(f"s_cmp_lg_u32 s{sSIG}, 8\ns_cbranch_scc1 L_l8{tag}")
        poll_issue(a, 0)
        a.label(f"L_l8{tag}")
        a(f"s_cmp_lg_u32 s{sSIG}, 9\ns_cbranch_scc1 L_ls{tag}")
        poll_wait(a, 0, "L_pw0")
        if Opt.bal:
            a(f"v_readlane_b32 s{sT0}, v31, 8\nv_mov_b32 v1, {FLAG + 12}\ns_nop 1\nv_mov_b32 v2, s{sT0}\nds_write_b32 v1, v2")
    a.label(f"L_ls{tag}")
    a("; noalign")
    for l in body: a(l)
    if Opt.ring8: a(f"s_xor_b32 s{sHALF}, s{sHALF}, 0x10000")
    a(f"s_sub_u32 s{sCNT}, s{sCNT}, 1\ns_cmp_lg_u32 s{sCNT}, 0\ns_cbranch_scc1 L_loop{tag}")
    a("; align")
    if Opt.stamps:
        a(f"s_cmp_eq_u32 s{sHEAD}, 1\ns_cbranch_scc1 L_ps{tag}")
        pstamp(a, 4)
        a.label(f"L_ps{tag}")
        pstamp(a, 7)
    ep = []
    if Opt.summ == 1:
        ep.append("s_nop 3")
        for i in range(nq): ep.append(f"v_mov_b32 v{NM0+i}, v{VL+i}")
    else:
        for i in range(nq): ep.append(f"v_accvgpr_read_b32 v{NM0+i}, a{A_L+4*i}")
    if Opt.summ:
        for sw in ("v_permlane32_swap_b32", "v_permlane16_swap_b32"):
            for i in range(nq): ep.append(f"v_mov_b32 v{S0+i}, v{NM0+i}")
            for i in range(nq): ep.append(f"{sw} v{NM0+i}, v{S0+i}")
            for i in range(nq): ep.append(f"v_add_f32 v{NM0+i}, v{NM0+i}, v{S0+i}")
    ep.append(f"v_max3_f32 v1, v{NM0}, v{NM0+1}, v{NM0+2}")
    ep.append(f"v_max3_f32 v1, v1, v{NM0+3}, v{NM0+nq-1}")
    ep.append(f"v_cmp_ngt_f32 vcc, s{sTHR}, v1")
    for i in range(nq): ep.append(f"v_rcp_f32 v{NM0+8+2*i}, v{NM0+i}")
    ep += [f"s_lshl_b32 s{sT0}, s{sHEAD}, 2", f"s_add_u32 s{sT0}, s{sT0}, {FLAG}", f"v_mov_b32 v1, s{sT0}", "v_mov_b32 v2, 1"]
    for l in fix_hazards(ep, body[-26:]): a(l)
    a(f"s_cbranch_vccz L_nof{tag}\nds_write_b32 v1, v2")
    a.label(f"L_nof{tag}")
    a(f"s_cmp_eq_u32 s{sHEAD}, 0\ns_cbranch_scc1 L_nw{tag}\ns_waitcnt vmcnt(0)")
    a.label(f"L_nw{tag}")
    a("s_waitcnt lgkmcnt(0)\ns_barrier\nds_read_b32 v3, v1")
    if Opt.bal: a(f"v_mov_b32 v1, {FLAG + 12}\nds_read_b32 v2, v1")
    def og_pre(i, s, tsel):
        tb = 32 + 8 * tsel
        g = [f"v_accvgpr_read_b32 v{tb+r}, a{A_O + (i*8+2*s)*4 + r}" for r in range(8)]
        rc = NM0 + 8 + 2 * i
        for r in range(0, 8, 2): g.append(f"v_pk_mul_f32 v[{tb+r}:{tb+r+1}], v[{tb+r}:{tb+r+1}], v[{rc}:{rc+1}] op_sel_hi:[1,0]")
        return g
    def og_post(i, s, tsel):
        tb = 32 + 8 * tsel; d = QLO + (i * 4 + s) * 4
        return [f"v_cvt_pk_bf16_f32 v{d+r}, v{tb+2*r}, v{tb+2*r+1}" for r in range(4)]
    allg = [(i, s) for i in range(nq) for s in range(4)]
    ep = []
    for k, (i, s) in enumerate(allg[:3]): ep += og_pre(i, s, k)
    ep += ["s_waitcnt lgkmcnt(0)", f"v_readfirstlane_b32 s{sT0}, v3"]
    for l in fix_hazards(ep): a(l)
    a(f"s_nop 3\ns_andn2_b32 s{sT0}, s{sT0}, s{sREDO}\ns_cmp_lg_u32 s{sT0}, 0\ns_cbranch_scc1 L_redo{tag}")
    a(f"s_cmp_eq_u32 s{sHEAD}, 1\ns_cbranch_scc1 L_pl{tag}")
    wc = [] if w3 else ["s_waitcnt vmcnt(0)"]
    for dt in range(8): wc.append(f"v_add_u32 v{64+dt}, s{sM0X}, v{VVA+dt}")
    for dt in range(8):
        for t in range(2):
            b = A_V + dt * 4 + t * 2
            wc.append(f"ds_read_b64_tr_b16 a[{b}:{b+1}], v{64+dt} offset:{t*4096}")
    for r in range(0, nq * 16, 2): wc.append(f"v_mov_b64 v[{QTOP+r}:{QTOP+r+1}], v[{QLO+r}:{QLO+r+1}]")
    wc += [f"s_lshl_b32 s{sT0}, s{sBR}, 22", f"s_add_u32 s{sT0}, s{sT0}, {WOP}", f"s_add_u32 s4, s{sWS}, s{sT0}", f"s_addc_u32 s5, s{sWS+1}, 0",
           "s_mov_b32 s6, 0x400000", f"s_and_b32 s{sT0}, s{sHO}, 3", f"s_lshl_b32 s{sT0}, s{sT0}, 20", f"s_lshr_b32 s{sT1}, s{sHO}, 2",
           f"s_lshl_b32 s{sT1}, s{sT1}, 2", f"s_add_u32 s{sT1}, s{sT1}, s{sWAVE}", f"s_lshl_b32 s{sT1}, s{sT1}, 13", f"s_add_u32 s{sT0}, s{sT0}, s{sT1}",
           f"s_add_u32 s{sT1}, s{sT0}, 4096", "s_waitcnt lgkmcnt(0)"]
    for dt in range(8):
        wc.append(f"buffer_store_dwordx4 {aq(A_V + dt*4)}, v{VOD}, s[4:7], s{sT0 if dt < 4 else sT1} offen offset:{(dt%4)*1024}{Opt.st_o}")
    wc += [f"s_lshl_b32 s{sT0}, s{sN4}, 20", f"s_add_u32 s4, s4, s{sT0}", "s_addc_u32 s5, s5, 0", "s_mov_b32 s6, 0x100000"]
    for l in fix_hazards(wc): a(l)
    a(f"s_branch L_npl{tag}")
    a.label(f"L_pl{tag}")
    for l in fix_hazards(op_preload()): a(l)
    a.label(f"L_npl{tag}")
    ep = []
    for k, (i, s) in enumerate(allg):
        if k >= 3: ep += og_pre(i, s, k % 4)
        ep += og_post(i, s, k % 4)
    for l in fix_hazards(ep): a(l)
    a(f"s_cmp_eq_u32 s{sHEAD}, 0\ns_cbranch_scc1 L_nh{tag}")
    pstamp(a, 8)
    a("s_branch L_op")
    a.label(f"L_nh{tag}")
    pstamp(a, 5)
    a(f"s_mov_b32 s{sHEAD}, 1\ns_mov_b32 s{sLAST}, {2 if Opt.ring8 else 1}\ns_mov_b32 s{sREDO}, 0\ns_mov_b32 s{sSIG}, 1\ns_add_u32 s{sOOFF}, s{sOOFF}, 4096")
    a(f"s_branch L_head{tag}")
    a.label(f"L_redo{tag}")
    a(f"s_mov_b32 s{sREDO}, 1\ns_waitcnt vmcnt(0) lgkmcnt(0)\ns_barrier")
    a(f"s_lshl_b32 s{sRAW}, s{sHEAD}, 18\ns_mov_b32 s14, 0x80000\ns_mov_b32 s18, 0x80000")
    for l in doff_update(): a(l)
    rp = []
    if Opt.ring8:
        for tl in range(8): rp += flat(kv_dma(w3, tl % 4, tl // 4))
    elif w3:
        for sl in range(4): rp += flat(ring_dma(sl, "0x2000")) + ["s_waitcnt vmcnt(16)"]
    for l in fix_hazards(rp): a(l)
    a("v_and_b32 v1, 15, v0\nv_lshlrev_b32 v1, 8, v1\nv_and_b32 v2, 48, v0\nv_add_u32 v1, v1, v2")
    a(f"s_lshl_b32 s{sT0}, s{sHEAD}, 18\ns_mov_b32 s{sCNT}, 64")
    for i in range(nq): a(f"v_mov_b32 v{NM0+i}, 0xff800000")
    a.label(f"L_rl{tag}")
    rb = []
    for s in range(4): rb.append(f"buffer_load_dwordx4 a[{A_K+4*s}:{A_K+4*s+3}], v1, s[12:15], s{sT0} offen offset:{s*64}")
    rb.append("s_waitcnt vmcnt(0)")
    for i in range(nq):
        for s in range(4):
            d = vq(S0 + 4 * i)
            rb.append(f"{MF} {d}, {aq(A_K + s*4)}, {Q(i,s)}, {d if s else 0}")
    rb.append("s_nop 7")
    for i in range(nq):
        b = S0 + 4 * i
        rb.append(f"v_max3_f32 v{NM0+i}, v{NM0+i}, v{b}, v{b+1}")
        rb.append(f"v_max3_f32 v{NM0+i}, v{NM0+i}, v{b+2}, v{b+3}")
    rb.append(f"s_add_u32 s{sT0}, s{sT0}, 0x1000")
    for l in fix_hazards(rb): a(l)
    a(f"s_sub_u32 s{sCNT}, s{sCNT}, 1\ns_cmp_lg_u32 s{sCNT}, 0\ns_cbranch_scc1 L_rl{tag}")
    rb = [f"v_mov_b32 v{S0+i}, v{NM0+i}" for i in range(nq)] + max_finish(nq, lambda i: S0 + i, P0) + "\n".join(zero_OL(nq)).split("\n")
    rb += ["s_waitcnt vmcnt(0)", "s_barrier"] + k_reads(0) + ["s_nop 7"]
    for l in fix_hazards(rb): a(l)
    a(f"s_branch L_main{tag}")

def wo_touch():
    return [f"s_lshl_b32 s{sT0}, s{sB1}, 4", f"s_lshr_b32 s{sT1}, s{sH0}, 1", f"s_add_u32 s{sT0}, s{sT0}, s{sT1}", f"s_mul_i32 s{sT0}, s{sT0}, 3",
            f"s_add_u32 s{sT0}, s{sT0}, s{sWAVE}", f"s_lshl_b32 s{sT0}, s{sT0}, 14", "v_and_b32 v1, 63, v0", "v_lshlrev_b32 v1, 7, v1",
            f"v_add_u32 v1, s{sT0}, v1", f"s_mov_b32 s4, s{sWO}", f"s_mov_b32 s5, s{sWO+1}", "s_mov_b32 s6, 0x400000", "s_mov_b32 s7, 0x20000",
            "buffer_load_dword a255, v1, s[4:7], 0 offen", "v_add_u32 v1, 0x2000, v1", "buffer_load_dword a255, v1, s[4:7], 0 offen"]

def kv_switch():
    return ["s_mov_b32 s12, s24", "s_mov_b32 s13, s25", "s_mov_b32 s14, 0x80000", "s_mov_b32 s16, s28", "s_mov_b32 s17, s29", "s_mov_b32 s18, 0x80000",
            f"s_mov_b32 s{sRAW}, 0", f"s_mov_b32 s{sDOFF}, s{sROT}", f"s_mov_b32 s{sMH}, 0xfffc0000", f"s_mov_b32 s{sML}, 0x3e000", f"s_movk_i32 s{sINC0}, 0x2000", f"s_movk_i32 s{sINC1}, 0x2000",
            f"s_movk_i32 s{sG1}, 0x1000", f"s_mov_b32 s{sG2}, 0", f"s_movk_i32 s{sG3}, 0x1000"]

def first_loads():
    L = [f"s_lshl_b32 s{sT0}, s{sWAVE}, 12", f"s_mov_b32 m0, s{sT0}", f"s_lshl_b32 s{sT1}, s{sWAVE}, 17"]
    for j in range(4): L.append(f"buffer_load_dwordx4 v{VDA+j}, s[12:15], s{sT1} offen offset:{j*1024}{Opt.nt_kv} lds ; tag=R:0")
    L += [f"s_add_u32 m0, s{sT0}, 16384", f"s_add_u32 s{sT1}, s{sT1}, 256"]
    for j in range(4): L.append(f"buffer_load_dwordx4 v{VDA+j}, s[12:15], s{sT1} offen offset:{j*1024}{Opt.nt_kv} lds ; tag=R:1")
    L += [l for l in flat(x_dma(5, 0, 0, list(range(8))))]
    return L

def late_setup_w3():
    L = ["v_xor_b32 v1, v30, v31"]
    for j in range(4):
        L += [f"v_xor_b32 v2, {4*j}, v1", "v_lshlrev_b32 v2, 4, v2", f"v_lshl_add_u32 v{VPK+j}, v31, 8, v2"]
    L += ["v_lshrrev_b32 v2, 1, v30", "v_xor_b32 v2, v2, v31", "v_and_b32 v3, 1, v30", "v_lshlrev_b32 v3, 4, v3"]
    for j in range(4):
        L += [f"v_xor_b32 v1, {4*(j%2)}, v2", "v_lshl_add_u32 v1, v1, 5, v3", f"v_lshl_add_u32 v{VPV+j}, v31, 8, v1"]
    L += [f"v_mov_b32 v1, {FLAG}", "ds_write_b64 v1, v[32:33]", "ds_write_b64 v1, v[32:33] offset:8"]
    return L

def late_setup():
    L = []
    for s in range(4):
        L += [f"v_or_b32 v2, {4*s}, v31", "v_xor_b32 v2, v2, v30", "v_lshlrev_b32 v2, 4, v2", f"v_lshl_add_u32 v{VKA+s}, v30, 8, v2"]
    L += ["v_lshrrev_b32 v2, 2, v30", "v_and_b32 v3, 1, v31", "v_lshl_add_u32 v3, v3, 2, v2", "v_bfe_u32 v32, v30, 1, 1", "v_xor_b32 v3, v3, v32",
          "v_lshl_add_u32 v2, v31, 3, v2", "v_lshlrev_b32 v2, 8, v2", "v_and_b32 v32, 1, v30", "v_lshl_add_u32 v2, v32, 4, v2"]
    for s in range(4):
        L += [f"v_xor_b32 v32, {2*s}, v3", f"v_lshl_add_u32 v{VVA+s}, v32, 5, v2"]
    if Opt.wswap:
        L += ["v_lshrrev_b32 v2, 2, v30", "v_and_b32 v3, 1, v31", "v_lshl_add_u32 v3, v3, 2, v2",
              "v_lshl_add_u32 v2, v31, 3, v2", "v_lshlrev_b32 v2, 8, v2", "v_and_b32 v32, 3, v30", "v_lshl_add_u32 v2, v32, 3, v2"]
        for nt in range(8):
            L += [f"v_xor_b32 v32, {nt}, v3", f"v_lshl_add_u32 v{VVA+nt}, v32, 5, v2"]
    L += ["v_lshrrev_b32 v33, 1, v30", "v_xor_b32 v33, v33, v31"]
    for kk in range(2):
        L += [f"v_xor_b32 v32, {4*kk}, v33", "v_lshlrev_b32 v32, 4, v32", "v_lshl_add_u32 v32, v30, 7, v32", f"v_add_u32 v{VXA+kk}, s{sM0X}, v32"]
    return L

def late_setup_s():
    L = [f"s_lshl_b32 s{sT0}, s{sB1}, 5", f"s_add_u32 s{sT0}, s{sT0}, s{sH0}", f"s_lshl_b32 s{sT0}, s{sT0}, 18",
          f"s_add_u32 s24, s86, s{sT0}", "s_addc_u32 s25, s87, 0", f"s_add_u32 s28, s88, s{sT0}", "s_addc_u32 s29, s89, 0",
          f"s_lshl_b32 s{sT0}, s{sBR}, 3", f"s_add_u32 s{sT0}, s{sT0}, s{sB1}", f"s_mul_i32 s{sT0}, s{sT0}, {19*131072}",
          f"s_add_u32 s20, s{sWS}, s{sT0}", f"s_addc_u32 s21, s{sWS+1}, 0", f"s_mov_b32 s22, {19*131072}", "s_mov_b32 s23, 0x20000",
          f"s_mul_i32 s{sOOFF}, s{sWAVE}, {5*131072}", f"s_lshl_b32 s{sT0}, s{sH0}, 12", f"s_add_u32 s{sOOFF}, s{sOOFF}, s{sT0}",
          f"s_mov_b32 s{sSC}, {f2u(SCALE):#x}", f"s_mov_b32 s{sSC+1}, {f2u(SCALE):#x}", f"s_mov_b32 s{sTHR}, {f2u(2.0**Opt.thr):#x}",
          "s_mov_b32 s7, 0x20000",
          f"s_and_b32 s{sB2}, s2, 3", f"s_lshl_b32 s{sB2}, s{sB2}, 1", f"s_lshr_b32 s{sT0}, s2, 7", f"s_add_u32 s{sB2}, s{sB2}, s{sT0}",
          f"s_bfe_u32 s{sQG}, s2, 0x20005", f"s_bfe_u32 s{sN4}, s2, 0x20003"]
    return L

def kernel():
    a = Asm()
    a("s_cmp_ge_u32 s2, 256\ns_cbranch_scc1 L_end")
    a("s_load_dwordx8 s[84:91], s[0:1], 0\ns_load_dwordx2 s[92:93], s[0:1], 32\ns_load_dwordx8 s[40:47], s[0:1], 40\ns_load_dwordx2 s[94:95], s[0:1], 72")
    a(f"s_load_dwordx2 s[{sOUT}:{sOUT+1}], s[0:1], 80\ns_load_dwordx2 s[{sDBG}:{sDBG+1}], s[0:1], 88\ns_load_dwordx2 s[{sWS}:{sWS+1}], s[0:1], 96")
    pstamp(a, 0)
    a(f"v_lshrrev_b32 v2, 6, v0\nv_and_b32 v1, 63, v0\nv_readfirstlane_b32 s{sWAVE}, v2")
    if Opt.code_pf:
        a("s_getpc_b64 s[96:97]\ns_bfe_u32 s48, s2, 0x10003\ns_lshl_b32 s48, s48, 15\nv_lshlrev_b32 v3, 7, v0\nv_add_u32 v3, s48, v3")
        a("v_min_u32 v3, CODE_SIZE, v3\nglobal_load_dword a255, v3, s[96:97]")
    a(f"s_bfe_u32 s{sBR}, s2, 0x10002\ns_lshr_b32 s{sB1}, s2, 5\ns_and_b32 s{sH0}, s2, 3\ns_lshl_b32 s{sH0}, s{sH0}, 3")
    a(f"s_bfe_u32 s{sT0}, s2, 0x20003\ns_lshl_b32 s{sT0}, s{sT0}, 1\ns_add_u32 s{sH0}, s{sH0}, s{sT0}")
    a("v_and_b32 v30, 15, v1\nv_lshrrev_b32 v31, 4, v1")
    a("v_and_b32 v33, 7, v1\nv_xor_b32 v33, v33, v31\nv_lshrrev_b32 v34, 3, v1")
    for jj in range(4):
        a(f"v_xor_b32 v32, {4*(jj%2)}, v33\nv_lshlrev_b32 v32, 4, v32\nv_lshl_add_u32 v32, v34, 10, v32\nv_add_u32 v{VXD+jj}, {jj*8192 - jj*1024}, v32")
    a("v_lshrrev_b32 v2, 1, v30\nv_xor_b32 v2, v2, v31\nv_and_b32 v3, 1, v30\nv_lshlrev_b32 v3, 4, v3")
    for j in range(4):
        a(f"v_xor_b32 v32, {(j>>1)<<2}, v2\nv_lshl_add_u32 v32, v32, 5, v3\nv_lshl_add_u32 v32, v31, 13, v32\nv_add_u32 v{VDA+j}, {j*32768 - j*1024}, v32\nv_mov_b32 v{VDB+j}, v{VDA+j}")
    a(f"s_mul_i32 s{sM0X}, s{sWAVE}, 10240\ns_add_u32 s{sM0X}, s{sM0X}, {XB}\ns_mul_i32 s{sXOFF}, s{sWAVE}, {80*1024}")
    a(f"s_mov_b32 s{sDOFF}, 0\ns_movk_i32 s{sINC0}, 256\ns_mov_b32 s{sINC1}, {524288-256}")
    a(f"s_mov_b32 s{sG1}, 0x20000\ns_mov_b32 s{sG2}, 0x40000\ns_mov_b32 s{sG3}, 0x60000")
    a(f"s_mov_b32 s10, 311296\ns_mov_b32 s11, 0x20000\ns_mov_b32 s15, 0x20000\ns_mov_b32 s19, 0x20000")
    a(f"s_mul_i32 s{sT0}, s{sB1}, 311296\ns_lshl_b32 s{sT1}, s{sH0}, 8\ns_sub_u32 s14, 0x400000, s{sT1}\ns_mov_b32 s18, s14")
    a(f"s_waitcnt lgkmcnt(0)\ns_cmp_eq_u32 s{sBR}, 1")
    for r in range(8): a(f"s_cselect_b32 s{84+r}, s{40+r}, s{84+r}")
    for l in dstamp(1): a(l)
    a(f"s_cselect_b32 s{sWO}, s94, s92\ns_cselect_b32 s{sWO+1}, s95, s93")
    a(f"s_add_u32 s8, s84, s{sT0}\ns_addc_u32 s9, s85, 0")
    a(f"s_add_u32 s12, s90, s{sT1}\ns_addc_u32 s13, s91, 0\ns_mov_b32 s16, s12\ns_mov_b32 s17, s13")
    if Opt.stamps: stamp_start(a, 40)
    for l in fix_hazards(first_loads()): a(l)
    a(f"s_cmp_eq_u32 s{sWAVE}, 3\ns_cbranch_scc1 L_x8")
    for l in flat(x_dma(5, 0, 0, [8, 9]))[:-1]: a(l)
    a.label("L_x8")
    a(f"s_add_u32 s{sXOFF}, s{sXOFF}, 128")
    for l in dstamp(2): a(l)
    sh = [f"v_accvgpr_write_b32 a{A_Z+r}, 0" for r in range(4)]
    zs = [f"{MF32} a[{16*k}:{16*k+15}], {aq(A_Z)}, {aq(A_Z)}, 0" for k in range(6)]
    zs += [f"{MF32} v[{r}:{r+15}], {aq(A_Z)}, {aq(A_Z)}, 0" for r in range(240, 47, -16)]
    ls = late_setup() + late_setup_s()
    for k, l in enumerate(ls):
        sh.append(l)
        if k % 4 == 3 and zs: sh.append(zs.pop(0))
    sh += zs + [f"{MF32} v[32:47], {aq(A_Z)}, {aq(A_Z)}, 0"]
    for l in fix_hazards(sh): a(l)
    a(f"s_mov_b32 s{sRAW}, 0x80000\ns_mov_b32 s{sDOFF}, 0x80000\ns_mov_b32 s{sMH}, -1\ns_mov_b32 s{sML}, 0")
    if Opt.rot == 1: a(f"s_lshr_b32 s{sROT}, s2, 5\ns_xor_b32 s{sROT}, s{sROT}, s2\ns_and_b32 s{sROT}, s{sROT}, 31\ns_lshl_b32 s{sROT}, s{sROT}, 13")
    elif Opt.rot == 2: a(f"s_lshr_b32 s{sROT}, s2, 3\ns_and_b32 s{sROT}, s{sROT}, 31\ns_lshl_b32 s{sROT}, s{sROT}, 13")
    else: a(f"s_mov_b32 s{sROT}, 0")
    a(f"s_cmp_eq_u32 s{sWAVE}, 3\ns_cbranch_scc1 L_var4")
    variant(a, 5, "5")
    a.label("L_var4")
    variant(a, 4, "4")
    oproj(a)
    a.label("L_fin")
    if Opt.stamps:
        a("s_waitcnt vmcnt(0)\ns_barrier")
        pstamp(a, 14)
        stamp_end(a, 40, sWS, 32, 0, 2, 48)
        pdump(a, sWS, 15, 2)
    a.label("L_end")
    a("s_endpgm")
    return a.text()

HDR = open("cdna_kernels/" + NAME + ".s.ref").read().split("; Override launch")[0]

def build(fname):
    k = NAME + "_kernel"
    txt = HDR + f"; @launch grid=(256,1,1) block=(256,1,1) lds={LDS1}\n" + '.amdgcn_target "amdgcn-amd-amdhsa--gfx950"\n.text\n'
    txt += kernel_open(k)
    post = f"L_code_end:\n.set CODE_SIZE, L_code_end - {k} - 256\n"
    body = kernel().rstrip("\n").split("\n")
    if Opt.al:
        body, nn, ne = align.align(txt, body, post)
        print("align: nops", nn, "e64", ne)
    txt += "\n".join(body) + "\n" + post
    txt += '.section .rodata,"a"\n' + kernel_desc(k, 512, 256)
    open(fname, "w").write(txt)

if __name__ == "__main__":
    out = sys.argv[1] if len(sys.argv) > 1 else "cdna_kernels/" + NAME + ".s"
    for kv in sys.argv[2:]:
        k, v = kv.split("=")
        cur = getattr(Opt, k)
        if isinstance(cur, bool): v = v == "1"
        elif isinstance(cur, int): v = int(v)
        else: v = (" " + v.replace("+", " ")) if v else ""
        setattr(Opt, k, v)
    build(out)
```

```python
import sys, math, struct, re
sys.path.insert(0, "tools")
from asmlib import *
from sched import *
import hazard, waits, align

def f2u(x): return struct.unpack("<I", struct.pack("<f", x))[0]
SCALE = math.log2(math.e) / math.sqrt(128.0)

class Opt:
    stamps = False
    clk = False
    nt_kv = " nt"
    nt_x = " nt"
    st_o = " sc1"
    ld_o = " sc1"
    st_out = ""
    ld_wo = " sc1"
    delay = 4
    ldscost = 8
    wo_pf = True
    sig_it = 1
    st_spread = False
    poll_ks = 9
    dbgout = False
    noadv = 0
    nomf = False
    bpos = 3
    sig_st = 1
    bal = True
    dbg_start = False
    al = True
    rot = 1
    summ = 0
    dotcost = 4
    nost2 = False
    code_pf = True
    wo_when = 2
    ring8 = False
    w3nost = False
    wswap = False
    nost = False
    st_per = 2
    drop = ""
    thr = 32

def vq(b): return f"v[{b}:{b+3}]"
def aq(b): return f"a[{b}:{b+3}]"
MF = "v_mfma_f32_16x16x32_bf16"
MF32 = "v_mfma_f32_32x32x16_bf16"

def dstamp(k):
    return [f"s_memrealtime s[{72+2*k}:{73+2*k}]"] if Opt.dbg_start else []
def pstamp(a, k):
    if Opt.dbg_start and 1 <= k <= 5: return
    if Opt.stamps: a(f"{'s_memtime' if Opt.clk else 's_memrealtime'} s[{72+2*k}:{73+2*k}]")
def pdump(a, ws, n, rec):
    if not Opt.stamps: return
    a("s_waitcnt lgkmcnt(0)")
    for k in range(16): a(f"v_mov_b32 v{32+k}, s{72+2*min(k, n-1)}")
    a(f"s_lshl_b32 s48, s{rec}, 6\ns_add_u32 s48, s48, {STAMP_OFF + 65536}\nv_mov_b32 v48, s48")
    a("v_cmp_eq_u32 vcc, 0, v0\ns_and_saveexec_b64 s[46:47], vcc")
    a(f"s_cbranch_execz L_pd")
    for k in range(4): a(f"global_store_dwordx4 v48, v[{32+4*k}:{35+4*k}], s[{ws}:{ws+1}] offset:{16*k}")
    a("s_waitcnt vmcnt(0)")
    a.label("L_pd")
    a("s_mov_b64 exec, s[46:47]")

def fix_hazards(lines, prefix=()):
    out = list(prefix)
    npre = len(out)
    for l in lines:
        while True:
            win = out[-26:] + [l]
            new = hazard.check(win)[len(hazard.check(win[:-1])):]
            if not new: break
            need = max(int(m.group(1)) - int(m.group(2)) for m in (re.search(r"need (\d+) have (\d+)", e) for e in new))
            out.append(f"s_nop {need-1}")
        out.append(l)
    return out[npre:]

def flat(items):
    r = []
    for (t, c) in items: r += t.split("\n")
    return r

def spread(fl, items, lo, hi, prio):
    prev = None
    n = len(items)
    for k, (txt, cost) in enumerate(items):
        p = lo + (k * (hi - lo + 1)) // n
        nx = max(p, lo + ((k + 1) * (hi - lo + 1)) // n - 1)
        f = F(txt, cost, p, nx, deps=[prev] if prev else [], prio=prio + k, depgap=1 if (hi - lo + 1) >= n else 0)
        fl.append(f); prev = f

VKA, VVA, VDA, VDB, VXD, VXA = 4, 8, 16, 20, 24, 28
VPK, VPV = 240, 244
VOD, VWD = 24, 25
S0, P0, NM0, QLO, QTOP = 32, 56, 76, 96, 176
VL = 25
sONE = 55
A_O, A_K, A_V, A_L, A_ONES, A_Z = 0, 160, 192, 224, 244, 248
A_X, A_W = 96, 176
XB, XBUF = 65536, 40960
SLOT2 = 53248
FLAG = XB + 2 * XBUF
LDS1 = FLAG + 64
sWAVE = 3
sDOFF, sINC0, sINC1, sXOFF, sM0X, sCNT, sHEAD, sREDO, sLAST, sSIG = 30, 31, 32, 33, 34, 35, 36, 37, 26, 27
sSC = 38
sT0, sT1, sOOFF, sTHR = 48, 49, 50, 51
sG1, sG2, sG3 = 52, 53, 54
sDBG = 56
sOUT = 58
sWS = 60
sBR, sB1, sH0, sB2, sQG, sN4 = 62, 63, 64, 65, 66, 67
sWO = 68
sHO, sM2 = 70, 71
sRAW, sROT, sMH, sML = 0, 1, 44, 45
sHALF = 55

def O(i, dt): return aq(A_O + (i * 8 + dt) * 4)
def Q(i, s, base=QTOP): return vq(base + (i * 4 + s) * 4)
def Sreg(i, t): return S0 + (i % 3) * 8 + t * 4

def acc_loc(eta, i, s):
    fi = i * 4 + s
    if eta == 0: return ("v", 32 + 8 * (8 + fi))
    if fi >= 12: return ("v", 32 + 8 * (fi - 12))
    return ("a", 8 * fi)
def acc(eta, i, nt):
    f, b = acc_loc(eta, i, nt // 2)
    b += (nt % 2) * 4
    return f"{f}[{b}:{b+3}]"

def ring_dma(slot, inc, tag=0):
    res = []
    for g in range(4):
        srd = "s[12:15]" if g < 2 else "s[16:19]"
        vb = VDA if g < 2 else VDB
        for j in range(4):
            t = ""; c = 4
            so = f"s{sDOFF}" if g == 0 else f"s{sT1}"
            if j == 0:
                t = f"s_mov_b32 m0, {slot*16384 + g*4096}\n"
                t += f"s_add_u32 s{sT1}, s{sDOFF}, s{sG1 + g - 1}\n" if g else "s_nop 0\n"
                c = 8
            t += f"buffer_load_dwordx4 v{vb+j}, {srd}, {so} offen offset:{j*1024}{Opt.nt_kv} lds ; tag=R:{tag}"
            if g == 3 and j == 3:
                t += f"\ns_add_u32 s{sRAW}, s{sRAW}, {inc}"; c = 8
            res.append((t, c))
    res.append(("\n".join(doff_update()), 8))
    return res

def doff_update():
    return [f"s_add_u32 s{sT1}, s{sRAW}, s{sROT}", f"s_and_b32 s{sT1}, s{sT1}, s{sML}", f"s_and_b32 s{sDOFF}, s{sRAW}, s{sMH}", f"s_or_b32 s{sDOFF}, s{sDOFF}, s{sT1}"]

def kv_dma(w3, slot, half=None):
    nt = Opt.nt_kv
    def m0(off):
        return f"s_add_u32 m0, s{sHALF}, {off + slot*16384 + (half or 0)*65536}"
    if not w3:
        res = [(m0(0), 4)]
        for j in range(3):
            t = f"buffer_load_dwordx4 v{VDA+j}, s[16:19], s{sDOFF} offen offset:{j*1024}{nt} lds"
            if j == 2: t += f"\ns_add_u32 s{sDOFF}, s{sDOFF}, 0x2000"
            res.append((t, 8 if j == 2 else 4))
        return res
    res = [(m0(6144), 4)]
    for j in range(2): res.append((f"buffer_load_dwordx4 v{VDA+j}, s[12:15], s{sDOFF} offen offset:{j*1024}{nt} lds", 4))
    res.append((m0(8192 + 3072), 4))
    for j in range(4): res.append((f"buffer_load_dwordx4 v{VDB+j%2}, s[16:19], s{sDOFF} offen offset:{j*1024}{nt} lds", 4))
    res.append((m0(8192 + 7168), 4))
    res.append((f"buffer_load_dwordx4 v{VDB+2}, s[16:19], s{sDOFF} offen{nt} lds\ns_add_u32 s{sDOFF}, s{sDOFF}, 0x2000", 8))
    return res

def kv_setup(w3):
    L = []
    def kpat(dst, p, add):
        return ["v_xor_b32 v1, v30, v31", f"v_xor_b32 v1, {4*(p%4)}, v1", "v_lshlrev_b32 v1, 4, v1", "v_lshl_add_u32 v1, v31, 8, v1", f"v_add_u32 v{dst}, {add}, v1"]
    def vpat(dst, p, add):
        return ["v_lshrrev_b32 v1, 1, v30", "v_xor_b32 v1, v1, v31", f"v_xor_b32 v1, {4*(p%2)}, v1", "v_lshlrev_b32 v1, 5, v1", "v_and_b32 v2, 1, v30",
                "v_lshl_add_u32 v1, v2, 4, v1", "v_lshl_add_u32 v1, v31, 8, v1", f"v_add_u32 v{dst}, {add}, v1"]
    if w3:
        L += kpat(VDA, 6, 6144) + kpat(VDA + 1, 7, 6144) + vpat(VDB, 3, 3072) + vpat(VDB + 1, 4, 3072) + vpat(VDB + 2, 7, 7168)
        L += [f"s_mov_b32 s{sHALF}, 0"]
        return {3: L}
    r = {}
    r[0] = sum((kpat(VDA + j, j, 0) for j in range(3)), []) + ["s_mov_b32 s16, s24", "s_mov_b32 s17, s25", f"s_mov_b32 s{sHALF}, 0"]
    r[1] = sum((kpat(VDA + j, 3 + j, 3072) for j in range(3)), []) + ["s_mov_b32 s16, s24", "s_mov_b32 s17, s25", f"s_movk_i32 s{sHALF}, 3072"]
    r[2] = sum((vpat(VDA + j, j, 0) for j in range(3)), []) + [f"s_movk_i32 s{sHALF}, 8192"]
    return r

def x_dma(nq, buf, tag, js=None):
    res = []
    js = list(range(2 * nq)) if js is None else js
    for j in js:
        G, jj = j // 4, j % 4
        t = ""; c = 4
        if jj == 0 or j == js[0]:
            t = f"s_add_u32 m0, s{sM0X}, {buf*XBUF + G*4096}\ns_add_u32 s{sT0}, s{sXOFF}, {G*32768}\n"; c = 8
        t += f"buffer_load_dwordx4 v{VXD+jj}, s[8:11], s{sT0} offen offset:{jj*1024}{Opt.nt_x} lds ; tag=X:{tag}"
        if j == 2 * nq - 1:
            t += f"\ns_add_u32 s{sXOFF}, s{sXOFF}, 128"; c = 8
        res.append((t, c))
    return res

def w_reads(slot, nt):
    st = nt % 4
    r = []
    for kk in range(2):
        for h in range(2):
            b = A_W + st * 8 + kk * 4 + h * 2
            r.append(f"ds_read_b64_tr_b16 a[{b}:{b+1}], v{VVA + (nt if Opt.wswap else nt//2)} offset:{slot*16384 + kk*8192 + h*1024 + (0 if Opt.wswap else (nt%2)*8)}")
    return r
def x_reads(nq, xset, buf):
    r = []
    for i in range(nq):
        for kk in range(2):
            b = A_X + xset * 40 + (i * 2 + kk) * 4
            r.append(f"ds_read_b128 a[{b}:{b+3}], v{VXA+kk} offset:{buf*XBUF + i*2048}")
    return r
def k_reads(slot):
    r = []
    for t in range(2):
        for s in range(4):
            b = A_K + (t * 4 + s) * 4
            r.append(f"ds_read_b128 a[{b}:{b+3}], v{VKA+s} offset:{slot*16384 + t*4096}")
    return r

def qproj_unit(nq, u):
    slot, eta, xset = u % 4, u % 2, (u // 2) % 2
    G = 2 * nq
    mf = []
    for nt in range(8):
        for i in range(nq):
            for kk in range(2):
                c = acc(eta, i, nt)
                mf.append(f"{MF} {c}, {aq(A_W + (nt%4)*8 + kk*4)}, {aq(A_X + xset*40 + (i*2+kk)*4)}, {c}")
    n = len(mf)
    fl = []
    for nt in range(8):
        n2 = nt + 2
        rs = w_reads(slot, n2) if n2 < 8 else w_reads((slot + 1) % 4, n2 - 8)
        for k, r in enumerate(rs):
            fl.append(F(r, 4, nt * G + 1, nt * G + 4, prio=k))
    pre = {}
    if eta == 1:
        pre[3 * G] = [f"s_waitcnt vmcnt(?X:{u//2 + 1})"]
        for k, r in enumerate(x_reads(nq, xset ^ 1, xset ^ 1)):
            fl.append(F(r, 4, 3 * G + 2, 5 * G + 3, prio=100 + k))
    items = x_dma(nq, xset, u // 2 + 2, list(range(eta * nq, eta * nq + nq)))
    if nq == 4:
        pre[6 * G] = [f"s_waitcnt vmcnt(?R:{u+1}) lgkmcnt(0)", "s_barrier"]
        items += ring_dma((slot - 1) % 4, f"s{sINC0 + (1 - eta)}", u + 3)
        spread(fl, items, 0, n - 1, 200)
    else:
        pre[6 * G] = [f"s_waitcnt lgkmcnt(0)", "s_barrier"]
        spread(fl, items, 3, 5 * G, 200)
    out, over = schedule(mf, fl, 8, pre)
    return out

def attn_step(nq, slot):
    nslot = (slot + 1) % 4
    mf = []
    for i in range(nq):
        for t in range(2):
            for s in range(4):
                d = vq(Sreg(i, t))
                c = vq(NM0 + i * 4) if s == 0 else d
                mf.append(f"{MF} {d}, {aq(A_K + (t*4+s)*4)}, {Q(i,s)}, {c}")
    nA = len(mf)
    per = {0: 9, 1: 8, 2: 8}[Opt.summ]
    for i in range(nq):
        for dt in range(8):
            t = f"{MF} {O(i,dt)}, {aq(A_V + dt*4)}, {vq(P0 + i*4)}, {O(i,dt)}"
            mf.append(t)
        if Opt.summ == 0: mf.append(f"{MF} {aq(A_L+i*4)}, {aq(A_ONES)}, {vq(P0 + i*4)}, {aq(A_L+i*4)}")
    n = len(mf)
    fl = []
    so = slot * 16384
    for dt in range(8):
        for t in range(2):
            b = A_V + dt * 4 + t * 2
            fl.append(F(f"ds_read_b64_tr_b16 a[{b}:{b+1}], v{VVA+dt} offset:{so + 8192 + t*4096}", 4, 0, 12, prio=dt))
    for i in range(nq):
        dl = nA + per * i
        for t in range(2):
            dlc = dl - 3
            if i + 3 < nq: dlc = min(dlc, 8 * (i + 3) + 4 * t - 1)
            es = []
            for r in range(4):
                v = Sreg(i, t) + r
                e = F(f"v_exp_f32 v{v}, v{v}", 8, i * 8 + t * 4 + 3 + Opt.delay, dlc - 1, prio=i * 8 + t * 4 + r)
                es.append(e); fl.append(e)
            for h in range(2):
                v = Sreg(i, t) + 2 * h
                cf = F(f"v_cvt_pk_bf16_f32 v{P0+i*4+t*2+h}, v{v}, v{v+1}", 4, 0, dlc, deps=es[2*h:2*h+2], prio=i * 8 + t * 4 + 2*h + 1)
                fl.append(cf)
                if Opt.summ == 1:
                    fl.append(F(f"v_dot2c_f32_bf16 v{VL+i}, s{sONE}, v{P0+i*4+t*2+h}", Opt.dotcost, 0, n - 1, deps=[cf], prio=2000 + (t*2+h)*10 + i))
            if Opt.summ == 2:
                pb = P0 + i * 4 + t * 2
                fl.append(F(f"v_mfma_f32_4x4x4_16b_bf16 {aq(A_L+i*4)}, a[{A_ONES}:{A_ONES+1}], v[{pb}:{pb+1}], {aq(A_L+i*4)}", 8, dl + 4 * t, min(n - 1, dl + 4 * t + 2 + (n if False else 0)), prio=2000))
    for k, r in enumerate(k_reads(nslot)):
        fl.append(F(r, Opt.ldscost if nq == 5 else 4, nA, n - 10, prio=500 + k))
    pre = {0: ["s_waitcnt lgkmcnt(0)"]}
    w3 = nq == 4
    if not Opt.ring8:
        if w3: spread(fl, ring_dma(slot, "0x2000"), nA, n - 1, 600)
        pre[nA] = [f"s_waitcnt {'vmcnt(32) ' if w3 else ''}lgkmcnt(0)", "s_barrier"]
        out, over = schedule(mf, fl, 8, pre)
        return out
    kd = kv_dma(w3, slot)
    if w3: spread(fl, kd, nA, n - 1, 600)
    else:
        fl.append(F(kd[0][0], 4, 0, nA + 8, prio=900))
        spread(fl, kd[1:], nA + 9, n - 1, 600)
    pre[nA] = [f"s_waitcnt vmcnt({42 if w3 else 18}) lgkmcnt(0)", "s_barrier"]
    if slot == 3:
        for r in range(8): fl.append(F(f"v_xor_b32 v{VVA+r}, 0x10000, v{VVA+r}", 4, nA, n - 1, prio=950))
    if slot == 2:
        for r in range(4): fl.append(F(f"v_xor_b32 v{VKA+r}, 0x10000, v{VKA+r}", 4, n - 9, n - 1, prio=950))
    out, over = schedule(mf, fl, 8, pre)
    return out

def max_finish(nq, mreg, tmp):
    L = []
    for sw in ("v_permlane32_swap_b32", "v_permlane16_swap_b32"):
        for i in range(nq): L.append(f"v_mov_b32 v{tmp+i}, v{mreg(i)}")
        for i in range(nq): L.append(f"{sw} v{mreg(i)}, v{tmp+i}")
        for i in range(nq): L.append(f"v_max_f32 v{mreg(i)}, v{mreg(i)}, v{tmp+i}")
    for i in range(nq):
        for r in range(4):
            L.append(f"v_xor_b32 v{NM0+i*4+r}, 0x80000000, v{mreg(i)}")
    return L

def zero_OL(nq):
    z = aq(A_Z)
    L = [f"{MF32} a[{A_O+16*k}:{A_O+16*k+15}], {z}, {z}, 0" for k in range(2 * nq)]
    if Opt.summ == 1:
        L[-1] += "".join(f"\nv_mov_b32 v{VL+i}, 0" for i in range(nq))
        return L
    L.append(f"{MF32} a[{A_L}:{A_L+15}], {z}, {z}, 0")
    if nq == 5: L.append(f"{MF} {aq(A_L+16)}, {z}, {z}, 0")
    return L

WOP = 2 * 8 * 19 * 131072
_Q = [("v", 176 + 4 * k) for k in range(20)] + [("a", 160 + 4 * k) for k in range(24)]
AQ = [_Q[0:8], _Q[8:16], _Q[20:28], [("v", 32 + 4 * k) for k in range(8)]]
BQ = [_Q[16:20] + _Q[28:44], [("v", 96 + 4 * k) for k in range(20)]]
def _q(t): return f"{t[0]}[{t[1]}:{t[1]+3}]"
def fa(st, nu): return _q(AQ[st][nu])
def fb(hb, st, i): return _q(BQ[hb][st * 5 + i])
VO2, VW2, VRW, VRR = 4, 9, 13, 16
sHW = sM2
def ld_a(st, nu, tag):
    so = f"s{sHW}" if st == 0 else f"s{sG1 + st - 1}"
    return f"buffer_load_dwordx4 {fa(st, nu)}, v{VW2 + nu//2}, s[4:7], {so} offen offset:{(nu%2)*1024}{Opt.ld_wo} ; tag=A{st}{nu//2}:{tag}"
def ld_b(hb, st, i, tag):
    return f"buffer_load_dwordx4 {fb(hb, st, i)}, v{VO2 + i}, s[8:11], s{sHO} offen offset:{st*1024}{Opt.ld_o} ; tag=B{st}:{tag}"
def op_wsoff():
    return [f"s_add_u32 s{sG1 + st - 1}, s{sHW}, {st*8192}" for st in range(1, 4)]
def op_setup():
    L = ["v_and_b32 v1, 63, v0", "v_lshlrev_b32 v2, 4, v1"]
    for i in range(5): L.append(f"v_add_u32 v{VO2+i}, {i*131072}, v2")
    for p in range(4):
        L += [f"s_add_u32 s{sT0}, s{sWAVE}, {p}", f"s_and_b32 s{sT0}, s{sT0}, 3", f"s_lshl_b32 s{sT1}, s{sT0}, 11", f"v_add_u32 v{VW2+p}, s{sT1}, v2"]
        if p: L += [f"s_mul_i32 s{sT0}, s{sT0}, 30720", f"s_add_u32 s{sT0}, s{sT0}, {(p-1)*10240}", f"v_add_u32 v{VRW+p-1}, s{sT0}, v2"]
    L += [f"s_mul_i32 s{sT0}, s{sWAVE}, 30720", f"v_add_u32 v{VRR}, s{sT0}, v2"]
    L += [f"s_lshl_b32 s{sHO}, s{sWAVE}, 13", f"s_lshl_b32 s{sHW}, s{sWAVE}, 16"] + op_wsoff()
    return L
def op_advance_w():
    if Opt.noadv & 1: return []
    return [f"s_add_u32 s{sHW}, s{sHW}, 0x40000", f"s_cmp_ge_u32 s{sHW}, 0x100000", f"s_cselect_b32 s{sT0}, {0x100000 - 0x8000}, 0", f"s_sub_u32 s{sHW}, s{sHW}, s{sT0}"] + op_wsoff()
def op_advance_o():
    if Opt.noadv & 2: return []
    return [f"s_add_u32 s{sHO}, s{sHO}, 0x8000", f"s_cmp_ge_u32 s{sHO}, 0x20000", f"s_cselect_b32 s{sT0}, {0x20000 - 0x1000}, 0", f"s_sub_u32 s{sHO}, s{sHO}, s{sT0}"]

def o_stores(a, tiles, off):
    for i in tiles:
        a(f"s_add_u32 s{sT1}, s{sOOFF}, {(i*131072 + off) & 0xffffffff}")
        for s in range(4):
            b = QLO + (i * 4 + s) * 4
            a(f"buffer_store_dwordx4 v[{b}:{b+3}], v{VOD}, s[20:23], s{sT1} offen offset:{s*1024}{Opt.st_o}")

FLW = WOP + 0x800000
def own_word(val):
    return [f"s_lshl_b32 s{sT0}, s{sBR}, 3", f"s_add_u32 s{sT0}, s{sT0}, s{sB1}", f"s_lshl_b32 s{sT0}, s{sT0}, 7", f"s_lshl_b32 s{sT1}, s{sH0}, 1",
            f"s_add_u32 s{sT0}, s{sT0}, s{sT1}", f"s_add_u32 s{sT0}, s{sT0}, {FLW}", f"v_mov_b32 v1, s{sT0}", f"v_mov_b32 v2, {val}", "s_mov_b64 exec, 1",
            f"global_store_dword v1, v2, s[{sWS}:{sWS+1}] sc0 sc1", "s_mov_b64 exec, -1"]
def signal(a, parity):
    if parity == 1:
        for l in own_word(16): a(l)
        return
    a(f"s_lshl_b32 s{sT0}, s{sBR}, 3\ns_add_u32 s{sT0}, s{sT0}, s{sB1}\ns_lshl_b32 s{sT0}, s{sT0}, 2")
    a(f"v_mov_b32 v1, s{sT0}\nv_mov_b32 v2, 1\ns_mov_b64 exec, 1")
    a(f"global_atomic_add v1, v2, s[{sDBG}:{sDBG+1}] sc1\ns_mov_b64 exec, -1")
def poll_issue(a, parity):
    if parity == 0:
        a(f"s_lshl_b32 s{sT0}, s{sBR}, 5\nv_and_b32 v30, 7, v0\nv_lshl_add_u32 v30, v30, 2, s{sT0}")
        if Opt.bal:
            a(f"s_and_b32 s{sT0}, s2, 7\ns_lshl_b32 s{sT0}, s{sT0}, 2\ns_add_u32 s{sT0}, s{sT0}, 136\nv_writelane_b32 v30, s{sT0}, 8")
    else:
        a(f"s_lshl_b32 s{sT0}, s{sBR}, 3\ns_add_u32 s{sT0}, s{sT0}, s{sB2}\ns_lshl_b32 s{sT0}, s{sT0}, 7\ns_add_u32 s{sT0}, s{sT0}, {FLW}")
        a(f"v_and_b32 v30, 15, v0\nv_lshl_add_u32 v30, v30, 2, s{sT0}")
    b = sWS if parity else sDBG
    a(f"global_load_dword v31, v30, s[{b}:{b+1}] sc0 sc1")
def poll_wait(a, parity, lbl, first_wait="vmcnt(0)"):
    b = sWS if parity else sDBG
    a(f"s_mov_b32 s{sT1}, 0x20000\ns_waitcnt {first_wait}")
    a.label(lbl)
    a(f"v_cmp_gt_u32 vcc, 16, v31\ns_sub_u32 s{sT1}, s{sT1}, 1\ns_cmp_eq_u32 s{sT1}, 0\ns_cbranch_scc1 {lbl}_ok")
    a(f"s_nop 2\ns_cbranch_vccz {lbl}_ok")
    a(f"global_load_dword v31, v30, s[{b}:{b+1}] sc0 sc1\ns_sleep 4\ns_waitcnt vmcnt(0)\ns_branch {lbl}")
    a.label(lbl + "_ok")

def op_tile():
    L = []
    if Opt.bal:
        L += [f"v_readfirstlane_b32 s{sT0}, v2", f"s_lshr_b32 s{sT1}, s2, 5", "s_nop 2", f"s_and_b32 s{sT0}, s{sT0}, 3", f"s_lshl_b32 s{sQG}, s{sT0}, 3",
              f"s_add_u32 s{sQG}, s{sQG}, s{sT1}", f"s_mul_i32 s{sB2}, s{sQG}, 43", f"s_lshr_b32 s{sB2}, s{sB2}, 7", f"s_mul_i32 s10, s{sB2}, 3",
              f"s_sub_u32 s{sQG}, s{sQG}, s10", f"s_cmp_eq_u32 s{sT0}, 3", f"s_cselect_b32 s{sB2}, s{sT1}, s{sB2}", f"s_cselect_b32 s{sQG}, 3, s{sQG}"]
    L += [f"s_lshl_b32 s{sT0}, s{sBR}, 3", f"s_add_u32 s{sT0}, s{sT0}, s{sB2}", f"s_mul_i32 s{sT0}, s{sT0}, 19", f"s_mul_i32 s{sT1}, s{sQG}, 5",
          f"s_add_u32 s{sT0}, s{sT0}, s{sT1}", f"s_lshl_b32 s{sT0}, s{sT0}, 17", f"s_add_u32 s8, s{sWS}, s{sT0}", f"s_addc_u32 s9, s{sWS+1}, 0",
          f"s_sub_u32 s10, 19, s{sT1}", "s_lshl_b32 s10, s10, 17"]
    return L

def op_preload():
    L = op_tile() + op_setup()
    for st in range(4):
        L += [ld_b(0, st, i, 0) for i in range(5)]
        if st < 3: L += [ld_a(st, nu, 0) for nu in range(8)]
    return L

def oproj(a):
    a.label("L_op")
    pstamp(a, 9)
    pro = [ld_a(3, nu, 0) for nu in range(8)]
    pro += ["v_mov_b64 v[64:65], 0", "v_mov_b64 v[66:67], 0"] + op_advance_w() + op_advance_o() + [f"s_mov_b32 s{sCNT}, 8"]
    pro += [f"{MF32} a[{16*k}:{16*k+15}], v[64:67], v[64:67], 0" for k in range(10)]
    def kstep_mf(hb, st):
        return [f"{MF} {aq((i*8+nu)*4)}, {fa(st, nu)}, {fb(hb, st, i)}, {aq((i*8+nu)*4)}" for nu in range(8) for i in range(5)]
    def kstep_waits(st, tag):
        pre = {10 * p: [f"s_waitcnt vmcnt(?A{st}{p}:{tag})"] for p in range(4)}
        pre[0] = [f"s_waitcnt vmcnt(?B{st}:{tag})"] + pre[0]
        return pre
    halves = []
    for hb in range(2):
        body = []
        for st in range(4):
            fl = []
            for i in range(5): fl.append(F(ld_b(hb ^ 1, st, i, hb + 1), 4, Opt.bpos * i + 2, Opt.bpos * i + 4, prio=i))
            for nu in range(8): fl.append(F(ld_a(st, nu, hb + 1), 4, min(39, 5 * nu + 5), min(39, 5 * nu + 8), prio=100 + nu))
            out, over = schedule(kstep_mf(hb, st), fl, 4, kstep_waits(st, hb))
            body += [f"@HOOK{hb}{st}@:"] + out
        body += op_advance_w() + op_advance_o() + [f"s_sub_u32 s{sCNT}, s{sCNT}, 1"]
        halves.append(body)
    mf = kstep_mf(1, 0)
    fl = []
    RQ = [176 + 4 * k for k in range(8)] + [240 + 4 * k for k in range(4)] + [96, 100] + [104, 108, 112] + [208 + 4 * k for k in range(8)] + [116 + 4 * k for k in range(5)]
    AC = 56
    for p in (1, 2, 3, 0):
        for i in range(5):
            for e in range(2):
                nu = 2 * p + e
                b = (i * 8 + nu) * 4
                for st in (1, 2, 3): mf.append(f"{MF} {aq(b)}, {fa(st, nu)}, {fb(1, st, i)}, {aq(b)}")
                g = len(mf) - 1
                if p: fl.append(F(f"ds_write_b128 v{VRW+p-1}, a[{b}:{b+3}] offset:{(i*2+e)*1024}", 8, g + 6, g + 8))
                elif g + 6 < 159:
                    for r in range(4): fl.append(F(f"v_accvgpr_read_b32 v{AC+(i*2+e)*4+r}, a{b+r}", 4, g + 5, 159, prio=50))
    misc = ["v_and_b32 v1, 63, v0", "v_and_b32 v3, 15, v1", "v_lshrrev_b32 v1, 4, v1",
            f"s_mul_i32 s{sT0}, s{sB2}, 304", f"s_mul_i32 s{sT1}, s{sQG}, 80", f"s_add_u32 s{sT0}, s{sT0}, s{sT1}",
            f"s_lshl_b32 s{sT0}, s{sT0}, 11", f"s_lshl_b32 s{sT1}, s{sBR}, 10", f"s_add_u32 s{sT0}, s{sT0}, s{sT1}", f"s_lshl_b32 s{sT1}, s{sN4}, 8",
            f"s_add_u32 s{sT0}, s{sT0}, s{sT1}", f"s_lshl_b32 s{sT1}, s{sWAVE}, 6", f"s_add_u32 s{sT0}, s{sT0}, s{sT1}",
            "v_lshlrev_b32 v2, 11, v3", "v_lshl_add_u32 v2, v1, 4, v2", f"v_add_u32 v2, s{sT0}, v2",
            f"s_mov_b32 s16, s{sOUT}", f"s_mov_b32 s17, s{sOUT+1}", f"s_mov_b32 s18, {8*304*1024*2}"]
    spread(fl, [(m, 4) for m in misc], 0, 38, 10)
    BG = 146
    rds = []
    for i in range(5):
        for p in range(3):
            for e in range(2):
                b = RQ[i * 6 + p * 2 + e]
                rds.append(f"ds_read_b128 v[{b}:{b+3}], v{VRR} offset:{p*10240 + (i*2+e)*1024}")
    for k, r in enumerate(rds[:14]): fl.append(F(r, 4, BG + k, BG + k, prio=k))
    tpre = kstep_waits(0, 7)
    tpre.update({40: ["s_waitcnt vmcnt(?A31:7)"], (58 if Opt.bpos == 8 else 39): ["s_waitcnt vmcnt(?B3:7)"], 70: ["s_waitcnt vmcnt(?A32:7)"], 100: ["s_waitcnt vmcnt(0)"], BG: ["s_waitcnt lgkmcnt(0)", "s_barrier"]})
    tail, over = schedule(mf, fl, 8, tpre)
    done = {l for l in tail}
    tail += rds[14:]
    for i in range(5):
        for e in range(2):
            for r in range(4):
                l = f"v_accvgpr_read_b32 v{AC+(i*2+e)*4+r}, a{(i*8+e)*4+r}"
                if l not in done: tail.append(l)
    OF = 32
    for i in range(5):
        if i != 1: tail.append(f"s_waitcnt lgkmcnt({min(14, 6 * (4 - i))})")
        for p in range(3):
            for e in range(2):
                for r in range(0, 4, 2):
                    d = AC + (i * 2 + e) * 4 + r; b = RQ[i * 6 + p * 2 + e] + r
                    tail.append(f"v_pk_add_f32 v[{d}:{d+1}], v[{d}:{d+1}], v[{b}:{b+1}]")
        b = AC + i * 8; d = OF + i * 4
        for r in range(4): tail.append(f"v_cvt_pk_bf16_f32 v{d+r}, v{b+2*r}, v{b+2*r+1}")
    for sw in ("v_permlane32_swap_b32", "v_permlane16_swap_b32"):
        for i in range(5):
            d = OF + i * 4
            tail += [f"{sw} v{d}, v{d+2}", f"{sw} v{d+1}, v{d+3}"]
    tail = waits.insert_lgkm(tail, loop=False)
    per = {f"B{st}": 2 for st in range(4)}
    per.update({f"A{st}{p}": 2 for st in range(4) for p in range(4)})
    body = halves[0] + ["@MID@:"] + halves[1]
    last = [re.sub(r"(tag=\w+|\?\w+):(\d)", lambda m: f"{m.group(1)}:{int(m.group(2)) + 6}", l) for l in halves[0]]
    _, pro, body, last, tail = waits.resolve_vm([(op_preload(), 1, {}), (pro, 1, {}), (body, 3, per), (last, 1, {}), (tail, 1, {})])
    for l1, l2 in zip(body, last):
        if "vmcnt" in l1: assert int(re.search(r"vmcnt\((\d+)", l1).group(1)) <= int(re.search(r"vmcnt\((\d+)", l2).group(1))
    for l in fix_hazards(pro): a(l)
    o_stores(a, range(4), 0)
    a(f"s_cmp_eq_u32 s{sWAVE}, 3\ns_cbranch_scc1 L_opl")
    o_stores(a, [4], 0)
    for e in hazard.check(body + body, "op")[:10]: print(e)
    a.label("L_opl")
    a("; noalign")
    for l in body:
        if Opt.nomf and l.startswith("v_mfma"): continue
        if l == "@MID@:":
            a(f"s_cmp_eq_u32 s{sCNT}, 1\ns_cbranch_scc1 L_opt"); continue
        m = re.match(r"@HOOK(\d)(\d)@:", l)
        if not m: a(l); continue
        hb, st = int(m.group(1)), int(m.group(2))
        ks = Opt.poll_ks
        if (hb, st) == ((ks // 4) % 2, ks % 4):
            a(f"s_cmp_lg_u32 s{sCNT}, {8 - ks // 4}\ns_cbranch_scc1 L_oph_pi")
            poll_issue(a, 1)
            a.label("L_oph_pi")
        if (hb, st) == (1, Opt.sig_st):
            a(f"s_cmp_lg_u32 s{sCNT}, 7\ns_cbranch_scc1 L_oph_sig")
            pstamp(a, 10)
            a(f"v_mov_b32 v1, {FLAG + 8}\nv_mov_b32 v2, 1\ns_mov_b64 exec, 1\nds_add_rtn_u32 v3, v1, v2\ns_mov_b64 exec, -1\ns_waitcnt lgkmcnt(0)")
            a(f"v_readfirstlane_b32 s{sT0}, v3\ns_nop 3\ns_cmp_lg_u32 s{sT0}, 3\ns_cbranch_scc1 L_oph_sig")
            signal(a, 1)
            a.label("L_oph_sig")
        if (hb, st) == (1, 0):
            a(f"s_cmp_lg_u32 s{sCNT}, 5\ns_cbranch_scc1 L_oph_pw")
            pstamp(a, 11)
            poll_wait(a, 1, "L_pw1", f"vmcnt({13 * (12 - ks)})")
            pstamp(a, 12)
            a.label("L_oph_pw")
    a("s_branch L_opl")
    a.label("L_opt")
    body = halves[0]
    pstamp(a, 13)
    tl = fix_hazards(tail, body[-26:])
    k = max(j for j, l in enumerate(tl) if l.startswith("v_mfma"))
    for l in tl[:k + 1]: a(l)
    a("; align")
    for l in tl[k + 1:]: a(l)
    for i in range(5):
        d = OF + i * 4
        if i == 4: a(f"s_cmp_eq_u32 s{sQG}, 3\ns_cbranch_scc1 L_fin")
        a(f"s_mov_b32 s{sT0}, {i*32768}\nbuffer_store_dwordx4 v[{d}:{d+3}], v2, s[16:19], s{sT0} offen{Opt.st_out}")

def variant(a, nq, tag):
    w3 = nq == 4
    pro = late_setup_w3() if w3 else flat(x_dma(nq, 1, 1))
    pro += dstamp(3) + ["s_waitcnt vmcnt(?X:0) lgkmcnt(0)"] + dstamp(4) + ["s_barrier"] + dstamp(5)
    pro += x_reads(nq, 0, 0) + w_reads(0, 0) + w_reads(0, 1)
    if w3: pro += flat(x_dma(nq, 1, 1)) + flat(ring_dma(2, f"s{sINC0}", 2))
    pro += [f"s_mov_b32 s{sCNT}, 4", "s_waitcnt lgkmcnt(0)"]
    body = []
    for u in range(4):
        if u == 1: body.append("@SWITCH@:")
        body += qproj_unit(nq, u)
    body = waits.insert_lgkm(body)
    _, pro, body = waits.resolve_vm([(first_loads(), 1, {}), (pro, 1, {}), (body, 4, {"R": 4, "X": 2})])
    for l in fix_hazards(pro): a(l)
    pstamp(a, 1)
    for e in hazard.check(body + body, f"q{tag}")[:10]: print(e)
    a.label(f"L_q{tag}")
    a("; noalign")
    a(f"s_cmp_eq_u32 s{sCNT}, 1\ns_cselect_b32 s10, 0, s10\ns_cselect_b32 s{sM0X}, 0x28000, s{sM0X}")
    if Opt.wo_pf and Opt.wo_when == 1 and not w3:
        a(f"s_cmp_lg_u32 s{sCNT}, 3\ns_cbranch_scc1 L_nwo{tag}")
        for l in fix_hazards(wo_touch()): a(l)
        a.label(f"L_nwo{tag}")
    for l in body:
        if l == "@SWITCH@:":
            if not w3: continue
            a(f"s_cmp_lg_u32 s{sCNT}, 1\ns_cbranch_scc1 L_qn{tag}")
            for l2 in kv_switch(): a(l2)
            for j in range(4): a(f"v_mov_b32 v{VDA+j}, v{VPK+j}\nv_mov_b32 v{VDB+j}, v{VPV+j}")
            a.label(f"L_qn{tag}")
        else: a(l)
    a(f"s_sub_u32 s{sCNT}, s{sCNT}, 1\ns_cmp_lg_u32 s{sCNT}, 0\ns_cbranch_scc1 L_q{tag}")
    a("; align")
    pstamp(a, 2)
    cv = ["s_waitcnt lgkmcnt(0)"] + k_reads(0)
    for l in fix_hazards(cv, body[-26:]): a(l)
    if not w3:
        for l in kv_switch(): a(l)
        a(f"s_movk_i32 s{sDOFF}, 0x6000")
    ks = kv_setup(w3) if Opt.ring8 else {}
    for w in sorted(ks):
        if not w3 and w < 2: a(f"s_cmp_lg_u32 s{sWAVE}, {w}\ns_cbranch_scc1 L_ks{w}")
        for l in ks[w]: a(l)
        if not w3 and w < 2:
            a("s_branch L_ksd"); a.label(f"L_ks{w}")
    if not w3 and Opt.ring8: a.label("L_ksd")
    cv = ["s_nop 1"]
    if Opt.ring8:
        for tl in range(3, 8): cv += flat(kv_dma(w3, tl % 4, tl // 4))
    elif w3: cv += flat(ring_dma(3, "0x2000")) + own_word(0)
    groups = []
    for k in range(27, -1, -1):
        fi = k - 8 if k >= 8 else k + 12
        if fi // 4 < nq: groups.append(("v", 32 + 8 * k, 144 + 4 * k))
    for fi in range(12): groups.append(("a", 8 * fi, QLO + 4 * fi))
    tsel = 0
    pend = []
    for (kind, sb, d) in groups:
        if kind == "a":
            tb = 32 + 8 * tsel; tsel = (tsel + 1) % 4
            for r in range(8): cv.append(f"v_accvgpr_read_b32 v{tb+r}, a{sb+r}")
            sb = tb
        for r in range(0, 8, 2): cv.append(f"v_pk_mul_f32 v[{sb+r}:{sb+r+1}], v[{sb+r}:{sb+r+1}], s[{sSC}:{sSC+1}]")
        cv += pend[:2]
        for r in range(3, -1, -1): cv.append(f"v_cvt_pk_bf16_f32 v{d+r}, v{sb+2*r}, v{sb+2*r+1}")
        cv += pend[2:]
        if Opt.wswap:
            pend = [f"v_permlane32_swap_b32 v{d}, v{d+2}", f"v_permlane32_swap_b32 v{d+1}, v{d+3}",
                    f"v_permlane16_swap_b32 v{d}, v{d+2}", f"v_permlane16_swap_b32 v{d+1}, v{d+3}"]
    cv += pend
    cv += ["v_and_b32 v1, 63, v0", "v_and_b32 v30, 15, v1", "v_lshrrev_b32 v31, 4, v1",
           "v_lshrrev_b32 v2, 2, v30", "v_lshl_add_u32 v2, v31, 2, v2", "v_and_b32 v3, 7, v2", "v_lshlrev_b32 v2, 8, v2",
           "v_and_b32 v32, 3, v30", "v_lshl_add_u32 v2, v32, 3, v2"]
    for dt in range(8): cv += [f"v_xor_b32 v32, {dt}, v3", f"v_lshl_add_u32 v{VVA+dt}, v32, 5, v2"]
    cv.append(f"v_lshlrev_b32 v{VOD}, 4, v1")
    cv += ["v_lshrrev_b32 v2, 1, v30", "v_xor_b32 v2, v2, v31", "v_and_b32 v3, 1, v30", "v_lshlrev_b32 v3, 4, v3"]
    for jj in range(4):
        cv += [f"v_xor_b32 v32, {4*(jj%2)}, v2", "v_lshl_add_u32 v32, v32, 5, v3", "v_lshl_add_u32 v32, v31, 10, v32", f"v_add_u32 v{VWD+jj}, {jj*3072}, v32"]
    cv.append("v_mov_b32 v1, 0x3f803f80")
    for r in range(4): cv.append(f"v_accvgpr_write_b32 a{A_ONES+r}, v1")
    cv += [
           f"s_lshl_b32 s{sT0}, s{sB1}, 4", f"s_lshr_b32 s{sT1}, s{sH0}, 1", f"s_add_u32 s{sHO}, s{sT0}, s{sT1}",
           f"s_and_b32 s{sT0}, s{sHO}, 3", f"s_lshl_b32 s{sT0}, s{sT0}, 8", f"s_add_u32 s4, s{sWO}, s{sT0}", f"s_addc_u32 s5, s{sWO+1}, 0",
           f"s_sub_u32 s6, 0x400000, s{sT0}", f"s_lshr_b32 s{sT0}, s{sHO}, 2", f"s_lshl_b32 s{sT0}, s{sT0}, 2", f"s_add_u32 s{sT0}, s{sT0}, s{sWAVE}",
           f"s_lshl_b32 s{sT0}, s{sT0}, 15", f"s_mul_i32 s{sM0X}, s{sWAVE}, 10240", f"s_add_u32 s{sM0X}, s{sM0X}, {XB}"]
    for G in range(2):
        cv += [f"s_add_u32 m0, s{sM0X}, {G*4096}", f"s_add_u32 s{sT1}, s{sT0}, {G*16384}"]
        for jj in range(4): cv.append(f"buffer_load_dwordx4 v{VWD+jj}, s[4:7], s{sT1} offen offset:{jj*1024} nt lds")
    cv.append(f"s_mov_b32 s{sONE}, 0x3f803f80")
    cv += [f"s_mov_b32 s{sHEAD}, 0", f"s_mov_b32 s{sREDO}, 0", f"s_mov_b32 s{sLAST}, 0", f"s_mov_b32 s{sSIG}, 0"]
    for l in fix_hazards(cv): a(l)
    pstamp(a, 3)
    a.label(f"L_head{tag}")
    mp = ["s_waitcnt lgkmcnt(0)", "s_nop 1"]
    for i in range(nq):
        for s in range(4):
            d = vq(S0 + 4 * i)
            mp.append(f"{MF} {d}, {aq(A_K + s*4)}, {Q(i,s)}, {d if s else 0}")
    z = zero_OL(nq)
    vv = []
    for i in range(nq):
        b = S0 + 4 * i
        vv.append(f"v_max3_f32 v{b}, v{b}, v{b+1}, v{b+2}")
    for i in range(nq):
        b = S0 + 4 * i
        vv.append(f"v_max_f32 v{b}, v{b}, v{b+3}")
    vv += max_finish(nq, lambda i: S0 + 4 * i, P0)
    per = -(-len(vv) // len(z))
    for k, zz in enumerate(z):
        mp += zz.split("\n"); mp += vv[k * per:(k + 1) * per]
    for l in fix_hazards(mp): a(l)
    a.label(f"L_main{tag}")
    pstamp(a, 6)
    a(f"s_mov_b32 s{sCNT}, 8\ns_nop 1")
    body = []
    for st in range(4): body += attn_step(nq, st)
    for d in Opt.drop.split(): body = [l for l in body if not l.startswith(d)]
    for e in hazard.check(mp[-26:] + body + body, f"a{tag}")[:10]: print(e)
    a.label(f"L_loop{tag}")
    if w3 or Opt.ring8: a(f"s_cmp_le_u32 s{sCNT}, s{sLAST}\ns_cselect_b32 s18, 0, s18")
    if w3: a("s_cselect_b32 s14, 0, s14")
    a(f"s_cmp_eq_u32 s{sSIG}, 0\ns_cbranch_scc1 L_ls{tag}")
    a(f"s_add_u32 s{sSIG}, s{sSIG}, 1")
    if Opt.bal and not w3:
        a(f"s_cmp_lg_u32 s{sSIG}, 3\ns_cbranch_scc1 L_tk{tag}\ns_lshr_b32 s{sT0}, s2, 3\ns_or_b32 s{sT0}, s{sT0}, s{sWAVE}\ns_cmp_lg_u32 s{sT0}, 0\ns_cbranch_scc1 L_tk{tag}")
        a(f"s_lshl_b32 s{sT0}, s{sBR}, 2\nv_mov_b32 v1, s{sT0}\nv_mov_b32 v2, 1\ns_mov_b64 exec, 1")
        a(f"global_atomic_add v31, v1, v2, s[{sDBG}:{sDBG+1}] offset:128 sc0 sc1\ns_mov_b64 exec, -1")
        a.label(f"L_tk{tag}")
    for k in range(3):
        tiles = list(range(k * 2, min(nq, k * 2 + 2)))
        if not tiles: continue
        a(f"s_cmp_lg_u32 s{sSIG}, {2 + k}\ns_cbranch_scc1 L_lst{tag}_{k}")
        if not (w3 and Opt.w3nost) and not Opt.nost: o_stores(a, tiles, -4096)
        a(f"s_branch L_ls{tag}")
        a.label(f"L_lst{tag}_{k}")
    if not w3:
        if not Opt.ring8:
            a(f"s_cmp_lg_u32 s{sSIG}, 5\ns_cbranch_scc1 L_l3{tag}\ns_waitcnt vmcnt(0)")
            if Opt.bal:
                a(f"s_lshr_b32 s{sT0}, s2, 3\ns_or_b32 s{sT0}, s{sT0}, s{sWAVE}\ns_cmp_lg_u32 s{sT0}, 0\ns_cbranch_scc1 L_l3{tag}")
                a(f"s_lshl_b32 s{sT0}, s2, 2\nv_mov_b32 v1, s{sT0}\nv_add_u32 v2, 16, v31\ns_mov_b64 exec, 1")
                a(f"global_store_dword v1, v2, s[{sDBG}:{sDBG+1}] offset:136 sc0 sc1\ns_mov_b64 exec, -1")
            a.label(f"L_l3{tag}")
        a(f"s_cmp_lg_u32 s{sWAVE}, 0\ns_cbranch_scc1 L_ls{tag}")
        a(f"s_cmp_lg_u32 s{sSIG}, 6\ns_cbranch_scc1 L_l6{tag}")
        signal(a, 0)
        a.label(f"L_l6{tag}")
        a(f"s_cmp_lg_u32 s{sSIG}, 8\ns_cbranch_scc1 L_l8{tag}")
        poll_issue(a, 0)
        a.label(f"L_l8{tag}")
        a(f"s_cmp_lg_u32 s{sSIG}, 9\ns_cbranch_scc1 L_ls{tag}")
        poll_wait(a, 0, "L_pw0")
        if Opt.bal:
            a(f"v_readlane_b32 s{sT0}, v31, 8\nv_mov_b32 v1, {FLAG + 12}\ns_nop 1\nv_mov_b32 v2, s{sT0}\nds_write_b32 v1, v2")
    a.label(f"L_ls{tag}")
    a("; noalign")
    for l in body: a(l)
    if Opt.ring8: a(f"s_xor_b32 s{sHALF}, s{sHALF}, 0x10000")
    a(f"s_sub_u32 s{sCNT}, s{sCNT}, 1\ns_cmp_lg_u32 s{sCNT}, 0\ns_cbranch_scc1 L_loop{tag}")
    a("; align")
    if Opt.stamps:
        a(f"s_cmp_eq_u32 s{sHEAD}, 1\ns_cbranch_scc1 L_ps{tag}")
        pstamp(a, 4)
        a.label(f"L_ps{tag}")
        pstamp(a, 7)
    ep = []
    if Opt.summ == 1:
        ep.append("s_nop 3")
        for i in range(nq): ep.append(f"v_mov_b32 v{NM0+i}, v{VL+i}")
    else:
        for i in range(nq): ep.append(f"v_accvgpr_read_b32 v{NM0+i}, a{A_L+4*i}")
    if Opt.summ:
        for sw in ("v_permlane32_swap_b32", "v_permlane16_swap_b32"):
            for i in range(nq): ep.append(f"v_mov_b32 v{S0+i}, v{NM0+i}")
            for i in range(nq): ep.append(f"{sw} v{NM0+i}, v{S0+i}")
            for i in range(nq): ep.append(f"v_add_f32 v{NM0+i}, v{NM0+i}, v{S0+i}")
    ep.append(f"v_max3_f32 v1, v{NM0}, v{NM0+1}, v{NM0+2}")
    ep.append(f"v_max3_f32 v1, v1, v{NM0+3}, v{NM0+nq-1}")
    ep.append(f"v_cmp_ngt_f32 vcc, s{sTHR}, v1")
    for i in range(nq): ep.append(f"v_rcp_f32 v{NM0+8+2*i}, v{NM0+i}")
    ep += [f"s_lshl_b32 s{sT0}, s{sHEAD}, 2", f"s_add_u32 s{sT0}, s{sT0}, {FLAG}", f"v_mov_b32 v1, s{sT0}", "v_mov_b32 v2, 1"]
    for l in fix_hazards(ep, body[-26:]): a(l)
    a(f"s_cbranch_vccz L_nof{tag}\nds_write_b32 v1, v2")
    a.label(f"L_nof{tag}")
    a(f"s_cmp_eq_u32 s{sHEAD}, 0\ns_cbranch_scc1 L_nw{tag}\ns_waitcnt vmcnt(0)")
    a.label(f"L_nw{tag}")
    a("s_waitcnt lgkmcnt(0)\ns_barrier\nds_read_b32 v3, v1")
    if Opt.bal: a(f"v_mov_b32 v1, {FLAG + 12}\nds_read_b32 v2, v1")
    def og_pre(i, s, tsel):
        tb = 32 + 8 * tsel
        g = [f"v_accvgpr_read_b32 v{tb+r}, a{A_O + (i*8+2*s)*4 + r}" for r in range(8)]
        rc = NM0 + 8 + 2 * i
        for r in range(0, 8, 2): g.append(f"v_pk_mul_f32 v[{tb+r}:{tb+r+1}], v[{tb+r}:{tb+r+1}], v[{rc}:{rc+1}] op_sel_hi:[1,0]")
        return g
    def og_post(i, s, tsel):
        tb = 32 + 8 * tsel; d = QLO + (i * 4 + s) * 4
        return [f"v_cvt_pk_bf16_f32 v{d+r}, v{tb+2*r}, v{tb+2*r+1}" for r in range(4)]
    allg = [(i, s) for i in range(nq) for s in range(4)]
    ep = []
    for k, (i, s) in enumerate(allg[:3]): ep += og_pre(i, s, k)
    ep += ["s_waitcnt lgkmcnt(0)", f"v_readfirstlane_b32 s{sT0}, v3"]
    for l in fix_hazards(ep): a(l)
    a(f"s_nop 3\ns_andn2_b32 s{sT0}, s{sT0}, s{sREDO}\ns_cmp_lg_u32 s{sT0}, 0\ns_cbranch_scc1 L_redo{tag}")
    a(f"s_cmp_eq_u32 s{sHEAD}, 1\ns_cbranch_scc1 L_pl{tag}")
    wc = [] if w3 else ["s_waitcnt vmcnt(0)"]
    for dt in range(8): wc.append(f"v_add_u32 v{64+dt}, s{sM0X}, v{VVA+dt}")
    for dt in range(8):
        for t in range(2):
            b = A_V + dt * 4 + t * 2
            wc.append(f"ds_read_b64_tr_b16 a[{b}:{b+1}], v{64+dt} offset:{t*4096}")
    for r in range(0, nq * 16, 2): wc.append(f"v_mov_b64 v[{QTOP+r}:{QTOP+r+1}], v[{QLO+r}:{QLO+r+1}]")
    wc += [f"s_lshl_b32 s{sT0}, s{sBR}, 22", f"s_add_u32 s{sT0}, s{sT0}, {WOP}", f"s_add_u32 s4, s{sWS}, s{sT0}", f"s_addc_u32 s5, s{sWS+1}, 0",
           "s_mov_b32 s6, 0x400000", f"s_and_b32 s{sT0}, s{sHO}, 3", f"s_lshl_b32 s{sT0}, s{sT0}, 20", f"s_lshr_b32 s{sT1}, s{sHO}, 2",
           f"s_lshl_b32 s{sT1}, s{sT1}, 2", f"s_add_u32 s{sT1}, s{sT1}, s{sWAVE}", f"s_lshl_b32 s{sT1}, s{sT1}, 13", f"s_add_u32 s{sT0}, s{sT0}, s{sT1}",
           f"s_add_u32 s{sT1}, s{sT0}, 4096", "s_waitcnt lgkmcnt(0)"]
    for dt in range(8):
        wc.append(f"buffer_store_dwordx4 {aq(A_V + dt*4)}, v{VOD}, s[4:7], s{sT0 if dt < 4 else sT1} offen offset:{(dt%4)*1024}{Opt.st_o}")
    wc += [f"s_lshl_b32 s{sT0}, s{sN4}, 20", f"s_add_u32 s4, s4, s{sT0}", "s_addc_u32 s5, s5, 0", "s_mov_b32 s6, 0x100000"]
    for l in fix_hazards(wc): a(l)
    a(f"s_branch L_npl{tag}")
    a.label(f"L_pl{tag}")
    for l in fix_hazards(op_preload()): a(l)
    a.label(f"L_npl{tag}")
    ep = []
    for k, (i, s) in enumerate(allg):
        if k >= 3: ep += og_pre(i, s, k % 4)
        ep += og_post(i, s, k % 4)
    for l in fix_hazards(ep): a(l)
    a(f"s_cmp_eq_u32 s{sHEAD}, 0\ns_cbranch_scc1 L_nh{tag}")
    pstamp(a, 8)
    a("s_branch L_op")
    a.label(f"L_nh{tag}")
    pstamp(a, 5)
    a(f"s_mov_b32 s{sHEAD}, 1\ns_mov_b32 s{sLAST}, {2 if Opt.ring8 else 1}\ns_mov_b32 s{sREDO}, 0\ns_mov_b32 s{sSIG}, 1\ns_add_u32 s{sOOFF}, s{sOOFF}, 4096")
    a(f"s_branch L_head{tag}")
    a.label(f"L_redo{tag}")
    a(f"s_mov_b32 s{sREDO}, 1\ns_waitcnt vmcnt(0) lgkmcnt(0)\ns_barrier")
    a(f"s_lshl_b32 s{sRAW}, s{sHEAD}, 18\ns_mov_b32 s14, 0x80000\ns_mov_b32 s18, 0x80000")
    for l in doff_update(): a(l)
    rp = []
    if Opt.ring8:
        for tl in range(8): rp += flat(kv_dma(w3, tl % 4, tl // 4))
    elif w3:
        for sl in range(4): rp += flat(ring_dma(sl, "0x2000")) + ["s_waitcnt vmcnt(16)"]
    for l in fix_hazards(rp): a(l)
    a("v_and_b32 v1, 15, v0\nv_lshlrev_b32 v1, 8, v1\nv_and_b32 v2, 48, v0\nv_add_u32 v1, v1, v2")
    a(f"s_lshl_b32 s{sT0}, s{sHEAD}, 18\ns_mov_b32 s{sCNT}, 64")
    for i in range(nq): a(f"v_mov_b32 v{NM0+i}, 0xff800000")
    a.label(f"L_rl{tag}")
    rb = []
    for s in range(4): rb.append(f"buffer_load_dwordx4 a[{A_K+4*s}:{A_K+4*s+3}], v1, s[12:15], s{sT0} offen offset:{s*64}")
    rb.append("s_waitcnt vmcnt(0)")
    for i in range(nq):
        for s in range(4):
            d = vq(S0 + 4 * i)
            rb.append(f"{MF} {d}, {aq(A_K + s*4)}, {Q(i,s)}, {d if s else 0}")
    rb.append("s_nop 7")
    for i in range(nq):
        b = S0 + 4 * i
        rb.append(f"v_max3_f32 v{NM0+i}, v{NM0+i}, v{b}, v{b+1}")
        rb.append(f"v_max3_f32 v{NM0+i}, v{NM0+i}, v{b+2}, v{b+3}")
    rb.append(f"s_add_u32 s{sT0}, s{sT0}, 0x1000")
    for l in fix_hazards(rb): a(l)
    a(f"s_sub_u32 s{sCNT}, s{sCNT}, 1\ns_cmp_lg_u32 s{sCNT}, 0\ns_cbranch_scc1 L_rl{tag}")
    rb = [f"v_mov_b32 v{S0+i}, v{NM0+i}" for i in range(nq)] + max_finish(nq, lambda i: S0 + i, P0) + "\n".join(zero_OL(nq)).split("\n")
    rb += ["s_waitcnt vmcnt(0)", "s_barrier"] + k_reads(0) + ["s_nop 7"]
    for l in fix_hazards(rb): a(l)
    a(f"s_branch L_main{tag}")

def wo_touch():
    return [f"s_lshl_b32 s{sT0}, s{sB1}, 4", f"s_lshr_b32 s{sT1}, s{sH0}, 1", f"s_add_u32 s{sT0}, s{sT0}, s{sT1}", f"s_mul_i32 s{sT0}, s{sT0}, 3",
            f"s_add_u32 s{sT0}, s{sT0}, s{sWAVE}", f"s_lshl_b32 s{sT0}, s{sT0}, 14", "v_and_b32 v1, 63, v0", "v_lshlrev_b32 v1, 7, v1",
            f"v_add_u32 v1, s{sT0}, v1", f"s_mov_b32 s4, s{sWO}", f"s_mov_b32 s5, s{sWO+1}", "s_mov_b32 s6, 0x400000", "s_mov_b32 s7, 0x20000",
            "buffer_load_dword a255, v1, s[4:7], 0 offen", "v_add_u32 v1, 0x2000, v1", "buffer_load_dword a255, v1, s[4:7], 0 offen"]

def kv_switch():
    return ["s_mov_b32 s12, s24", "s_mov_b32 s13, s25", "s_mov_b32 s14, 0x80000", "s_mov_b32 s16, s28", "s_mov_b32 s17, s29", "s_mov_b32 s18, 0x80000",
            f"s_mov_b32 s{sRAW}, 0", f"s_mov_b32 s{sDOFF}, s{sROT}", f"s_mov_b32 s{sMH}, 0xfffc0000", f"s_mov_b32 s{sML}, 0x3e000", f"s_movk_i32 s{sINC0}, 0x2000", f"s_movk_i32 s{sINC1}, 0x2000",
            f"s_movk_i32 s{sG1}, 0x1000", f"s_mov_b32 s{sG2}, 0", f"s_movk_i32 s{sG3}, 0x1000"]

def first_loads():
    L = [f"s_lshl_b32 s{sT0}, s{sWAVE}, 12", f"s_mov_b32 m0, s{sT0}", f"s_lshl_b32 s{sT1}, s{sWAVE}, 17"]
    for j in range(4): L.append(f"buffer_load_dwordx4 v{VDA+j}, s[12:15], s{sT1} offen offset:{j*1024}{Opt.nt_kv} lds ; tag=R:0")
    L += [f"s_add_u32 m0, s{sT0}, 16384", f"s_add_u32 s{sT1}, s{sT1}, 256"]
    for j in range(4): L.append(f"buffer_load_dwordx4 v{VDA+j}, s[12:15], s{sT1} offen offset:{j*1024}{Opt.nt_kv} lds ; tag=R:1")
    L += [l for l in flat(x_dma(5, 0, 0, list(range(8))))]
    return L

def late_setup_w3():
    L = ["v_xor_b32 v1, v30, v31"]
    for j in range(4):
        L += [f"v_xor_b32 v2, {4*j}, v1", "v_lshlrev_b32 v2, 4, v2", f"v_lshl_add_u32 v{VPK+j}, v31, 8, v2"]
    L += ["v_lshrrev_b32 v2, 1, v30", "v_xor_b32 v2, v2, v31", "v_and_b32 v3, 1, v30", "v_lshlrev_b32 v3, 4, v3"]
    for j in range(4):
        L += [f"v_xor_b32 v1, {4*(j%2)}, v2", "v_lshl_add_u32 v1, v1, 5, v3", f"v_lshl_add_u32 v{VPV+j}, v31, 8, v1"]
    L += [f"v_mov_b32 v1, {FLAG}", "ds_write_b64 v1, v[32:33]", "ds_write_b64 v1, v[32:33] offset:8"]
    return L

def late_setup():
    L = []
    for s in range(4):
        L += [f"v_or_b32 v2, {4*s}, v31", "v_xor_b32 v2, v2, v30", "v_lshlrev_b32 v2, 4, v2", f"v_lshl_add_u32 v{VKA+s}, v30, 8, v2"]
    L += ["v_lshrrev_b32 v2, 2, v30", "v_and_b32 v3, 1, v31", "v_lshl_add_u32 v3, v3, 2, v2", "v_bfe_u32 v32, v30, 1, 1", "v_xor_b32 v3, v3, v32",
          "v_lshl_add_u32 v2, v31, 3, v2", "v_lshlrev_b32 v2, 8, v2", "v_and_b32 v32, 1, v30", "v_lshl_add_u32 v2, v32, 4, v2"]
    for s in range(4):
        L += [f"v_xor_b32 v32, {2*s}, v3", f"v_lshl_add_u32 v{VVA+s}, v32, 5, v2"]
    if Opt.wswap:
        L += ["v_lshrrev_b32 v2, 2, v30", "v_and_b32 v3, 1, v31", "v_lshl_add_u32 v3, v3, 2, v2",
              "v_lshl_add_u32 v2, v31, 3, v2", "v_lshlrev_b32 v2, 8, v2", "v_and_b32 v32, 3, v30", "v_lshl_add_u32 v2, v32, 3, v2"]
        for nt in range(8):
            L += [f"v_xor_b32 v32, {nt}, v3", f"v_lshl_add_u32 v{VVA+nt}, v32, 5, v2"]
    L += ["v_lshrrev_b32 v33, 1, v30", "v_xor_b32 v33, v33, v31"]
    for kk in range(2):
        L += [f"v_xor_b32 v32, {4*kk}, v33", "v_lshlrev_b32 v32, 4, v32", "v_lshl_add_u32 v32, v30, 7, v32", f"v_add_u32 v{VXA+kk}, s{sM0X}, v32"]
    return L

def late_setup_s():
    L = [f"s_lshl_b32 s{sT0}, s{sB1}, 5", f"s_add_u32 s{sT0}, s{sT0}, s{sH0}", f"s_lshl_b32 s{sT0}, s{sT0}, 18",
          f"s_add_u32 s24, s86, s{sT0}", "s_addc_u32 s25, s87, 0", f"s_add_u32 s28, s88, s{sT0}", "s_addc_u32 s29, s89, 0",
          f"s_lshl_b32 s{sT0}, s{sBR}, 3", f"s_add_u32 s{sT0}, s{sT0}, s{sB1}", f"s_mul_i32 s{sT0}, s{sT0}, {19*131072}",
          f"s_add_u32 s20, s{sWS}, s{sT0}", f"s_addc_u32 s21, s{sWS+1}, 0", f"s_mov_b32 s22, {19*131072}", "s_mov_b32 s23, 0x20000",
          f"s_mul_i32 s{sOOFF}, s{sWAVE}, {5*131072}", f"s_lshl_b32 s{sT0}, s{sH0}, 12", f"s_add_u32 s{sOOFF}, s{sOOFF}, s{sT0}",
          f"s_mov_b32 s{sSC}, {f2u(SCALE):#x}", f"s_mov_b32 s{sSC+1}, {f2u(SCALE):#x}", f"s_mov_b32 s{sTHR}, {f2u(2.0**Opt.thr):#x}",
          "s_mov_b32 s7, 0x20000",
          f"s_and_b32 s{sB2}, s2, 3", f"s_lshl_b32 s{sB2}, s{sB2}, 1", f"s_lshr_b32 s{sT0}, s2, 7", f"s_add_u32 s{sB2}, s{sB2}, s{sT0}",
          f"s_bfe_u32 s{sQG}, s2, 0x20005", f"s_bfe_u32 s{sN4}, s2, 0x20003"]
    return L

def kernel():
    a = Asm()
    a("s_cmp_ge_u32 s2, 256\ns_cbranch_scc1 L_end")
    a("s_load_dwordx8 s[84:91], s[0:1], 0\ns_load_dwordx2 s[92:93], s[0:1], 32\ns_load_dwordx8 s[40:47], s[0:1], 40\ns_load_dwordx2 s[94:95], s[0:1], 72")
    a(f"s_load_dwordx2 s[{sOUT}:{sOUT+1}], s[0:1], 80\ns_load_dwordx2 s[{sDBG}:{sDBG+1}], s[0:1], 88\ns_load_dwordx2 s[{sWS}:{sWS+1}], s[0:1], 96")
    pstamp(a, 0)
    a(f"v_lshrrev_b32 v2, 6, v0\nv_and_b32 v1, 63, v0\nv_readfirstlane_b32 s{sWAVE}, v2")
    if Opt.code_pf:
        a("s_getpc_b64 s[96:97]\ns_bfe_u32 s48, s2, 0x10003\ns_lshl_b32 s48, s48, 15\nv_lshlrev_b32 v3, 7, v0\nv_add_u32 v3, s48, v3")
        a("v_min_u32 v3, CODE_SIZE, v3\nglobal_load_dword a255, v3, s[96:97]")
    a(f"s_bfe_u32 s{sBR}, s2, 0x10002\ns_lshr_b32 s{sB1}, s2, 5\ns_and_b32 s{sH0}, s2, 3\ns_lshl_b32 s{sH0}, s{sH0}, 3")
    a(f"s_bfe_u32 s{sT0}, s2, 0x20003\ns_lshl_b32 s{sT0}, s{sT0}, 1\ns_add_u32 s{sH0}, s{sH0}, s{sT0}")
    a("v_and_b32 v30, 15, v1\nv_lshrrev_b32 v31, 4, v1")
    a("v_and_b32 v33, 7, v1\nv_xor_b32 v33, v33, v31\nv_lshrrev_b32 v34, 3, v1")
    for jj in range(4):
        a(f"v_xor_b32 v32, {4*(jj%2)}, v33\nv_lshlrev_b32 v32, 4, v32\nv_lshl_add_u32 v32, v34, 10, v32\nv_add_u32 v{VXD+jj}, {jj*8192 - jj*1024}, v32")
    a("v_lshrrev_b32 v2, 1, v30\nv_xor_b32 v2, v2, v31\nv_and_b32 v3, 1, v30\nv_lshlrev_b32 v3, 4, v3")
    for j in range(4):
        a(f"v_xor_b32 v32, {(j>>1)<<2}, v2\nv_lshl_add_u32 v32, v32, 5, v3\nv_lshl_add_u32 v32, v31, 13, v32\nv_add_u32 v{VDA+j}, {j*32768 - j*1024}, v32\nv_mov_b32 v{VDB+j}, v{VDA+j}")
    a(f"s_mul_i32 s{sM0X}, s{sWAVE}, 10240\ns_add_u32 s{sM0X}, s{sM0X}, {XB}\ns_mul_i32 s{sXOFF}, s{sWAVE}, {80*1024}")
    a(f"s_mov_b32 s{sDOFF}, 0\ns_movk_i32 s{sINC0}, 256\ns_mov_b32 s{sINC1}, {524288-256}")
    a(f"s_mov_b32 s{sG1}, 0x20000\ns_mov_b32 s{sG2}, 0x40000\ns_mov_b32 s{sG3}, 0x60000")
    a(f"s_mov_b32 s10, 311296\ns_mov_b32 s11, 0x20000\ns_mov_b32 s15, 0x20000\ns_mov_b32 s19, 0x20000")
    a(f"s_mul_i32 s{sT0}, s{sB1}, 311296\ns_lshl_b32 s{sT1}, s{sH0}, 8\ns_sub_u32 s14, 0x400000, s{sT1}\ns_mov_b32 s18, s14")
    a(f"s_waitcnt lgkmcnt(0)\ns_cmp_eq_u32 s{sBR}, 1")
    for r in range(8): a(f"s_cselect_b32 s{84+r}, s{40+r}, s{84+r}")
    for l in dstamp(1): a(l)
    a(f"s_cselect_b32 s{sWO}, s94, s92\ns_cselect_b32 s{sWO+1}, s95, s93")
    a(f"s_add_u32 s8, s84, s{sT0}\ns_addc_u32 s9, s85, 0")
    a(f"s_add_u32 s12, s90, s{sT1}\ns_addc_u32 s13, s91, 0\ns_mov_b32 s16, s12\ns_mov_b32 s17, s13")
    if Opt.stamps: stamp_start(a, 40)
    for l in fix_hazards(first_loads()): a(l)
    a(f"s_cmp_eq_u32 s{sWAVE}, 3\ns_cbranch_scc1 L_x8")
    for l in flat(x_dma(5, 0, 0, [8, 9]))[:-1]: a(l)
    a.label("L_x8")
    a(f"s_add_u32 s{sXOFF}, s{sXOFF}, 128")
    for l in dstamp(2): a(l)
    sh = [f"v_accvgpr_write_b32 a{A_Z+r}, 0" for r in range(4)]
    zs = [f"{MF32} a[{16*k}:{16*k+15}], {aq(A_Z)}, {aq(A_Z)}, 0" for k in range(6)]
    zs += [f"{MF32} v[{r}:{r+15}], {aq(A_Z)}, {aq(A_Z)}, 0" for r in range(240, 47, -16)]
    ls = late_setup() + late_setup_s()
    for k, l in enumerate(ls):
        sh.append(l)
        if k % 4 == 3 and zs: sh.append(zs.pop(0))
    sh += zs + [f"{MF32} v[32:47], {aq(A_Z)}, {aq(A_Z)}, 0"]
    for l in fix_hazards(sh): a(l)
    a(f"s_mov_b32 s{sRAW}, 0x80000\ns_mov_b32 s{sDOFF}, 0x80000\ns_mov_b32 s{sMH}, -1\ns_mov_b32 s{sML}, 0")
    if Opt.rot == 1: a(f"s_lshr_b32 s{sROT}, s2, 5\ns_xor_b32 s{sROT}, s{sROT}, s2\ns_and_b32 s{sROT}, s{sROT}, 31\ns_lshl_b32 s{sROT}, s{sROT}, 13")
    elif Opt.rot == 2: a(f"s_lshr_b32 s{sROT}, s2, 3\ns_and_b32 s{sROT}, s{sROT}, 31\ns_lshl_b32 s{sROT}, s{sROT}, 13")
    else: a(f"s_mov_b32 s{sROT}, 0")
    a(f"s_cmp_eq_u32 s{sWAVE}, 3\ns_cbranch_scc1 L_var4")
    variant(a, 5, "5")
    a.label("L_var4")
    variant(a, 4, "4")
    oproj(a)
    a.label("L_fin")
    if Opt.stamps:
        a("s_waitcnt vmcnt(0)\ns_barrier")
        pstamp(a, 14)
        stamp_end(a, 40, sWS, 32, 0, 2, 48)
        pdump(a, sWS, 15, 2)
        if Opt.dbgout:
            a("s_cmp_lg_u32 s2, 100\ns_cbranch_scc1 L_end")
            for k in range(15, 0, -1): a(f"v_sub_u32 v{32+k}, v{32+k}, v32\nv_add_u32 v{32+k}, 0x186a0, v{32+k}")
            a("v_mov_b32 v32, 0x186a0\nv_mov_b32 v48, 0\nv_cmp_eq_u32 vcc, 0, v0\ns_and_saveexec_b64 s[46:47], vcc\ns_cbranch_execz L_end")
            for k in range(4): a(f"global_store_dwordx4 v48, v[{32+4*k}:{35+4*k}], s[{sDBG}:{sDBG+1}] offset:{16*k}")
    a.label("L_end")
    a("s_endpgm")
    return a.text()

HDR = open("cdna_kernels/" + NAME + ".s.ref").read().split("; Override launch")[0]

def build(fname):
    k = NAME + "_kernel"
    txt = HDR + f"; @launch grid=(256,1,1) block=(256,1,1) lds={LDS1}\n" + '.amdgcn_target "amdgcn-amd-amdhsa--gfx950"\n.text\n'
    txt += kernel_open(k)
    post = f"L_code_end:\n.set CODE_SIZE, L_code_end - {k} - 256\n"
    body = kernel().rstrip("\n").split("\n")
    if Opt.al:
        body, nn, ne = align.align(txt, body, post)
        print("align: nops", nn, "e64", ne)
    txt += "\n".join(body) + "\n" + post
    txt += '.section .rodata,"a"\n' + kernel_desc(k, 512, 256)
    open(fname, "w").write(txt)

if __name__ == "__main__":
    out = sys.argv[1] if len(sys.argv) > 1 else "cdna_kernels/" + NAME + ".s"
    for kv in sys.argv[2:]:
        k, v = kv.split("=")
        cur = getattr(Opt, k)
        if isinstance(cur, bool): v = v == "1"
        elif isinstance(cur, int): v = int(v)
        else: v = (" " + v.replace("+", " ")) if v else ""
        setattr(Opt, k, v)
    build(out)
```

```python
import sys, math, struct, re
sys.path.insert(0, "tools")
from asmlib import *
from sched import *
import hazard, waits, align

def f2u(x): return struct.unpack("<I", struct.pack("<f", x))[0]
SCALE = math.log2(math.e) / math.sqrt(128.0)

class Opt:
    stamps = False
    clk = False
    trace = False
    traceq = False
    nt_kv = " nt"
    nt_x = " nt"
    st_o = " sc1"
    ld_o = " sc1"
    ld_wo = " sc1"
    st_out = ""
    delay = 4
    ldscost = 8
    poll_ks = 9
    bpos = 3
    al = True
    rot = 1
    code_pf = True
    thr = 32
    ldgap = 7
    sm = 2
    spos = 0
    touch = 3
    wgap = 56

def vq(b): return f"v[{b}:{b+3}]"
def aq(b): return f"a[{b}:{b+3}]"
MF = "v_mfma_f32_16x16x32_bf16"
MF32 = "v_mfma_f32_32x32x16_bf16"

def pstamp(a, k):
    if Opt.stamps: a(f"{'s_memtime' if Opt.clk else 's_memrealtime'} s[{72+2*k}:{73+2*k}]")
def pdump(a, ws, n, rec):
    a("s_waitcnt lgkmcnt(0)")
    for k in range(16): a(f"v_mov_b32 v{32+k}, s{72+2*min(k, n-1)}")
    a(f"s_lshl_b32 s48, s{rec}, 6\ns_add_u32 s48, s48, {STAMP_OFF + 65536}\nv_mov_b32 v48, s48")
    a("v_cmp_eq_u32 vcc, 0, v0\ns_and_saveexec_b64 s[46:47], vcc")
    a(f"s_cbranch_execz L_pd")
    for k in range(4): a(f"global_store_dwordx4 v48, v[{32+4*k}:{35+4*k}], s[{ws}:{ws+1}] offset:{16*k}")
    a("s_waitcnt vmcnt(0)")
    a.label("L_pd")
    a("s_mov_b64 exec, s[46:47]")

def fix_hazards(lines, prefix=()):
    out = list(prefix)
    npre = len(out)
    for l in lines:
        while True:
            win = out[-26:] + [l]
            new = hazard.check(win)[len(hazard.check(win[:-1])):]
            if not new: break
            need = max(int(m.group(1)) - int(m.group(2)) for m in (re.search(r"need (\d+) have (\d+)", e) for e in new))
            out.append(f"s_nop {need-1}")
        out.append(l)
    return out[npre:]

def flat(items):
    r = []
    for (t, c) in items: r += t.split("\n")
    return r

def spread(fl, items, lo, hi, prio):
    prev = None
    n = len(items)
    for k, (txt, cost) in enumerate(items):
        p = lo + (k * (hi - lo + 1)) // n
        nx = max(p, lo + ((k + 1) * (hi - lo + 1)) // n - 1)
        f = F(txt, cost, p, nx, deps=[prev] if prev else [], prio=prio + k, depgap=1 if (hi - lo + 1) >= n else 0)
        fl.append(f); prev = f

def weave(main, extra, every, start=0):
    out = []; extra = list(extra)
    for k, l in enumerate(main):
        out.append(l)
        if k >= start and (k - start) % every == every - 1 and extra: out.append(extra.pop(0))
    return out + extra

VKA, VVA, VDA, VDB, VXD, VXA = 4, 8, 16, 20, 24, 28
VPK, VPV = 240, 244
VOD, VSR, VSW = 24, 25, 27
def VRC(nq): return [26, 28, 30, 20, 22] if nq == 5 else [26, 28, 30, 72]
VPA, VPD = 29, 31
S0, P0, NM0, QLO, QTOP = 32, 56, 76, 96, 176
A_O, A_K, A_V, A_L, A_ONES, A_Z = 0, 160, 192, 224, 244, 248
A_X, A_W = 96, 176
XB, XBUF = 65536, 40960
FLAG = XB + 2 * XBUF
LDS1 = FLAG + 64
sWAVE = 3
sDOFF, sINC0, sINC1, sXOFF, sM0X, sCNT, sHEAD, sREDO, sLAST, sEV = 30, 31, 32, 33, 34, 35, 36, 37, 26, 27
sSC = 38
sT0, sT1, sOOFF, sTHR = 48, 49, 50, 51
sG1, sG2, sG3 = 52, 53, 54
sDBG, sOUT, sWS = 56, 58, 60
sBR, sB1, sH0, sB2, sQG, sN4 = 62, 63, 64, 65, 66, 67
sWO = 68
sHO, sHW = 70, 71
sRAW, sROT, sMH, sML = 0, 1, 44, 45
sSO, sSX, sWB = 68, 69, 46
PAD = 256
TS, WN = 131072 + PAD, 0x100000 + PAD
WOP = (2 * 8 * 19 + 2) * TS
FLW = WOP + 8 * WN + PAD
def SM(): return [((0, 1, 2, 0), 3, (7, 6, 6, 0)), ((0, 5, 10, 15), 1, (5, 5, 5, 4)), ((0, 1, 2, 18), 3, (6, 6, 6, 1))][Opt.sm]
def VWR(nq): return (16, 19) if nq == 5 else (252, 253)
def VWA(nq): return 20 if nq == 5 else 248

def O(i, dt): return aq(A_O + (i * 8 + dt) * 4)
def Q(i, s, base=QTOP): return vq(base + (i * 4 + s) * 4)
def Sreg(i, t): return S0 + (i % 3) * 8 + t * 4
ZQ = aq(A_Z)

def acc_loc(eta, i, s):
    fi = i * 4 + s
    if eta == 0: return ("v", 32 + 8 * (8 + fi))
    if fi >= 12: return ("v", 32 + 8 * (fi - 12))
    return ("a", 8 * fi)
def acc(eta, i, nt):
    f, b = acc_loc(eta, i, nt // 2)
    b += (nt % 2) * 4
    return f"{f}[{b}:{b+3}]"

def doff_update():
    return [f"s_add_u32 s{sT1}, s{sRAW}, s{sROT}", f"s_and_b32 s{sT1}, s{sT1}, s{sML}", f"s_and_b32 s{sDOFF}, s{sRAW}, s{sMH}", f"s_or_b32 s{sDOFF}, s{sDOFF}, s{sT1}"]
def ring_dma(slot, inc, tag=0):
    res = []
    for g in range(4):
        srd = "s[12:15]" if g < 2 else "s[16:19]"
        vb = VDA if g < 2 else VDB
        for j in range(4):
            t = ""; c = 4
            so = f"s{sDOFF}" if g == 0 else f"s{sT1}"
            if j == 0:
                t = f"s_mov_b32 m0, {slot*16384 + g*4096}\n"
                t += f"s_add_u32 s{sT1}, s{sDOFF}, s{sG1 + g - 1}\n" if g else f"s_add_u32 s{sRAW}, s{sRAW}, {inc}\n"
                c = 8
            t += f"buffer_load_dwordx4 v{vb+j}, {srd}, {so} offen offset:{j*1024}{Opt.nt_kv} lds ; tag=R:{tag}"
            res.append((t, c))
    res.append(("\n".join(doff_update()), 8))
    return res

def x_dma(nq, buf, tag, js=None):
    res = []
    js = list(range(2 * nq)) if js is None else js
    for j in js:
        G, jj = j // 4, j % 4
        t = ""; c = 4
        if jj == 0 or j == js[0]:
            t = f"s_add_u32 m0, s{sM0X}, {buf*XBUF + G*4096}\ns_add_u32 s{sT0}, s{sXOFF}, {G*32768}\n"; c = 8
        t += f"buffer_load_dwordx4 v{VXD+jj}, s[8:11], s{sT0} offen offset:{jj*1024}{Opt.nt_x} lds ; tag=X:{tag}"
        if j == 2 * nq - 1:
            t += f"\ns_add_u32 s{sXOFF}, s{sXOFF}, 128"; c = 8
        res.append((t, c))
    return res

def wo_reads(nq):
    return [f"ds_read_b64_tr_b16 a[{A_V + f*4 + t*2}:{A_V + f*4 + t*2 + 1}], v{VWR(nq)[(f//2)%2]} offset:{(f//4)*4096 + t*2048 + (f%2)*8}" for f in range(8) for t in range(2)]
def wo_stores():
    return [f"buffer_store_dwordx4 {aq(A_V + f*4)}, v{VOD}, s[20:23], s{sHW if f < 4 else sHO} offen offset:{(f%4)*1024}{Opt.st_o}" for f in range(8)]

def w_reads(nq, slot, nt):
    r = []
    for kk in range(2):
        for h in range(2):
            b = A_W + (nt % 4) * 8 + kk * 4 + h * 2
            r.append(f"ds_read_b64_tr_b16 a[{b}:{b+1}], v{VWA(nq) + nt//2} offset:{slot*16384 + kk*8192 + h*1024 + (nt%2)*8}")
    return r
def x_reads(nq, xset, buf):
    r = []
    for i in range(nq):
        for kk in range(2):
            b = A_X + xset * 40 + (i * 2 + kk) * 4
            r.append(f"ds_read_b128 a[{b}:{b+3}], v{VXA+kk} offset:{buf*XBUF + i*2048}")
    return r
def k_reads(slot):
    r = []
    for t in range(2):
        for s in range(4):
            b = A_K + (t * 4 + s) * 4
            r.append(f"ds_read_b128 a[{b}:{b+3}], v{VKA+s} offset:{slot*16384 + t*4096}")
    return r

def qproj_unit(nq, u):
    slot, eta, xset = u % 4, u % 2, (u // 2) % 2
    G = 2 * nq
    mf = []
    for nt in range(8):
        for i in range(nq):
            for kk in range(2):
                c = acc(eta, i, nt)
                mf.append(f"{MF} {c}, {aq(A_W + (nt%4)*8 + kk*4)}, {aq(A_X + xset*40 + (i*2+kk)*4)}, {c}")
    n = len(mf)
    fl = []
    for nt in range(8):
        n2 = nt + 2
        rs = w_reads(nq, slot, n2) if n2 < 8 else w_reads(nq, (slot + 1) % 4, n2 - 8)
        for k, r in enumerate(rs):
            fl.append(F(r, 4, nt * G + 1, nt * G + 4, prio=k))
    pre = {}
    if eta == 1:
        pre[3 * G] = [f"s_waitcnt vmcnt(?X:{u//2 + 1})"]
        for k, r in enumerate(x_reads(nq, xset ^ 1, xset ^ 1)):
            fl.append(F(r, 4, 3 * G + 2, 5 * G + 3, prio=100 + k))
    items = x_dma(nq, xset, u // 2 + 2, list(range(eta * nq, eta * nq + nq)))
    if nq == 4:
        pre[6 * G] = [f"s_waitcnt vmcnt(?R:{u+1}) lgkmcnt(0)", "s_barrier"]
        items += ring_dma((slot - 1) % 4, f"s{sINC0 + (1 - eta)}", u + 3)
        spread(fl, items, 0, n - 1, 200)
    else:
        pre[6 * G] = [f"s_waitcnt lgkmcnt(0)", "s_barrier"]
        spread(fl, items, 3, 5 * G, 200)
    out, over = schedule(mf, fl, 8, pre)
    return out

def attn_step(nq, slot, store):
    nslot = (slot + 1) % 4
    w3 = nq == 4
    mf = []
    for i in range(nq):
        for t in range(2):
            for s in range(4):
                d = vq(Sreg(i, t))
                c = vq(NM0 + i * 4) if s == 0 else d
                mf.append(f"{MF} {d}, {aq(A_K + (t*4+s)*4)}, {Q(i,s)}, {c}")
    nA = len(mf)
    for i in range(nq):
        for dt in range(8):
            mf.append(f"{MF} {O(i,dt)}, {aq(A_V + dt*4)}, {vq(P0 + i*4)}, {O(i,dt)}")
        mf.append(f"{MF} {aq(A_L+i*4)}, {aq(A_ONES)}, {vq(P0 + i*4)}, {aq(A_L+i*4)}")
    n = len(mf)
    fl = []
    so = slot * 16384
    for dt in range(8):
        for t in range(2):
            b = A_V + dt * 4 + t * 2
            fl.append(F(f"ds_read_b64_tr_b16 a[{b}:{b+1}], v{VVA+dt} offset:{so + 8192 + t*4096}", 4, 0, 12, prio=dt))
    for i in range(nq):
        dl = nA + 9 * i
        for t in range(2):
            dlc = dl - 3
            if i + 3 < nq: dlc = min(dlc, 8 * (i + 3) + 4 * t - 1)
            es = []
            for r in range(4):
                v = Sreg(i, t) + r
                e = F(f"v_exp_f32 v{v}, v{v}", 8, i * 8 + t * 4 + 3 + Opt.delay, dlc - 1, prio=i * 8 + t * 4 + r)
                es.append(e); fl.append(e)
            for h in range(2):
                v = Sreg(i, t) + 2 * h
                fl.append(F(f"v_cvt_pk_bf16_f32 v{P0+i*4+t*2+h}, v{v}, v{v+1}", 4, 0, dlc, deps=es[2*h:2*h+2], prio=i * 8 + t * 4 + 2*h + 1))
    for k, r in enumerate(k_reads(nslot)):
        fl.append(F(r, Opt.ldscost if (nq == 5 and not (store and slot == 0)) else 4, nA, n - 10, prio=500 + k))
    pre = {0: ["s_waitcnt lgkmcnt(0)"]}
    if w3: spread(fl, ring_dma(slot, "0x2000"), nA, n - 1, 600)
    pre[nA] = [f"s_waitcnt {'vmcnt(32) ' if w3 else ''}lgkmcnt(0)", "s_barrier"]
    if store:
        stride = SM()[1]
        if slot == 0:
            rs = [F(f"ds_read_b128 {vq(QLO + 4*q)}, v{VSR} offset:{q*1024}", 4, nA + 2, n - 8, prio=700 + q) for q in range(4)]
            fl += rs + [F(f"v_add_u32 v{VSR}, {stride*4096}, v{VSR}", 4, 0, n - 1, deps=rs, prio=800)]
        qs = [{0: [], 1: [0, 1], 2: [2, 3], 3: []}, {0: [], 1: [0, 1], 2: [2], 3: [3]}][Opt.spos][slot]
        for k, q in enumerate(qs):
            pos = 14 + k * (n // 2)
            t = f"buffer_store_dwordx4 {vq(QLO + 4*q)}, v{VOD}, s[20:23], s{sSO} offen offset:{q*1024}{Opt.st_o}"
            fl.append(F(t + (f"\ns_add_u32 s{sSO}, s{sSO}, {stride*TS}" if q == 3 else ""), 4 + 4 * (q == 3), pos, pos + 12, prio=700 + k))
    out, over = schedule(mf, fl, 8, pre)
    return out

def maxpass_mf(nq, qbase):
    return [f"{MF} {vq(P0 + 4*i)}, {aq(A_K + s*4)}, {Q(i, s, qbase)}, {vq(P0 + 4*i) if s else 0}" for i in range(nq) for s in range(4)]
def max_finish(nq):
    L = []
    for sw in ("v_permlane32_swap_b32", "v_permlane16_swap_b32"):
        for i in range(nq): L.append(f"v_mov_b32 v{P0+4*i+1}, v{P0+4*i}")
        for i in range(nq): L.append(f"{sw} v{P0+4*i}, v{P0+4*i+1}")
        for i in range(nq): L.append(f"v_max_f32 v{P0+4*i}, v{P0+4*i}, v{P0+4*i+1}")
    for i in range(nq):
        for r in range(4): L.append(f"v_xor_b32 v{NM0+i*4+r}, 0x80000000, v{P0+4*i}")
    return L
def max_chain(nq):
    L = [f"v_max3_f32 v{P0+4*i}, v{P0+4*i}, v{P0+4*i+1}, v{P0+4*i+2}" for i in range(nq)]
    L += [f"v_max_f32 v{P0+4*i}, v{P0+4*i}, v{P0+4*i+3}" for i in range(nq)]
    return L + max_finish(nq)
def zero16(b, z=ZQ): return f"{MF32} a[{b}:{b+15}], {z}, {z}, 0"
def zero_L(nq):
    return [zero16(A_L)] + ([f"{MF} {aq(A_L+16)}, {ZQ}, {ZQ}, 0"] if nq == 5 else [])

_Q = [("v", 176 + 4 * k) for k in range(20)] + [("a", 160 + 4 * k) for k in range(24)]
AQ = [_Q[0:8], _Q[8:16], _Q[20:28], [("v", 32 + 4 * k) for k in range(8)]]
BQ = [_Q[16:20] + _Q[28:44], [("v", 96 + 4 * k) for k in range(20)]]
def _q(t): return f"{t[0]}[{t[1]}:{t[1]+3}]"
def fa(st, nu): return _q(AQ[st][nu])
def fb(hb, st, i): return _q(BQ[hb][st * 5 + i])
VO2, VW2, VRW, VRR = 4, 9, 13, 16
def ld_a(st, nu, tag):
    so = f"s{sHW}" if st == 0 else f"s{sG1 + st - 1}"
    return f"buffer_load_dwordx4 {fa(st, nu)}, v{VW2 + nu//2}, s[4:7], {so} offen offset:{(nu%2)*1024}{Opt.ld_wo} ; tag=A{st}{nu//2}:{tag}"
def ld_b(hb, st, i, tag):
    return f"buffer_load_dwordx4 {fb(hb, st, i)}, v{VO2 + i}, s[8:11], s{sHO} offen offset:{st*1024}{Opt.ld_o} ; tag=B{st}:{tag}"
def op_wsoff():
    return [f"s_add_u32 s{sG1 + st - 1}, s{sHW}, {st*8192}" for st in range(1, 4)]
def osrc(d):
    return [f"s_lshl_b32 s{sT0}, s{sBR}, 3", f"s_add_u32 s{sT0}, s{sT0}, s{sB2}", f"s_mul_i32 s{sT0}, s{sT0}, 19", f"s_mul_i32 s{sT1}, s{sQG}, 5",
            f"s_add_u32 s{sT0}, s{sT0}, s{sT1}", f"s_mul_i32 s{d}, s{sT0}, {TS}"]
def op_srd():
    return osrc(sT0) + [f"s_add_u32 s8, s{sWS}, s{sT0}", f"s_addc_u32 s9, s{sWS+1}, 0", f"s_sub_u32 s10, 19, s{sT1}", f"s_mul_i32 s10, s10, {TS}"]
def out_off():
    return [f"s_mul_i32 s{sT0}, s{sB2}, 304", f"s_mul_i32 s{sT1}, s{sQG}, 80", f"s_add_u32 s{sT0}, s{sT0}, s{sT1}", f"s_lshl_b32 s{sT0}, s{sT0}, 11"]
def touches():
    L = ["v_mov_b32 v1, 0", f"v_mov_b32 v2, s{sHW}", "global_load_dword a254, v1, s[24:25]", "global_load_dword a254, v1, s[28:29]",
         f"buffer_load_dword a254, off, s[4:7], s{sHO}"]
    for k in range(3): L += [f"s_add_u32 s{sT0}, s{sOOFF}, {4*k*TS}", f"v_writelane_b32 v2, s{sT0}, {1+k}"]
    L += [f"s_mov_b32 s{sT0}, {FLW + 4096}", f"v_writelane_b32 v2, s{sT0}, 4"]
    L += osrc(sT0) + [f"v_writelane_b32 v2, s{sT0}, 5", f"s_add_u32 s{sT0}, s{sT0}, {5*TS}", f"v_writelane_b32 v2, s{sT0}, 6",
                      f"s_sub_u32 s{sT0}, s{sWB}, {PAD}", f"v_writelane_b32 v2, s{sT0}, 7", f"s_add_u32 s{sT0}, s{sT0}, {WN}", f"v_writelane_b32 v2, s{sT0}, 8",
                      f"global_load_dword a254, v2, s[{sWS}:{sWS+1}]"]
    L += out_off() + [f"v_mov_b32 v3, s{sT0}", f"s_add_u32 s{sT0}, s{sT0}, {63*2048}", f"v_writelane_b32 v3, s{sT0}, 1",
                      f"global_load_dword a254, v3, s[{sOUT}:{sOUT+1}]", f"global_load_dword a254, v1, s[{sDBG}:{sDBG+1}] offset:128 sc0 sc1"]
    return L
def op_setup():
    L = []
    for i in range(5): L.append(f"v_add_u32 v{VO2+i}, {i*TS + PAD}, v{VOD}")
    for p in range(4):
        L += [f"s_add_u32 s{sT0}, s{sWAVE}, {p}", f"s_and_b32 s{sT0}, s{sT0}, 3", f"s_lshl_b32 s{sT0}, s{sT0}, 11", f"v_add_u32 v{VW2+p}, s{sT0}, v{VOD}"]
    L += [f"s_lshl_b32 s{sHO}, s{sWAVE}, 13", f"s_lshl_b32 s{sHW}, s{sWAVE}, 16"] + op_wsoff()
    return L
def op_loads0():
    L = []
    for st in range(4):
        L += [ld_b(0, st, i, 0) for i in range(5)]
        if st < 3: L += [ld_a(st, nu, 0) for nu in range(8)]
    return L
def op_advance():
    return [f"s_add_u32 s{sHW}, s{sHW}, 0x40000", f"s_cmp_ge_u32 s{sHW}, 0x100000", f"s_cselect_b32 s{sT0}, {0x100000 - 0x8000}, 0",
            f"s_sub_u32 s{sHW}, s{sHW}, s{sT0}", f"s_lshr_b32 s{sHO}, s{sHW}, 3"] + op_wsoff()

def own_word(kind):
    L = [f"s_lshl_b32 s{sT0}, s{sBR}, 3", f"s_add_u32 s{sT0}, s{sT0}, s{sB1}", f"s_lshl_b32 s{sT0}, s{sT0}, 7", f"s_lshl_b32 s{sT1}, s{sH0}, 1",
         f"s_add_u32 s{sT0}, s{sT0}, s{sT1}", f"s_add_u32 s{sT0}, s{sT0}, {FLW + (64 if kind == 2 else 0)}"]
    L += [f"v_lshl_add_u32 v1, v{VOD}, 2, s{sT0}", f"v_mov_b32 v2, {16 if kind else 0}", f"s_mov_b64 exec, {1 if kind else 3}"]
    return L + [f"global_store_dword v1, v2, s[{sWS}:{sWS+1}] sc0 sc1", "s_mov_b64 exec, -1"]
def signal(a, kind):
    if kind:
        for l in own_word(kind): a(l)
        return
    a(f"s_lshl_b32 s{sT0}, s{sBR}, 3\ns_add_u32 s{sT0}, s{sT0}, s{sB1}\ns_lshl_b32 s{sT0}, s{sT0}, 2")
    a(f"v_mov_b32 v1, s{sT0}\nv_mov_b32 v2, 1\ns_mov_b64 exec, 1")
    a(f"global_atomic_add v1, v2, s[{sDBG}:{sDBG+1}] sc1\ns_mov_b64 exec, -1")
def poll_issue(a, kind):
    if kind == 0:
        a(f"s_lshl_b32 s{sT0}, s{sBR}, 5\nv_and_b32 v{VPA}, 7, v0\nv_lshl_add_u32 v{VPA}, v{VPA}, 2, s{sT0}")
    else:
        a(f"s_lshl_b32 s{sT0}, s{sBR}, 3\ns_add_u32 s{sT0}, s{sT0}, s{sB2}\ns_lshl_b32 s{sT0}, s{sT0}, 7\ns_add_u32 s{sT0}, s{sT0}, {FLW + (64 if kind == 2 else 0)}")
        a(f"v_and_b32 v{VPA}, 15, v0\nv_lshl_add_u32 v{VPA}, v{VPA}, 2, s{sT0}")
    b = sWS if kind else sDBG
    a(f"global_load_dword v{VPD}, v{VPA}, s[{b}:{b+1}] sc0 sc1")
def poll_wait(a, kind, lbl, done, first_wait="vmcnt(0)"):
    b = sWS if kind else sDBG
    a(f"s_mov_b32 s{sT1}, 0x20000\ns_waitcnt {first_wait}")
    a.label(lbl)
    a(f"v_cmp_gt_u32 vcc, 16, v{VPD}\ns_sub_u32 s{sT1}, s{sT1}, 1\ns_cmp_eq_u32 s{sT1}, 0\ns_cbranch_scc1 {done}")
    a(f"s_nop 2\ns_cbranch_vccz {done}")
    a(f"global_load_dword v{VPD}, v{VPA}, s[{b}:{b+1}] sc0 sc1\ns_sleep 4\ns_waitcnt vmcnt(0)\ns_branch {lbl}")

def oproj(a):
    a.label("L_op")
    pstamp(a, 9)
    pro = [ld_a(3, nu, 0) for nu in range(8)] + op_advance() + [f"s_mov_b32 s{sCNT}, 8"]
    def kstep_mf(hb, st):
        return [f"{MF} {aq((i*8+nu)*4)}, {fa(st, nu)}, {fb(hb, st, i)}, {aq((i*8+nu)*4)}" for nu in range(8) for i in range(5)]
    def kstep_waits(st, tag):
        pre = {10 * p: [f"s_waitcnt vmcnt(?A{st}{p}:{tag})"] for p in range(4)}
        pre[0] = [f"s_waitcnt vmcnt(?B{st}:{tag})"] + pre[0]
        return pre
    halves = []
    for hb in range(2):
        body = []
        for st in range(4):
            fl = []
            for i in range(5): fl.append(F(ld_b(hb ^ 1, st, i, hb + 1), 4, Opt.bpos * i + 2, Opt.bpos * i + 4, prio=i))
            for nu in range(8): fl.append(F(ld_a(st, nu, hb + 1), 4, min(39, 5 * nu + 5), min(39, 5 * nu + 8), prio=100 + nu))
            out, over = schedule(kstep_mf(hb, st), fl, 4, kstep_waits(st, hb))
            body += [f"@HOOK{hb}{st}@:"] + out
        body += op_advance() + [f"s_sub_u32 s{sCNT}, s{sCNT}, 1"]
        halves.append(body)
    mf = kstep_mf(1, 0)
    fl = []
    RQ = [176 + 4 * k for k in range(8)] + [240 + 4 * k for k in range(4)] + [96 + 4 * k for k in range(5)] + [208 + 4 * k for k in range(8)] + [116 + 4 * k for k in range(5)]
    AC = 56
    for p in (1, 2, 3, 0):
        for i in range(5):
            for e in range(2):
                nu = 2 * p + e
                b = (i * 8 + nu) * 4
                for st in (1, 2, 3): mf.append(f"{MF} {aq(b)}, {fa(st, nu)}, {fb(1, st, i)}, {aq(b)}")
                g = len(mf) - 1
                if p: fl.append(F(f"ds_write_b128 v{VRW+p-1}, a[{b}:{b+3}] offset:{(i*2+e)*1024}", 8, g + 6, g + 8))
                elif g + 6 < 159:
                    for r in range(4): fl.append(F(f"v_accvgpr_read_b32 v{AC+(i*2+e)*4+r}, a{b+r}", 4, g + 5, 159, prio=50))
    misc = []
    for p in range(1, 4):
        misc += [f"s_add_u32 s{sT0}, s{sWAVE}, {p}", f"s_and_b32 s{sT0}, s{sT0}, 3", f"s_mul_i32 s{sT0}, s{sT0}, 30720",
                 f"s_add_u32 s{sT0}, s{sT0}, {(p-1)*10240}", f"v_add_u32 v{VRW+p-1}, s{sT0}, v{VOD}"]
    misc += [f"s_mul_i32 s{sT0}, s{sWAVE}, 30720", f"v_add_u32 v{VRR}, s{sT0}, v{VOD}",
             "v_and_b32 v3, 15, v0", "v_and_b32 v1, 48, v0",
             *out_off(), f"s_lshl_b32 s{sT1}, s{sBR}, 10", f"s_add_u32 s{sT0}, s{sT0}, s{sT1}", f"s_lshl_b32 s{sT1}, s{sN4}, 8",
             f"s_add_u32 s{sT0}, s{sT0}, s{sT1}", f"s_lshl_b32 s{sT1}, s{sWAVE}, 6", f"s_add_u32 s{sT0}, s{sT0}, s{sT1}",
             "v_lshl_add_u32 v2, v3, 11, v1", f"v_add_u32 v2, s{sT0}, v2",
             f"s_mov_b32 s16, s{sOUT}", f"s_mov_b32 s17, s{sOUT+1}", f"s_mov_b32 s18, {8*304*1024*2}"]
    spread(fl, [(m, 4) for m in misc], 0, 38, 10)
    BG = 146
    rds = []
    for i in range(5):
        for p in range(3):
            for e in range(2):
                b = RQ[i * 6 + p * 2 + e]
                rds.append(f"ds_read_b128 v[{b}:{b+3}], v{VRR} offset:{p*10240 + (i*2+e)*1024}")
    for k, r in enumerate(rds[:14]): fl.append(F(r, 4, BG + k, BG + k, prio=k))
    tpre = kstep_waits(0, 7)
    tpre.update({39: ["s_waitcnt vmcnt(?B3:7)"], 40: ["s_waitcnt vmcnt(?A31:7)"], 70: ["s_waitcnt vmcnt(?A32:7)"], 100: ["s_waitcnt vmcnt(0)"],
                 BG: ["s_waitcnt lgkmcnt(0)", "s_barrier"]})
    tail, over = schedule(mf, fl, 8, tpre)
    done = set(tail)
    tail += rds[14:]
    for i in range(5):
        for e in range(2):
            for r in range(4):
                l = f"v_accvgpr_read_b32 v{AC+(i*2+e)*4+r}, a{(i*8+e)*4+r}"
                if l not in done: tail.append(l)
    OF = 32
    for i in range(5):
        if i == 4: tail.append("@LAST@:")
        if i != 1: tail.append(f"s_waitcnt lgkmcnt({min(14, 6 * (4 - i))})")
        for p in range(3):
            for e in range(2):
                for r in range(0, 4, 2):
                    d = AC + (i * 2 + e) * 4 + r; b = RQ[i * 6 + p * 2 + e] + r
                    tail.append(f"v_pk_add_f32 v[{d}:{d+1}], v[{d}:{d+1}], v[{b}:{b+1}]")
        b = AC + i * 8; d = OF + i * 4
        tail.append(f"s_mov_b32 s{sT0}, {i*32768}")
        for r in range(4): tail.append(f"v_cvt_pk_bf16_f32 v{d+r}, v{b+2*r}, v{b+2*r+1}")
        tail.append(f"buffer_store_dwordx4 v[{d}:{d+3}], v2, s[16:19], s{sT0} offen{Opt.st_out}")
    tail = waits.insert_lgkm(tail, loop=False)
    per = {f"B{st}": 2 for st in range(4)}
    per.update({f"A{st}{p}": 2 for st in range(4) for p in range(4)})
    body = halves[0] + ["@MID@:"] + halves[1]
    last = [re.sub(r"(tag=\w+|\?\w+):(\d)", lambda m: f"{m.group(1)}:{int(m.group(2)) + 6}", l) for l in halves[0]]
    _, pro, body, last, tail = waits.resolve_vm([(op_loads0(), 1, {}), (pro, 1, {}), (body, 3, per), (last, 1, {}), (tail, 1, {})])
    for l1, l2 in zip(body, last):
        if "vmcnt" in l1: assert int(re.search(r"vmcnt\((\d+)", l1).group(1)) <= int(re.search(r"vmcnt\((\d+)", l2).group(1))
    for l in fix_hazards(pro): a(l)
    for i in range(5):
        if i == 4: a(f"s_cmp_eq_u32 s{sWAVE}, 3\ns_cbranch_scc1 L_opl")
        a(f"s_add_u32 s{sT1}, s{sOOFF}, {i*TS + 4096}")
        for s in range(4): a(f"buffer_store_dwordx4 {vq(QLO + (i*4+s)*4)}, v{VOD}, s[20:23], s{sT1} offen offset:{s*1024}{Opt.st_o}")
    for e in hazard.check(body + body, "op")[:10]: print(e)
    a.label("L_opl")
    a("; noalign")
    ks = Opt.poll_ks
    for l in body:
        if l == "@MID@:":
            a(f"s_cmp_eq_u32 s{sCNT}, 1\ns_cbranch_scc1 L_opt"); continue
        m = re.match(r"@HOOK(\d)(\d)@:", l)
        if not m: a(l); continue
        hb, st = int(m.group(1)), int(m.group(2))
        if (hb, st) == ((ks // 4) % 2, ks % 4):
            a(f"s_cmp_eq_u32 s{sCNT}, {8 - ks // 4}\ns_cbranch_scc1 L_oe_pi"); a.label("L_or_pi")
        if (hb, st) == (1, 1):
            a(f"s_cmp_eq_u32 s{sCNT}, 7\ns_cbranch_scc1 L_oe_sig"); a.label("L_or_sig")
        if (hb, st) == (1, 0):
            a(f"s_cmp_eq_u32 s{sCNT}, 5\ns_cbranch_scc1 L_oe_pw"); a.label("L_or_pw")
    a("s_branch L_opl")
    a.label("L_oe_pi")
    poll_issue(a, 2)
    a("s_branch L_or_pi")
    a.label("L_oe_sig")
    pstamp(a, 10)
    a(f"v_mov_b32 v1, {FLAG + 8}\nv_mov_b32 v2, 1\ns_mov_b64 exec, 1\nds_add_rtn_u32 v3, v1, v2\ns_mov_b64 exec, -1\ns_waitcnt lgkmcnt(0)")
    a(f"v_readfirstlane_b32 s{sT0}, v3\ns_nop 3\ns_cmp_lg_u32 s{sT0}, 3\ns_cbranch_scc1 L_or_sig")
    signal(a, 2)
    a("s_branch L_or_sig")
    a.label("L_oe_pw")
    pstamp(a, 11); pstamp(a, 12)
    poll_wait(a, 2, "L_pw2", "L_or_pw", f"vmcnt({13 * (12 - ks)})")
    a.label("L_opt")
    pstamp(a, 13)
    tl = fix_hazards(tail, halves[0][-26:])
    k = max(j for j, l in enumerate(tl) if l.startswith("v_mfma"))
    for l in tl[:k + 1]: a(l)
    a("; align")
    for l in tl[k + 1:]:
        if l == "@LAST@:": a(f"s_cmp_eq_u32 s{sQG}, 3\ns_cbranch_scc1 L_fin")
        else: a(l)

def kv_switch():
    return ["s_mov_b32 s12, s24", "s_mov_b32 s13, s25", "s_mov_b32 s14, 0x80000", "s_mov_b32 s16, s28", "s_mov_b32 s17, s29", "s_mov_b32 s18, 0x80000",
            f"s_mov_b32 s{sRAW}, 0", f"s_mov_b32 s{sDOFF}, s{sROT}", f"s_mov_b32 s{sMH}, 0xfffc0000", f"s_mov_b32 s{sML}, 0x3e000",
            f"s_movk_i32 s{sINC0}, 0x2000", f"s_movk_i32 s{sINC1}, 0x2000", f"s_movk_i32 s{sG1}, 0x1000", f"s_mov_b32 s{sG2}, 0", f"s_movk_i32 s{sG3}, 0x1000"]

TRACE = ["s_mov_b32 m0, s47", "s_add_u32 s47, s47, 1", "v_writelane_b32 v17, s98, m0", "v_writelane_b32 v18, s100, m0",
         "s_memrealtime s[98:99]", "s_memtime s[100:101]"]
def variant(a, nq, tag):
    w3 = nq == 4
    RC = VRC(nq)
    pro = ["v_lshrrev_b32 v2, 2, v30", "v_and_b32 v3, 1, v31", "v_lshl_add_u32 v3, v3, 2, v2", "v_bfe_u32 v1, v30, 1, 1", "v_xor_b32 v3, v3, v1",
           "v_lshl_add_u32 v2, v31, 3, v2", "v_lshlrev_b32 v2, 8, v2", "v_and_b32 v1, 1, v30", "v_lshl_add_u32 v2, v1, 4, v2"]
    for s in range(4): pro += [f"v_xor_b32 v1, {2*s}, v3", f"v_lshl_add_u32 v{VWA(nq)+s}, v1, 5, v2"]
    pro += ["v_bfe_u32 v1, v0, 2, 4", "v_lshrrev_b32 v2, 1, v1", "v_and_b32 v3, 3, v0", "v_xor_b32 v2, v2, v3", "v_lshlrev_b32 v2, 4, v2", "v_lshl_add_u32 v2, v1, 7, v2",
            f"v_add_u32 v{VWR(nq)[0]}, s{sM0X}, v2", "v_xor_b32 v2, 64, v2", f"v_add_u32 v{VWR(nq)[1]}, s{sM0X}, v2"]
    if w3:
        pro += ["v_xor_b32 v1, v30, v31"]
        for j in range(4): pro += [f"v_xor_b32 v2, {4*j}, v1", "v_lshlrev_b32 v2, 4, v2", f"v_lshl_add_u32 v{VPK+j}, v31, 8, v2", f"v_mov_b32 v{VDB+j}, v{VDA+j}"]
        pro += ["v_lshrrev_b32 v2, 1, v30", "v_xor_b32 v2, v2, v31", "v_and_b32 v3, 1, v30", "v_lshlrev_b32 v3, 4, v3"]
        for j in range(4): pro += [f"v_xor_b32 v1, {4*(j%2)}, v2", "v_lshl_add_u32 v1, v1, 5, v3", f"v_lshl_add_u32 v{VPV+j}, v31, 8, v1"]
        pro += [f"v_mov_b32 v1, {FLAG}", "ds_write_b64 v1, v[32:33]", "ds_write_b64 v1, v[32:33] offset:8"]
    else: pro += flat(x_dma(nq, 1, 1)) + (touches() if Opt.touch & 2 else [])
    pro += ["s_waitcnt vmcnt(?X:0) lgkmcnt(0)", "s_barrier"]
    pro += x_reads(nq, 0, 0) + w_reads(nq, 0, 0) + w_reads(nq, 0, 1)
    if w3: pro += flat(x_dma(nq, 1, 1)) + flat(ring_dma(2, f"s{sINC0}", 2))
    pro += [f"s_mov_b32 s{sCNT}, 4", "s_waitcnt lgkmcnt(0)"]
    if Opt.traceq: pro += ["s_mov_b32 s47, 0", "v_mov_b32 v17, 0", "v_mov_b32 v18, 0"] if not w3 else []
    body = []
    for u in range(4):
        if u == 1: body.append("@SWITCH@:")
        if u == 2: body += [f"s_cmp_eq_u32 s{sCNT}, 1", "s_cselect_b32 s10, 0, s10"]
        if Opt.traceq and not w3: body += TRACE
        body += qproj_unit(nq, u)
    body = waits.insert_lgkm(body)
    _, pro, body = waits.resolve_vm([(first_loads(), 1, {}), (pro, 1, {}), (body, 4, {"R": 4, "X": 2})])
    for l in fix_hazards(pro): a(l)
    pstamp(a, 1)
    for e in hazard.check(body + body, f"q{tag}")[:10]: print(e)
    a.label(f"L_q{tag}")
    a("; noalign")
    a(f"s_cmp_eq_u32 s{sCNT}, 1\ns_cselect_b32 s8, s4, s8\ns_cselect_b32 s9, s5, s9\ns_cselect_b32 s10, s6, s10\ns_cselect_b32 s{sXOFF}, s{sHO}, s{sXOFF}")
    for l in body:
        if l == "@SWITCH@:":
            if w3: a(f"s_cmp_eq_u32 s{sCNT}, 1\ns_cbranch_scc1 L_qs{tag}"); a.label(f"L_qn{tag}")
        else: a(l)
    a(f"s_sub_u32 s{sCNT}, s{sCNT}, 1\ns_cmp_lg_u32 s{sCNT}, 0\ns_cbranch_scc1 L_q{tag}")
    a("; align")
    pstamp(a, 2)
    def conv(sb, d):
        L = [f"v_pk_mul_f32 v[{sb+r}:{sb+r+1}], v[{sb+r}:{sb+r+1}], s[{sSC}:{sSC+1}]" for r in range(0, 8, 2)]
        return L + [f"v_cvt_pk_bf16_f32 v{d+r}, v{sb+2*r}, v{sb+2*r+1}" for r in range(3, -1, -1)]
    cv = ["s_waitcnt lgkmcnt(0)"] + k_reads(0) + [f"s_add_u32 s{sHO}, s{sHW}, 8192"] + wo_reads(nq)[:6]
    side = wo_reads(nq)[6:] + (flat(ring_dma(3, "0x2000")) if w3 else kv_switch())
    side2 = ["v_and_b32 v1, 63, v0", f"v_lshlrev_b32 v{VOD}, 4, v1", f"s_mul_i32 s{sT0}, s{sWAVE}, 20480", f"s_add_u32 s{sT0}, s{sT0}, {XB}",
             f"v_add_u32 v{VSW}, s{sT0}, v{VOD}"]
    t0s, stride, cnts = SM()
    if w3: side2 += [f"v_add_u32 v{VSR}, {XB + t0s[3]*4096}, v{VOD}"]
    else: side2 += [f"s_mul_i32 s{sT0}, s{sWAVE}, {t0s[1]*4096}", f"s_add_u32 s{sT0}, s{sT0}, {XB}", f"v_add_u32 v{VSR}, s{sT0}, v{VOD}"]
    side2 += [f"s_add_u32 s4, s{sWS}, s{sWB}", f"s_addc_u32 s5, s{sWS+1}, 0", "s_mov_b32 s6, 0x100000"] + op_srd()
    side2 += ["v_mov_b32 v1, 0x3f803f80"] + [f"v_accvgpr_write_b32 a{A_ONES+r}, v1" for r in range(4)]
    side2 += [f"s_mov_b32 s{sCNT}, 8"]
    c1 = []
    for k in range(27, -1, -1):
        fi = k - 8 if k >= 8 else k + 12
        if fi // 4 < nq: c1 += conv(32 + 8 * k, 144 + 4 * k)
    zs = [zero16(b) for b in range(96, 32 * nq, 16)] + zero_L(nq)
    cv += weave(weave(c1, side + side2, 2), zs, 24, 40)
    if w3: cv += own_word(0)[:-3] + ["\n".join(own_word(0)[-3:])]
    c2 = []
    for fi in range(12):
        tb = 32 + 8 * (fi % 3)
        c2 += [f"v_accvgpr_read_b32 v{tb+r}, a{8*fi+r}" for r in range(8)]
        if fi % 2: c2.append(zero16(8 * (fi - 1)))
        c2 += conv(tb, QLO + 4 * fi)
    mp = maxpass_mf(nq, QTOP)
    cv += ["s_waitcnt lgkmcnt(0)"] + weave(weave(c2[:4 * len(mp)], mp, 4) + c2[4 * len(mp):], max_chain(nq), 2, 5 * len(mp) + 8)
    k0 = max(k for k, l in enumerate(cv) if f"v_lshlrev_b32 v{VOD}," in l or "buffer_load" in l) + 2
    cv = cv[:k0] + ["s_waitcnt lgkmcnt(0)"] + weave(cv[k0:], wo_stores(), min(Opt.wgap, (len(cv) - k0 - 30) // 8))
    cv = "\n".join(cv).split("\n")
    if Opt.trace and not w3: cv = (TRACE if Opt.traceq else []) + cv + (["s_mov_b32 s47, 0", "v_mov_b32 v17, 0", "v_mov_b32 v18, 0"] if not Opt.traceq else [])
    for l in fix_hazards(cv, body[-26:]): a(l)
    pstamp(a, 3)
    a(f"s_branch L_loop{tag}")
    if w3:
        a.label(f"L_qs{tag}")
        for l in kv_switch(): a(l)
        for j in range(4): a(f"v_mov_b32 v{VDA+j}, v{VPK+j}\nv_mov_b32 v{VDB+j}, v{VPV+j}")
        a(f"s_branch L_qn{tag}")
    def og_pre(k):
        i, s = k // 4, k % 4
        tb = 32 + 8 * (k % 3)
        g = [f"v_accvgpr_read_b32 v{tb+r}, a{A_O + (i*8+2*s)*4 + r}" for r in range(8)]
        rc = RC[i]
        return g + [f"v_pk_mul_f32 v[{tb+r}:{tb+r+1}], v[{tb+r}:{tb+r+1}], v[{rc}:{rc+1}] op_sel_hi:[1,0]" for r in range(0, 8, 2)]
    def og_post(k):
        tb = 32 + 8 * (k % 3); d = QLO + k * 4
        return [f"v_cvt_pk_bf16_f32 v{d+r}, v{tb+2*r}, v{tb+2*r+1}" for r in range(4)]
    def og_rest(z, stage=False):
        L = []
        for k in range(4 * nq):
            if k >= 3: L += og_pre(k)
            if k % 2 and k >= 3: L.append(zero16(8 * (k - 1), z))
            if k == 3: L.append(zero16(0, z))
            L += og_post(k)
            if stage: L.append(f"ds_write_b128 v{VSW}, {vq(QLO + 4*k)} offset:{k*1024}")
        return L
    def steps(store):
        body = []
        for st in range(4):
            if Opt.trace and not w3 and (not Opt.traceq or st % 2 == 0): body += TRACE
            if not store and not w3:
                if st == 2: body.append("s_waitcnt vmcnt(0)")
                if st == 3: body.append("@EV@:")
            body += attn_step(nq, st, store)
        for e in hazard.check(body + body, f"a{tag}")[:10]: print(e)
        return body
    a.label(f"L_t1{tag}")
    mv = [f"v_mov_b64 v[{QTOP+r}:{QTOP+r+1}], v[{QLO+r}:{QLO+r+1}]" for r in range(0, nq * 16, 2)]
    sc = [f"s_mov_b32 s{sHEAD}, 1", f"s_mov_b32 s{sLAST}, 1", f"s_mov_b32 s{sREDO}, 0", f"s_mov_b32 s{sCNT}, 8"]
    E1 = 8 - max(cnts[:3])
    if not w3: sc += [f"s_cmp_eq_u32 s{sWAVE}, 0\ns_cselect_b32 s{sEV}, {E1}, -1"]
    t1 = weave(mv, maxpass_mf(nq, QLO), 2) + zero_L(nq) + weave(weave(og_rest(ZQ, True), max_chain(nq), 4, 8), sc, 8)
    t1 = "\n".join(t1).split("\n")
    for l in fix_hazards(t1): a(l)
    pstamp(a, 5); pstamp(a, 6)
    a("; noalign")
    if not w3 or cnts[3]:
        a.label(f"L_loopS{tag}")
        bodyS = steps(True)
        for e in hazard.check(t1[-26:] + bodyS, f"t1{tag}")[:10]: print(e)
        for l in bodyS: a(l)
        a(f"s_sub_u32 s{sCNT}, s{sCNT}, 1\ns_cmp_lg_u32 s{sCNT}, s{sSX}\ns_cbranch_scc1 L_loopS{tag}")
    a.label(f"L_loop{tag}")
    body = steps(False)
    for e in hazard.check(cv[-26:] + body, f"t0{tag}")[:10] + hazard.check(t1[-26:] + body, f"t1{tag}")[:10]: print(e)
    if w3: a(f"s_cmp_eq_u32 s{sCNT}, s{sLAST}\ns_cselect_b32 s14, 0, s14\ns_cselect_b32 s18, 0, s18")
    for l in body:
        if l == "@EV@:":
            a(f"s_cmp_eq_u32 s{sCNT}, s{sEV}\ns_cbranch_scc1 L_ev{tag}"); a.label(f"L_evr{tag}")
        else: a(l)
    a(f"s_sub_u32 s{sCNT}, s{sCNT}, 1\ns_cmp_lg_u32 s{sCNT}, 0\ns_cbranch_scc1 L_loop{tag}")
    a("; align")
    if Opt.stamps:
        a(f"s_cmp_eq_u32 s{sHEAD}, 1\ns_cbranch_scc1 L_ps{tag}")
        pstamp(a, 4)
        a.label(f"L_ps{tag}")
        pstamp(a, 7)
    ep = [f"s_lshl_b32 s{sT0}, s{sHEAD}, 2", f"s_add_u32 s{sT0}, s{sT0}, {FLAG}", f"v_mov_b32 v1, s{sT0}", "v_mov_b32 v2, 1"]
    ep += [f"v_accvgpr_read_b32 v{RC[i]}, a{A_L+4*i}" for i in range(nq)]
    ep += [f"v_max3_f32 v3, v{RC[0]}, v{RC[1]}, v{RC[2]}", f"v_max3_f32 v3, v3, v{RC[3]}, v{RC[nq-1]}", f"v_cmp_ngt_f32 vcc, s{sTHR}, v3"]
    ep += [f"v_rcp_f32 v{RC[i]}, v{RC[i]}" for i in range(nq)]
    ep = fix_hazards(ep, body[-26:])
    for l in ep: a(l)
    a(f"s_cbranch_vccnz L_ovf{tag}")
    a.label(f"L_nof{tag}")
    if not w3:
        a(f"s_cmp_eq_u32 s{sEV}, 0\ns_cbranch_scc1 L_evw"); a.label("L_evwr")
    a("s_waitcnt lgkmcnt(0)\ns_barrier\nds_read_b32 v3, v1")
    ep = og_pre(0) + og_pre(1) + og_pre(2) + ["s_waitcnt lgkmcnt(0)", f"v_readfirstlane_b32 s{sT0}, v3"]
    for l in fix_hazards(ep): a(l)
    a(f"s_nop 3\ns_andn2_b32 s{sT0}, s{sT0}, s{sREDO}\ns_cmp_lg_u32 s{sT0}, 0\ns_cbranch_scc1 L_redo{tag}")
    a(f"s_cmp_eq_u32 s{sHEAD}, 0\ns_cbranch_scc1 L_t1{tag}")
    e1 = op_setup() + ["v_mov_b64 v[64:65], 0", "v_mov_b64 v[66:67], 0"]
    rest = og_rest("v[64:67]")
    if w3: rest += [zero16(128, "v[64:67]"), zero16(144, "v[64:67]")]
    e1 += weave(rest, op_loads0(), Opt.ldgap if not w3 else Opt.ldgap - 1)
    if Opt.trace and not w3:
        e1 += [f"s_lshl_b32 s{sT0}, s2, 9", f"s_add_u32 s{sT0}, s{sT0}, {STAMP_OFF + 131072}", "v_lshlrev_b32 v1, 2, v0", f"v_add_u32 v1, s{sT0}, v1",
               "v_cmp_gt_u32 vcc, 64, v0", "s_nop 4", "s_mov_b64 exec, vcc", "s_cbranch_execz L_tr",
               f"global_store_dword v1, v17, s[{sWS}:{sWS+1}]", f"global_store_dword v1, v18, s[{sWS}:{sWS+1}] offset:256", "L_tr:", "s_mov_b64 exec, -1"]
    for l in fix_hazards(e1): a(l)
    pstamp(a, 8)
    a("s_branch L_op")
    a.label(f"L_ovf{tag}")
    a(f"ds_write_b32 v1, v2\ns_branch L_nof{tag}")
    if not w3:
        a.label(f"L_ev{tag}")
        a(f"s_cmp_eq_u32 s{sHEAD}, 1\ns_cbranch_scc1 L_evh")
        a(f"s_cmp_eq_u32 s{sEV}, 2\ns_cbranch_scc1 L_ev2\ns_cmp_eq_u32 s{sEV}, 1\ns_cbranch_scc1 L_ev1")
        signal(a, 0)
        a(f"s_mov_b32 s{sEV}, 2\ns_branch L_evr{tag}")
        a.label("L_ev2")
        poll_issue(a, 0)
        a(f"s_mov_b32 s{sEV}, 1\ns_branch L_evr{tag}")
        a.label("L_ev1")
        a(f"s_mov_b32 s{sEV}, -1")
        poll_wait(a, 0, "L_pw0", f"L_evr{tag}")
        a.label("L_evh")
        if E1 != 1: a(f"s_cmp_eq_u32 s{sEV}, 1\ns_cbranch_scc1 L_evp")
        signal(a, 1)
        if E1 != 1: a(f"s_mov_b32 s{sEV}, 1\ns_branch L_evr{tag}")
        a.label("L_evp")
        poll_issue(a, 1)
        a(f"s_mov_b32 s{sEV}, 0\ns_branch L_evr{tag}")
        a.label("L_evw")
        a(f"s_mov_b32 s{sEV}, -1")
        poll_wait(a, 1, "L_pw1", "L_evwr")
    a.label(f"L_redo{tag}")
    a(f"s_mov_b32 s{sREDO}, 1\ns_waitcnt vmcnt(0) lgkmcnt(0)\ns_barrier")
    a(f"s_lshl_b32 s{sRAW}, s{sHEAD}, 18\ns_mov_b32 s14, 0x80000\ns_mov_b32 s18, 0x80000")
    rp = doff_update()
    if w3:
        for sl in range(4): rp += flat(ring_dma(sl, "0x2000")) + ["s_waitcnt vmcnt(16)"]
    for l in fix_hazards(rp): a(l)
    a("v_and_b32 v1, 15, v0\nv_lshlrev_b32 v1, 8, v1\nv_and_b32 v2, 48, v0\nv_add_u32 v1, v1, v2")
    a(f"s_lshl_b32 s{sT0}, s{sHEAD}, 18\ns_mov_b32 s{sCNT}, 64")
    for i in range(nq): a(f"v_mov_b32 v{NM0+i}, 0xff800000")
    a.label(f"L_rl{tag}")
    rb = [f"buffer_load_dwordx4 a[{A_K+4*s}:{A_K+4*s+3}], v1, s[12:15], s{sT0} offen offset:{s*64}" for s in range(4)]
    rb += ["s_waitcnt vmcnt(0)"] + maxpass_mf(nq, QTOP) + ["s_nop 7"]
    for i in range(nq):
        b = P0 + 4 * i
        rb += [f"v_max3_f32 v{NM0+i}, v{NM0+i}, v{b}, v{b+1}", f"v_max3_f32 v{NM0+i}, v{NM0+i}, v{b+2}, v{b+3}"]
    rb.append(f"s_add_u32 s{sT0}, s{sT0}, 0x1000")
    for l in fix_hazards(rb): a(l)
    a(f"s_sub_u32 s{sCNT}, s{sCNT}, 1\ns_cmp_lg_u32 s{sCNT}, 0\ns_cbranch_scc1 L_rl{tag}")
    rb = [f"v_mov_b32 v{P0+4*i}, v{NM0+i}" for i in range(nq)] + max_finish(nq) + [zero16(b) for b in range(0, 32 * nq, 16)] + zero_L(nq)
    rb += ["s_waitcnt vmcnt(0)", "s_barrier"] + k_reads(0) + [f"s_mov_b32 s{sCNT}, 8", "s_nop 7"]
    for l in fix_hazards(rb): a(l)
    a(f"s_branch L_loop{tag}")

def first_loads():
    L = [f"s_lshl_b32 s{sT0}, s{sWAVE}, 12", f"s_mov_b32 m0, s{sT0}", f"s_lshl_b32 s{sT1}, s{sWAVE}, 17"]
    for j in range(4): L.append(f"buffer_load_dwordx4 v{VDA+j}, s[12:15], s{sT1} offen offset:{j*1024}{Opt.nt_kv} lds ; tag=R:0")
    L += [f"s_add_u32 m0, s{sT0}, 16384", f"s_add_u32 s{sT1}, s{sT1}, 256"]
    for j in range(4): L.append(f"buffer_load_dwordx4 v{VDA+j}, s[12:15], s{sT1} offen offset:{j*1024}{Opt.nt_kv} lds ; tag=R:1")
    return L + flat(x_dma(5, 0, 0, list(range(8))))

def late_setup():
    L = []
    for s in range(4):
        L += [f"v_or_b32 v2, {4*s}, v31", "v_xor_b32 v2, v2, v30", "v_lshlrev_b32 v2, 4, v2", f"v_lshl_add_u32 v{VKA+s}, v30, 8, v2"]
    L += ["v_lshrrev_b32 v2, 2, v30", "v_lshl_add_u32 v2, v31, 2, v2", "v_and_b32 v3, 7, v2", "v_lshlrev_b32 v2, 8, v2", "v_and_b32 v1, 3, v30", "v_lshl_add_u32 v2, v1, 3, v2"]
    for dt in range(8): L += [f"v_xor_b32 v1, {dt}, v3", f"v_lshl_add_u32 v{VVA+dt}, v1, 5, v2"]
    L += ["v_lshrrev_b32 v3, 1, v30", "v_xor_b32 v3, v3, v31"]
    for kk in range(2):
        L += [f"v_xor_b32 v2, {4*kk}, v3", "v_lshlrev_b32 v2, 4, v2", "v_lshl_add_u32 v2, v30, 7, v2", f"v_add_u32 v{VXA+kk}, s{sM0X}, v2"]
    L += [f"s_lshl_b32 s{sT0}, s{sB1}, 5", f"s_add_u32 s{sT0}, s{sT0}, s{sH0}", f"s_lshl_b32 s{sT0}, s{sT0}, 18",
          f"s_add_u32 s24, s86, s{sT0}", "s_addc_u32 s25, s87, 0", f"s_add_u32 s28, s88, s{sT0}", "s_addc_u32 s29, s89, 0",
          f"s_mov_b32 s20, s{sWS}", f"s_mov_b32 s21, s{sWS+1}", f"s_mov_b32 s22, {FLW}", "s_mov_b32 s23, 0x20000",
          f"s_lshl_b32 s{sT0}, s{sBR}, 3", f"s_add_u32 s{sT0}, s{sT0}, s{sB1}", f"s_mul_i32 s{sT0}, s{sT0}, {19*TS}",
          f"s_mul_i32 s{sOOFF}, s{sWAVE}, {5*TS}", f"s_add_u32 s{sOOFF}, s{sOOFF}, s{sT0}", f"s_add_u32 s{sOOFF}, s{sOOFF}, {PAD}", f"s_lshl_b32 s{sT0}, s{sH0}, 12", f"s_add_u32 s{sOOFF}, s{sOOFF}, s{sT0}",
          f"s_mov_b32 s{sSC}, {f2u(SCALE):#x}", f"s_mov_b32 s{sSC+1}, {f2u(SCALE):#x}", f"s_mov_b32 s{sTHR}, {f2u(2.0**Opt.thr):#x}", "s_mov_b32 s7, 0x20000",
          f"s_and_b32 s{sB2}, s2, 3", f"s_lshl_b32 s{sB2}, s{sB2}, 1", f"s_lshr_b32 s{sT0}, s2, 7", f"s_add_u32 s{sB2}, s{sB2}, s{sT0}",
          f"s_bfe_u32 s{sQG}, s2, 0x20005", f"s_bfe_u32 s{sN4}, s2, 0x20003",
          f"s_movk_i32 s{sINC0}, 256", f"s_mov_b32 s{sINC1}, {524288-256}", f"s_mov_b32 s{sG1}, 0x20000", f"s_mov_b32 s{sG2}, 0x40000", f"s_mov_b32 s{sG3}, 0x60000",
          "s_mov_b32 s16, s12", "s_mov_b32 s17, s13", "s_mov_b32 s18, s14", "s_mov_b32 s19, 0x20000",
          f"s_mov_b32 s{sRAW}, 0x80000", f"s_mov_b32 s{sDOFF}, 0x80000", f"s_mov_b32 s{sMH}, -1", f"s_mov_b32 s{sML}, 0"]
    L += [f"s_lshl_b32 s{sT0}, s{sB1}, 4", f"s_lshr_b32 s{sT1}, s{sH0}, 1", f"s_add_u32 s{sT1}, s{sT0}, s{sT1}", f"s_and_b32 s{sT0}, s{sT1}, 3",
          f"s_mul_i32 s{sHW}, s{sT0}, {WN}", f"s_lshl_b32 s{sHO}, s{sT0}, 8", f"s_lshr_b32 s{sT1}, s{sT1}, 2", f"s_lshl_b32 s{sT1}, s{sT1}, 1", f"s_and_b32 s{sT0}, s{sWAVE}, 1",
          f"s_add_u32 s{sT1}, s{sT1}, s{sT0}", f"s_lshl_b32 s{sT0}, s{sT1}, 14", f"s_add_u32 s{sHW}, s{sHW}, s{sT0}", f"s_lshl_b32 s{sT1}, s{sT1}, 16",
          f"s_add_u32 s{sHO}, s{sHO}, s{sT1}", f"s_add_u32 s6, s{sT1}, 0x10000", f"s_mov_b32 s4, s{sWO}", f"s_mov_b32 s5, s{sWO+1}",
          f"s_lshr_b32 s{sT0}, s{sWAVE}, 1", f"s_lshl_b32 s{sT1}, s{sT0}, 7", f"s_add_u32 s{sHO}, s{sHO}, s{sT1}", f"s_lshl_b32 s{sT1}, s{sT0}, 12", f"s_add_u32 s{sHW}, s{sHW}, s{sT1}",
          f"s_mul_i32 s{sWB}, s{sBR}, {4*WN}", f"s_add_u32 s{sWB}, s{sWB}, {WOP + PAD}", f"s_add_u32 s{sHW}, s{sHW}, s{sWB}",
          f"s_mul_i32 s{sT0}, s{sN4}, {WN}", f"s_add_u32 s{sWB}, s{sWB}, s{sT0}"]
    t0s, stride, cnts = SM()
    L += [f"s_mul_i32 s{sT0}, s{sWAVE}, {(5 - t0s[1])*TS}", f"s_sub_u32 s{sSO}, s{sOOFF}, s{sT0}", f"s_add_u32 s{sT0}, s{sOOFF}, {(t0s[3] - 15)*TS}",
          f"s_cmp_eq_u32 s{sWAVE}, 3", f"s_cselect_b32 s{sSO}, s{sT0}, s{sSO}", f"s_cselect_b32 s{sSX}, {8 - cnts[3]}, {8 - cnts[1]}",
          f"s_cmp_eq_u32 s{sWAVE}, 0", f"s_cselect_b32 s{sSX}, {8 - cnts[0]}, s{sSX}", f"s_cselect_b32 s{sEV}, 4, -1",
          f"s_mov_b32 s{sHEAD}, 0", f"s_mov_b32 s{sREDO}, 0", f"s_mov_b32 s{sLAST}, 0"]
    if Opt.rot: L += [f"s_lshr_b32 s{sROT}, s2, 5", f"s_xor_b32 s{sROT}, s{sROT}, s2", f"s_and_b32 s{sROT}, s{sROT}, 31", f"s_lshl_b32 s{sROT}, s{sROT}, 13"]
    else: L += [f"s_mov_b32 s{sROT}, 0"]
    return L

def kernel():
    a = Asm()
    a("s_cmp_ge_u32 s2, 256\ns_cbranch_scc1 L_end")
    a("s_load_dwordx8 s[84:91], s[0:1], 0\ns_load_dwordx2 s[92:93], s[0:1], 32\ns_load_dwordx8 s[40:47], s[0:1], 40\ns_load_dwordx2 s[94:95], s[0:1], 72")
    a(f"s_load_dwordx2 s[{sOUT}:{sOUT+1}], s[0:1], 80\ns_load_dwordx2 s[{sDBG}:{sDBG+1}], s[0:1], 88\ns_load_dwordx2 s[{sWS}:{sWS+1}], s[0:1], 96")
    pstamp(a, 0)
    a(f"v_lshrrev_b32 v2, 6, v0\nv_and_b32 v1, 63, v0\nv_readfirstlane_b32 s{sWAVE}, v2")
    if Opt.code_pf:
        a("s_getpc_b64 s[96:97]\ns_bfe_u32 s48, s2, 0x20003\ns_lshl_b32 s48, s48, 15\nv_lshlrev_b32 v3, 7, v0\nv_add_u32 v3, s48, v3")
        a("v_min_u32 v3, CODE_SIZE, v3\nglobal_load_dword a255, v3, s[96:97]")
    a(f"s_bfe_u32 s{sBR}, s2, 0x10002\ns_lshr_b32 s{sB1}, s2, 5\ns_and_b32 s{sH0}, s2, 3\ns_lshl_b32 s{sH0}, s{sH0}, 3")
    a(f"s_bfe_u32 s{sT0}, s2, 0x20003\ns_lshl_b32 s{sT0}, s{sT0}, 1\ns_add_u32 s{sH0}, s{sH0}, s{sT0}")
    a("v_and_b32 v30, 15, v1\nv_lshrrev_b32 v31, 4, v1")
    a("v_and_b32 v33, 7, v1\nv_xor_b32 v33, v33, v31\nv_lshrrev_b32 v34, 3, v1\nv_lshlrev_b32 v35, 20, v31")
    for jj in range(4):
        a(f"v_xor_b32 v32, {4*(jj%2)}, v33\nv_lshlrev_b32 v32, 4, v32\nv_lshl_add_u32 v32, v34, 10, v32\nv_add_u32 v{VXD+jj}, {jj*8192 - jj*1024}, v32")
    a("v_lshrrev_b32 v2, 1, v30\nv_xor_b32 v2, v2, v31\nv_and_b32 v3, 1, v30\nv_lshlrev_b32 v3, 4, v3\nv_lshl_add_u32 v3, v31, 13, v3")
    for j in range(4):
        a(f"v_xor_b32 v32, {(j>>1)<<2}, v2\nv_lshl_add_u32 v32, v32, 5, v3\nv_add_u32 v{VDA+j}, {j*32768 - j*1024}, v32")
    a(f"s_mul_i32 s{sM0X}, s{sWAVE}, 10240\ns_add_u32 s{sM0X}, s{sM0X}, {XB}\ns_mul_i32 s{sXOFF}, s{sWAVE}, {80*1024}")
    a(f"s_mov_b32 s10, 311296\ns_mov_b32 s11, 0x20000\ns_mov_b32 s15, 0x20000")
    a(f"s_mul_i32 s{sT0}, s{sB1}, 311296\ns_lshl_b32 s{sT1}, s{sH0}, 8\ns_sub_u32 s14, 0x400000, s{sT1}")
    a(f"s_waitcnt lgkmcnt(0)\ns_cmp_eq_u32 s{sBR}, 1")
    for r in range(8): a(f"s_cselect_b32 s{84+r}, s{40+r}, s{84+r}")
    a(f"s_cselect_b32 s{sWO}, s94, s92\ns_cselect_b32 s{sWO+1}, s95, s93")
    a(f"s_add_u32 s8, s84, s{sT0}\ns_addc_u32 s9, s85, 0\ns_add_u32 s12, s90, s{sT1}\ns_addc_u32 s13, s91, 0")
    if Opt.stamps: stamp_start(a, 40)
    if Opt.touch & 1:
        a("buffer_load_dword a254, off, s[8:11], 0\nbuffer_load_dword a254, v35, s[12:15], 0 offen")
    for l in fix_hazards(first_loads()): a(l)
    a(f"s_cmp_eq_u32 s{sWAVE}, 3\ns_cbranch_scc1 L_x8")
    for l in flat(x_dma(5, 0, 0, [8, 9]))[:-1]: a(l)
    a.label("L_x8")
    a(f"s_add_u32 s{sXOFF}, s{sXOFF}, 128")
    zs = [f"{MF32} v[{r}:{r+15}], {ZQ}, {ZQ}, 0" for r in range(240, 31, -16)] + [zero16(16 * k) for k in range(6)]
    sh = [f"v_accvgpr_write_b32 a{A_Z+r}, 0" for r in range(4)] + weave(late_setup(), zs, 4)
    for l in fix_hazards(sh): a(l)
    a(f"s_cmp_eq_u32 s{sWAVE}, 3\ns_cbranch_scc1 L_var4")
    variant(a, 5, "5")
    a.label("L_var4")
    variant(a, 4, "4")
    oproj(a)
    a.label("L_fin")
    if Opt.stamps:
        a("s_waitcnt vmcnt(0)\ns_barrier")
        pstamp(a, 14)
        stamp_end(a, 40, sWS, 32, 0, 2, 48)
        pdump(a, sWS, 15, 2)
    a.label("L_end")
    a("s_endpgm")
    return a.text()

HDR = open("cdna_kernels/" + NAME + ".s.ref").read().split("; Override launch")[0]

def build(fname):
    k = NAME + "_kernel"
    txt = HDR + f"; @launch grid=(256,1,1) block=(256,1,1) lds={LDS1}\n" + '.amdgcn_target "amdgcn-amd-amdhsa--gfx950"\n.text\n'
    txt += kernel_open(k)
    post = f"L_code_end:\n.set CODE_SIZE, L_code_end - {k} - 256\n"
    body = kernel().rstrip("\n").split("\n")
    if Opt.al:
        body, nn, ne = align.align(txt, body, post)
    txt += "\n".join(body) + "\n" + post
    txt += '.section .rodata,"a"\n' + kernel_desc(k, 512, 256)
    open(fname, "w").write(txt)

if __name__ == "__main__":
    out = sys.argv[1] if len(sys.argv) > 1 else "cdna_kernels/" + NAME + ".s"
    for kv in sys.argv[2:]:
        k, v = kv.split("=")
        cur = getattr(Opt, k)
        if isinstance(cur, bool): v = v == "1"
        elif isinstance(cur, int): v = int(v)
        else: v = (" " + v.replace("+", " ")) if v else ""
        setattr(Opt, k, v)
    build(out)
```

```python
import sys, math, struct, re
sys.path.insert(0, "tools")
from asmlib import *
from sched import *
import hazard, waits, align

def f2u(x): return struct.unpack("<I", struct.pack("<f", x))[0]
SCALE = math.log2(math.e) / math.sqrt(128.0)

class Opt:
    stamps = False
    clk = False
    trace = False
    nt_kv = " nt"
    nt_x = " nt"
    st_o = " sc1"
    ld_o = " sc1"
    ld_wo = " sc1"
    st_out = ""
    delay = 4
    ldscost = 8
    poll_ks = 9
    bpos = 3
    al = True
    rot = 1
    code_pf = True
    thr = 32
    ldgap = 7

def vq(b): return f"v[{b}:{b+3}]"
def aq(b): return f"a[{b}:{b+3}]"
MF = "v_mfma_f32_16x16x32_bf16"
MF32 = "v_mfma_f32_32x32x16_bf16"

def pstamp(a, k):
    if Opt.stamps: a(f"{'s_memtime' if Opt.clk else 's_memrealtime'} s[{72+2*k}:{73+2*k}]")
def pdump(a, ws, n, rec):
    a("s_waitcnt lgkmcnt(0)")
    for k in range(16): a(f"v_mov_b32 v{32+k}, s{72+2*min(k, n-1)}")
    a(f"s_lshl_b32 s48, s{rec}, 6\ns_add_u32 s48, s48, {STAMP_OFF + 65536}\nv_mov_b32 v48, s48")
    a("v_cmp_eq_u32 vcc, 0, v0\ns_and_saveexec_b64 s[46:47], vcc")
    a(f"s_cbranch_execz L_pd")
    for k in range(4): a(f"global_store_dwordx4 v48, v[{32+4*k}:{35+4*k}], s[{ws}:{ws+1}] offset:{16*k}")
    a("s_waitcnt vmcnt(0)")
    a.label("L_pd")
    a("s_mov_b64 exec, s[46:47]")

def fix_hazards(lines, prefix=()):
    out = list(prefix)
    npre = len(out)
    for l in lines:
        while True:
            win = out[-26:] + [l]
            new = hazard.check(win)[len(hazard.check(win[:-1])):]
            if not new: break
            need = max(int(m.group(1)) - int(m.group(2)) for m in (re.search(r"need (\d+) have (\d+)", e) for e in new))
            out.append(f"s_nop {need-1}")
        out.append(l)
    return out[npre:]

def flat(items):
    r = []
    for (t, c) in items: r += t.split("\n")
    return r

def spread(fl, items, lo, hi, prio):
    prev = None
    n = len(items)
    for k, (txt, cost) in enumerate(items):
        p = lo + (k * (hi - lo + 1)) // n
        nx = max(p, lo + ((k + 1) * (hi - lo + 1)) // n - 1)
        f = F(txt, cost, p, nx, deps=[prev] if prev else [], prio=prio + k, depgap=1 if (hi - lo + 1) >= n else 0)
        fl.append(f); prev = f

def weave(main, extra, every, start=0):
    out = []; extra = list(extra)
    for k, l in enumerate(main):
        out.append(l)
        if k >= start and (k - start) % every == every - 1 and extra: out.append(extra.pop(0))
    return out + extra

VKA, VVA, VDA, VDB, VXD, VXA = 4, 8, 16, 20, 24, 28
VPK, VPV = 240, 244
VOD, VWD = 24, 25
def VRC(nq): return [26, 28, 30, 20, 22] if nq == 5 else [26, 28, 30, 72]
VCX, VCY = 25, 3
S0, P0, NM0, QLO, QTOP = 32, 56, 76, 96, 176
A_O, A_K, A_V, A_L, A_ONES, A_Z = 0, 160, 192, 224, 244, 248
A_X, A_W = 96, 176
XB, XBUF = 65536, 40960
FLAG = XB + 2 * XBUF
LDS1 = FLAG + 64
sWAVE = 3
sDOFF, sINC0, sINC1, sXOFF, sM0X, sCNT, sHEAD, sREDO, sLAST, sEV = 30, 31, 32, 33, 34, 35, 36, 37, 26, 27
sSC = 38
sT0, sT1, sOOFF, sTHR = 48, 49, 50, 51
sG1, sG2, sG3 = 52, 53, 54
sDBG, sOUT, sWS = 56, 58, 60
sBR, sB1, sH0, sB2, sQG, sN4 = 62, 63, 64, 65, 66, 67
sWO = 68
sHO, sHW = 70, 71
sRAW, sROT, sMH, sML = 0, 1, 44, 45
SQ = [8, 9, 10, 31, 32, 33, 68, 69]
WOP = 2 * 8 * 19 * 131072
FLW = WOP + 0x800000
def VWA(nq): return 20 if nq == 5 else 248

def O(i, dt): return aq(A_O + (i * 8 + dt) * 4)
def Q(i, s, base=QTOP): return vq(base + (i * 4 + s) * 4)
def Sreg(i, t): return S0 + (i % 3) * 8 + t * 4
ZQ = aq(A_Z)

def acc_loc(eta, i, s):
    fi = i * 4 + s
    if eta == 0: return ("v", 32 + 8 * (8 + fi))
    if fi >= 12: return ("v", 32 + 8 * (fi - 12))
    return ("a", 8 * fi)
def acc(eta, i, nt):
    f, b = acc_loc(eta, i, nt // 2)
    b += (nt % 2) * 4
    return f"{f}[{b}:{b+3}]"

def doff_update():
    return [f"s_add_u32 s{sT1}, s{sRAW}, s{sROT}", f"s_and_b32 s{sT1}, s{sT1}, s{sML}", f"s_and_b32 s{sDOFF}, s{sRAW}, s{sMH}", f"s_or_b32 s{sDOFF}, s{sDOFF}, s{sT1}"]
def ring_dma(slot, inc, tag=0):
    res = []
    for g in range(4):
        srd = "s[12:15]" if g < 2 else "s[16:19]"
        vb = VDA if g < 2 else VDB
        for j in range(4):
            t = ""; c = 4
            so = f"s{sDOFF}" if g == 0 else f"s{sT1}"
            if j == 0:
                t = f"s_mov_b32 m0, {slot*16384 + g*4096}\n"
                t += f"s_add_u32 s{sT1}, s{sDOFF}, s{sG1 + g - 1}\n" if g else f"s_add_u32 s{sRAW}, s{sRAW}, {inc}\n"
                c = 8
            t += f"buffer_load_dwordx4 v{vb+j}, {srd}, {so} offen offset:{j*1024}{Opt.nt_kv} lds ; tag=R:{tag}"
            res.append((t, c))
    res.append(("\n".join(doff_update()), 8))
    return res

def x_dma(nq, buf, tag, js=None):
    res = []
    js = list(range(2 * nq)) if js is None else js
    for j in js:
        G, jj = j // 4, j % 4
        t = ""; c = 4
        if jj == 0 or j == js[0]:
            t = f"s_add_u32 m0, s{sM0X}, {buf*XBUF + G*4096}\ns_add_u32 s{sT0}, s{sXOFF}, {G*32768}\n"; c = 8
        t += f"buffer_load_dwordx4 v{VXD+jj}, s[8:11], s{sT0} offen offset:{jj*1024}{Opt.nt_x} lds ; tag=X:{tag}"
        if j == 2 * nq - 1:
            t += f"\ns_add_u32 s{sXOFF}, s{sXOFF}, 128"; c = 8
        res.append((t, c))
    return res

def w_reads(nq, slot, nt):
    r = []
    for kk in range(2):
        for h in range(2):
            b = A_W + (nt % 4) * 8 + kk * 4 + h * 2
            r.append(f"ds_read_b64_tr_b16 a[{b}:{b+1}], v{VWA(nq) + nt//2} offset:{slot*16384 + kk*8192 + h*1024 + (nt%2)*8}")
    return r
def x_reads(nq, xset, buf):
    r = []
    for i in range(nq):
        for kk in range(2):
            b = A_X + xset * 40 + (i * 2 + kk) * 4
            r.append(f"ds_read_b128 a[{b}:{b+3}], v{VXA+kk} offset:{buf*XBUF + i*2048}")
    return r
def k_reads(slot):
    r = []
    for t in range(2):
        for s in range(4):
            b = A_K + (t * 4 + s) * 4
            r.append(f"ds_read_b128 a[{b}:{b+3}], v{VKA+s} offset:{slot*16384 + t*4096}")
    return r

def qproj_unit(nq, u):
    slot, eta, xset = u % 4, u % 2, (u // 2) % 2
    G = 2 * nq
    mf = []
    for nt in range(8):
        for i in range(nq):
            for kk in range(2):
                c = acc(eta, i, nt)
                mf.append(f"{MF} {c}, {aq(A_W + (nt%4)*8 + kk*4)}, {aq(A_X + xset*40 + (i*2+kk)*4)}, {c}")
    n = len(mf)
    fl = []
    for nt in range(8):
        n2 = nt + 2
        rs = w_reads(nq, slot, n2) if n2 < 8 else w_reads(nq, (slot + 1) % 4, n2 - 8)
        for k, r in enumerate(rs):
            fl.append(F(r, 4, nt * G + 1, nt * G + 4, prio=k))
    pre = {}
    if eta == 1:
        pre[3 * G] = [f"s_waitcnt vmcnt(?X:{u//2 + 1})"]
        for k, r in enumerate(x_reads(nq, xset ^ 1, xset ^ 1)):
            fl.append(F(r, 4, 3 * G + 2, 5 * G + 3, prio=100 + k))
    items = x_dma(nq, xset, u // 2 + 2, list(range(eta * nq, eta * nq + nq)))
    if nq == 4:
        pre[6 * G] = [f"s_waitcnt vmcnt(?R:{u+1}) lgkmcnt(0)", "s_barrier"]
        items += ring_dma((slot - 1) % 4, f"s{sINC0 + (1 - eta)}", u + 3)
        spread(fl, items, 0, n - 1, 200)
    else:
        pre[6 * G] = [f"s_waitcnt lgkmcnt(0)", "s_barrier"]
        spread(fl, items, 3, 5 * G, 200)
    out, over = schedule(mf, fl, 8, pre)
    return out

def attn_step(nq, slot, store):
    nslot = (slot + 1) % 4
    w3 = nq == 4
    mf = []
    for i in range(nq):
        for t in range(2):
            for s in range(4):
                d = vq(Sreg(i, t))
                c = vq(NM0 + i * 4) if s == 0 else d
                mf.append(f"{MF} {d}, {aq(A_K + (t*4+s)*4)}, {Q(i,s)}, {c}")
    nA = len(mf)
    for i in range(nq):
        for dt in range(8):
            mf.append(f"{MF} {O(i,dt)}, {aq(A_V + dt*4)}, {vq(P0 + i*4)}, {O(i,dt)}")
        mf.append(f"{MF} {aq(A_L+i*4)}, {aq(A_ONES)}, {vq(P0 + i*4)}, {aq(A_L+i*4)}")
    n = len(mf)
    fl = []
    so = slot * 16384
    for dt in range(8):
        for t in range(2):
            b = A_V + dt * 4 + t * 2
            fl.append(F(f"ds_read_b64_tr_b16 a[{b}:{b+1}], v{VVA+dt} offset:{so + 8192 + t*4096}", 4, 0, 12, prio=dt))
    for i in range(nq):
        dl = nA + 9 * i
        for t in range(2):
            dlc = dl - 3
            if i + 3 < nq: dlc = min(dlc, 8 * (i + 3) + 4 * t - 1)
            es = []
            for r in range(4):
                v = Sreg(i, t) + r
                e = F(f"v_exp_f32 v{v}, v{v}", 8, i * 8 + t * 4 + 3 + Opt.delay, dlc - 1, prio=i * 8 + t * 4 + r)
                es.append(e); fl.append(e)
            for h in range(2):
                v = Sreg(i, t) + 2 * h
                fl.append(F(f"v_cvt_pk_bf16_f32 v{P0+i*4+t*2+h}, v{v}, v{v+1}", 4, 0, dlc, deps=es[2*h:2*h+2], prio=i * 8 + t * 4 + 2*h + 1))
    for k, r in enumerate(k_reads(nslot)):
        fl.append(F(r, Opt.ldscost if (nq == 5 and not store) else 4, nA, n - 10, prio=500 + k))
    pre = {0: ["s_waitcnt lgkmcnt(0)"]}
    if w3: spread(fl, ring_dma(slot, "0x2000"), nA, n - 1, 600)
    pre[nA] = [f"s_waitcnt {'vmcnt(32) ' if w3 else ''}lgkmcnt(0)", "s_barrier"]
    if store:
        qs = {0: [0, 1, 2], 1: [3, 4, 5], 2: [6, 7], 3: []}[slot]
        for k, q in enumerate(qs):
            pos = (10 + k * (n - 24) // 3) if k < 2 else n - 22
            st = F(f"buffer_store_dwordx4 {vq(QLO + 4*q)}, v{VOD}, s[20:23], s{SQ[q//4]} offen offset:{(q%4)*1024}{Opt.st_o}", 4, pos, pos + 8, prio=700 + k)
            fl.append(st)
            prev = st
            for src, dst in [(q + 8, q)] + ([(q + 16, q + 8)] if (q + 16 < 4 * nq) else []):
                for h in range(2):
                    m = F(f"v_mov_b64 v[{QLO+4*dst+2*h}:{QLO+4*dst+2*h+1}], v[{QLO+4*src+2*h}:{QLO+4*src+2*h+1}]", 4, 0, n - 1, deps=[prev], prio=800 + k, depgap=2 if prev is st else 0)
                    fl.append(m); prev = m
        if slot == 3:
            q0 = 4 * nq - 8
            prev = None
            for s in range(4):
                ad = F(f"v_xad_u32 v{1 + s%2}, v{VVA+2*s}, v{VCX}, v{VCY}", 4, nA, n - 12 + 2 * s, deps=[prev] if prev else [], prio=750, depgap=0)
                fl.append(ad); prev = ad
                for u in range(2):
                    for t in range(2):
                        b = QLO + 4 * (q0 + 2 * s + u) + 2 * t
                        r = F(f"ds_read_b64_tr_b16 v[{b}:{b+1}], v{1 + s%2} offset:{t*4096 + u*8}", 4, nA, n - 11 + 2 * s + u, deps=[prev], prio=751, depgap=0)
                        fl.append(r); prev = r
            fl.append(F("\n".join(f"s_mov_b32 s{SQ[k]}, s{SQ[k+2]}" for k in range(3)), 8, 0, n - 2, prio=900))
            fl.append(F("\n".join(f"s_mov_b32 s{SQ[k]}, s{SQ[k+2]}" for k in range(3, 6)), 8, 0, n - 1, deps=[fl[-1]], prio=901))
    out, over = schedule(mf, fl, 8, pre)
    return out

def maxpass_mf(nq, qbase):
    return [f"{MF} {vq(P0 + 4*i)}, {aq(A_K + s*4)}, {Q(i, s, qbase)}, {vq(P0 + 4*i) if s else 0}" for i in range(nq) for s in range(4)]
def max_finish(nq):
    L = []
    for sw in ("v_permlane32_swap_b32", "v_permlane16_swap_b32"):
        for i in range(nq): L.append(f"v_mov_b32 v{P0+4*i+1}, v{P0+4*i}")
        for i in range(nq): L.append(f"{sw} v{P0+4*i}, v{P0+4*i+1}")
        for i in range(nq): L.append(f"v_max_f32 v{P0+4*i}, v{P0+4*i}, v{P0+4*i+1}")
    for i in range(nq):
        for r in range(4): L.append(f"v_xor_b32 v{NM0+i*4+r}, 0x80000000, v{P0+4*i}")
    return L
def max_chain(nq):
    L = [f"v_max3_f32 v{P0+4*i}, v{P0+4*i}, v{P0+4*i+1}, v{P0+4*i+2}" for i in range(nq)]
    L += [f"v_max_f32 v{P0+4*i}, v{P0+4*i}, v{P0+4*i+3}" for i in range(nq)]
    return L + max_finish(nq)
def zero16(b, z=ZQ): return f"{MF32} a[{b}:{b+15}], {z}, {z}, 0"
def zero_L(nq):
    return [zero16(A_L)] + ([f"{MF} {aq(A_L+16)}, {ZQ}, {ZQ}, 0"] if nq == 5 else [])

_Q = [("v", 176 + 4 * k) for k in range(20)] + [("a", 160 + 4 * k) for k in range(24)]
AQ = [_Q[0:8], _Q[8:16], _Q[20:28], [("v", 32 + 4 * k) for k in range(8)]]
BQ = [_Q[16:20] + _Q[28:44], [("v", 96 + 4 * k) for k in range(20)]]
def _q(t): return f"{t[0]}[{t[1]}:{t[1]+3}]"
def fa(st, nu): return _q(AQ[st][nu])
def fb(hb, st, i): return _q(BQ[hb][st * 5 + i])
VO2, VW2, VRW, VRR = 4, 9, 13, 16
def ld_a(st, nu, tag):
    so = f"s{sHW}" if st == 0 else f"s{sG1 + st - 1}"
    return f"buffer_load_dwordx4 {fa(st, nu)}, v{VW2 + nu//2}, s[4:7], {so} offen offset:{(nu%2)*1024}{Opt.ld_wo} ; tag=A{st}{nu//2}:{tag}"
def ld_b(hb, st, i, tag):
    return f"buffer_load_dwordx4 {fb(hb, st, i)}, v{VO2 + i}, s[8:11], s{sHO} offen offset:{st*1024}{Opt.ld_o} ; tag=B{st}:{tag}"
def op_wsoff():
    return [f"s_add_u32 s{sG1 + st - 1}, s{sHW}, {st*8192}" for st in range(1, 4)]
def op_setup():
    L = [f"s_lshl_b32 s{sT0}, s{sBR}, 3", f"s_add_u32 s{sT0}, s{sT0}, s{sB2}", f"s_mul_i32 s{sT0}, s{sT0}, 19", f"s_mul_i32 s{sT1}, s{sQG}, 5",
         f"s_add_u32 s{sT0}, s{sT0}, s{sT1}", f"s_lshl_b32 s{sT0}, s{sT0}, 17", f"s_add_u32 s8, s{sWS}, s{sT0}", f"s_addc_u32 s9, s{sWS+1}, 0",
         f"s_sub_u32 s10, 19, s{sT1}", "s_lshl_b32 s10, s10, 17"]
    for i in range(5): L.append(f"v_add_u32 v{VO2+i}, {i*131072}, v{VOD}")
    for p in range(4):
        L += [f"s_add_u32 s{sT0}, s{sWAVE}, {p}", f"s_and_b32 s{sT0}, s{sT0}, 3", f"s_lshl_b32 s{sT0}, s{sT0}, 11", f"v_add_u32 v{VW2+p}, s{sT0}, v{VOD}"]
    L += [f"s_lshl_b32 s{sHO}, s{sWAVE}, 13", f"s_lshl_b32 s{sHW}, s{sWAVE}, 16"] + op_wsoff()
    return L
def op_loads0():
    L = []
    for st in range(4):
        L += [ld_b(0, st, i, 0) for i in range(5)]
        if st < 3: L += [ld_a(st, nu, 0) for nu in range(8)]
    return L
def op_advance():
    return [f"s_add_u32 s{sHW}, s{sHW}, 0x40000", f"s_cmp_ge_u32 s{sHW}, 0x100000", f"s_cselect_b32 s{sT0}, {0x100000 - 0x8000}, 0",
            f"s_sub_u32 s{sHW}, s{sHW}, s{sT0}", f"s_lshr_b32 s{sHO}, s{sHW}, 3"] + op_wsoff()

def own_word(val):
    return [f"s_lshl_b32 s{sT0}, s{sBR}, 3", f"s_add_u32 s{sT0}, s{sT0}, s{sB1}", f"s_lshl_b32 s{sT0}, s{sT0}, 7", f"s_lshl_b32 s{sT1}, s{sH0}, 1",
            f"s_add_u32 s{sT0}, s{sT0}, s{sT1}", f"s_add_u32 s{sT0}, s{sT0}, {FLW}", f"v_mov_b32 v1, s{sT0}", f"v_mov_b32 v2, {val}", "s_mov_b64 exec, 1",
            f"global_store_dword v1, v2, s[{sWS}:{sWS+1}] sc0 sc1", "s_mov_b64 exec, -1"]
def signal(a, parity):
    if parity == 1:
        for l in own_word(16): a(l)
        return
    a(f"s_lshl_b32 s{sT0}, s{sBR}, 3\ns_add_u32 s{sT0}, s{sT0}, s{sB1}\ns_lshl_b32 s{sT0}, s{sT0}, 2")
    a(f"v_mov_b32 v1, s{sT0}\nv_mov_b32 v2, 1\ns_mov_b64 exec, 1")
    a(f"global_atomic_add v1, v2, s[{sDBG}:{sDBG+1}] sc1\ns_mov_b64 exec, -1")
def poll_issue(a, parity):
    if parity == 0:
        a(f"s_lshl_b32 s{sT0}, s{sBR}, 5\nv_and_b32 v30, 7, v0\nv_lshl_add_u32 v30, v30, 2, s{sT0}")
    else:
        a(f"s_lshl_b32 s{sT0}, s{sBR}, 3\ns_add_u32 s{sT0}, s{sT0}, s{sB2}\ns_lshl_b32 s{sT0}, s{sT0}, 7\ns_add_u32 s{sT0}, s{sT0}, {FLW}")
        a(f"v_and_b32 v30, 15, v0\nv_lshl_add_u32 v30, v30, 2, s{sT0}")
    b = sWS if parity else sDBG
    a(f"global_load_dword v31, v30, s[{b}:{b+1}] sc0 sc1")
def poll_wait(a, parity, lbl, done, first_wait="vmcnt(0)"):
    b = sWS if parity else sDBG
    a(f"s_mov_b32 s{sT1}, 0x20000\ns_waitcnt {first_wait}")
    a.label(lbl)
    a(f"v_cmp_gt_u32 vcc, 16, v31\ns_sub_u32 s{sT1}, s{sT1}, 1\ns_cmp_eq_u32 s{sT1}, 0\ns_cbranch_scc1 {done}")
    a(f"s_nop 2\ns_cbranch_vccz {done}")
    a(f"global_load_dword v31, v30, s[{b}:{b+1}] sc0 sc1\ns_sleep 4\ns_waitcnt vmcnt(0)\ns_branch {lbl}")

def oproj(a):
    a.label("L_op")
    pstamp(a, 9)
    pro = [ld_a(3, nu, 0) for nu in range(8)] + op_advance() + [f"s_mov_b32 s{sCNT}, 8"]
    def kstep_mf(hb, st):
        return [f"{MF} {aq((i*8+nu)*4)}, {fa(st, nu)}, {fb(hb, st, i)}, {aq((i*8+nu)*4)}" for nu in range(8) for i in range(5)]
    def kstep_waits(st, tag):
        pre = {10 * p: [f"s_waitcnt vmcnt(?A{st}{p}:{tag})"] for p in range(4)}
        pre[0] = [f"s_waitcnt vmcnt(?B{st}:{tag})"] + pre[0]
        return pre
    halves = []
    for hb in range(2):
        body = []
        for st in range(4):
            fl = []
            for i in range(5): fl.append(F(ld_b(hb ^ 1, st, i, hb + 1), 4, Opt.bpos * i + 2, Opt.bpos * i + 4, prio=i))
            for nu in range(8): fl.append(F(ld_a(st, nu, hb + 1), 4, min(39, 5 * nu + 5), min(39, 5 * nu + 8), prio=100 + nu))
            out, over = schedule(kstep_mf(hb, st), fl, 4, kstep_waits(st, hb))
            body += [f"@HOOK{hb}{st}@:"] + out
        body += op_advance() + [f"s_sub_u32 s{sCNT}, s{sCNT}, 1"]
        halves.append(body)
    mf = kstep_mf(1, 0)
    fl = []
    RQ = [176 + 4 * k for k in range(8)] + [240 + 4 * k for k in range(4)] + [96 + 4 * k for k in range(5)] + [208 + 4 * k for k in range(8)] + [116 + 4 * k for k in range(5)]
    AC = 56
    for p in (1, 2, 3, 0):
        for i in range(5):
            for e in range(2):
                nu = 2 * p + e
                b = (i * 8 + nu) * 4
                for st in (1, 2, 3): mf.append(f"{MF} {aq(b)}, {fa(st, nu)}, {fb(1, st, i)}, {aq(b)}")
                g = len(mf) - 1
                if p: fl.append(F(f"ds_write_b128 v{VRW+p-1}, a[{b}:{b+3}] offset:{(i*2+e)*1024}", 8, g + 6, g + 8))
                elif g + 6 < 159:
                    for r in range(4): fl.append(F(f"v_accvgpr_read_b32 v{AC+(i*2+e)*4+r}, a{b+r}", 4, g + 5, 159, prio=50))
    misc = []
    for p in range(1, 4):
        misc += [f"s_add_u32 s{sT0}, s{sWAVE}, {p}", f"s_and_b32 s{sT0}, s{sT0}, 3", f"s_mul_i32 s{sT0}, s{sT0}, 30720",
                 f"s_add_u32 s{sT0}, s{sT0}, {(p-1)*10240}", f"v_add_u32 v{VRW+p-1}, s{sT0}, v{VOD}"]
    misc += [f"s_mul_i32 s{sT0}, s{sWAVE}, 30720", f"v_add_u32 v{VRR}, s{sT0}, v{VOD}",
             "v_and_b32 v3, 15, v0", "v_and_b32 v1, 48, v0",
             f"s_mul_i32 s{sT0}, s{sB2}, 304", f"s_mul_i32 s{sT1}, s{sQG}, 80", f"s_add_u32 s{sT0}, s{sT0}, s{sT1}",
             f"s_lshl_b32 s{sT0}, s{sT0}, 11", f"s_lshl_b32 s{sT1}, s{sBR}, 10", f"s_add_u32 s{sT0}, s{sT0}, s{sT1}", f"s_lshl_b32 s{sT1}, s{sN4}, 8",
             f"s_add_u32 s{sT0}, s{sT0}, s{sT1}", f"s_lshl_b32 s{sT1}, s{sWAVE}, 6", f"s_add_u32 s{sT0}, s{sT0}, s{sT1}",
             "v_lshl_add_u32 v2, v3, 11, v1", f"v_add_u32 v2, s{sT0}, v2",
             f"s_mov_b32 s16, s{sOUT}", f"s_mov_b32 s17, s{sOUT+1}", f"s_mov_b32 s18, {8*304*1024*2}"]
    spread(fl, [(m, 4) for m in misc], 0, 38, 10)
    BG = 146
    rds = []
    for i in range(5):
        for p in range(3):
            for e in range(2):
                b = RQ[i * 6 + p * 2 + e]
                rds.append(f"ds_read_b128 v[{b}:{b+3}], v{VRR} offset:{p*10240 + (i*2+e)*1024}")
    for k, r in enumerate(rds[:14]): fl.append(F(r, 4, BG + k, BG + k, prio=k))
    tpre = kstep_waits(0, 7)
    tpre.update({39: ["s_waitcnt vmcnt(?B3:7)"], 40: ["s_waitcnt vmcnt(?A31:7)"], 70: ["s_waitcnt vmcnt(?A32:7)"], 100: ["s_waitcnt vmcnt(0)"],
                 BG: ["s_waitcnt lgkmcnt(0)", "s_barrier"]})
    tail, over = schedule(mf, fl, 8, tpre)
    done = set(tail)
    tail += rds[14:]
    for i in range(5):
        for e in range(2):
            for r in range(4):
                l = f"v_accvgpr_read_b32 v{AC+(i*2+e)*4+r}, a{(i*8+e)*4+r}"
                if l not in done: tail.append(l)
    OF = 32
    for i in range(5):
        if i == 4: tail.append("@LAST@:")
        if i != 1: tail.append(f"s_waitcnt lgkmcnt({min(14, 6 * (4 - i))})")
        for p in range(3):
            for e in range(2):
                for r in range(0, 4, 2):
                    d = AC + (i * 2 + e) * 4 + r; b = RQ[i * 6 + p * 2 + e] + r
                    tail.append(f"v_pk_add_f32 v[{d}:{d+1}], v[{d}:{d+1}], v[{b}:{b+1}]")
        b = AC + i * 8; d = OF + i * 4
        tail.append(f"s_mov_b32 s{sT0}, {i*32768}")
        for r in range(4): tail.append(f"v_cvt_pk_bf16_f32 v{d+r}, v{b+2*r}, v{b+2*r+1}")
        tail.append(f"buffer_store_dwordx4 v[{d}:{d+3}], v2, s[16:19], s{sT0} offen{Opt.st_out}")
    tail = waits.insert_lgkm(tail, loop=False)
    per = {f"B{st}": 2 for st in range(4)}
    per.update({f"A{st}{p}": 2 for st in range(4) for p in range(4)})
    body = halves[0] + ["@MID@:"] + halves[1]
    last = [re.sub(r"(tag=\w+|\?\w+):(\d)", lambda m: f"{m.group(1)}:{int(m.group(2)) + 6}", l) for l in halves[0]]
    _, pro, body, last, tail = waits.resolve_vm([(op_loads0(), 1, {}), (pro, 1, {}), (body, 3, per), (last, 1, {}), (tail, 1, {})])
    for l1, l2 in zip(body, last):
        if "vmcnt" in l1: assert int(re.search(r"vmcnt\((\d+)", l1).group(1)) <= int(re.search(r"vmcnt\((\d+)", l2).group(1))
    for l in fix_hazards(pro): a(l)
    for i in range(5):
        if i == 4: a(f"s_cmp_eq_u32 s{sWAVE}, 3\ns_cbranch_scc1 L_opl")
        a(f"s_add_u32 s{sT1}, s{sOOFF}, {i*131072 + 4096}")
        for s in range(4): a(f"buffer_store_dwordx4 {vq(QLO + (i*4+s)*4)}, v{VOD}, s[20:23], s{sT1} offen offset:{s*1024}{Opt.st_o}")
    for e in hazard.check(body + body, "op")[:10]: print(e)
    a.label("L_opl")
    a("; noalign")
    ks = Opt.poll_ks
    for l in body:
        if l == "@MID@:":
            a(f"s_cmp_eq_u32 s{sCNT}, 1\ns_cbranch_scc1 L_opt"); continue
        m = re.match(r"@HOOK(\d)(\d)@:", l)
        if not m: a(l); continue
        hb, st = int(m.group(1)), int(m.group(2))
        if (hb, st) == ((ks // 4) % 2, ks % 4):
            a(f"s_cmp_eq_u32 s{sCNT}, {8 - ks // 4}\ns_cbranch_scc1 L_oe_pi"); a.label("L_or_pi")
        if (hb, st) == (1, 1):
            a(f"s_cmp_eq_u32 s{sCNT}, 7\ns_cbranch_scc1 L_oe_sig"); a.label("L_or_sig")
        if (hb, st) == (1, 0):
            a(f"s_cmp_eq_u32 s{sCNT}, 5\ns_cbranch_scc1 L_oe_pw"); a.label("L_or_pw")
    a("s_branch L_opl")
    a.label("L_oe_pi")
    poll_issue(a, 1)
    a("s_branch L_or_pi")
    a.label("L_oe_sig")
    pstamp(a, 10)
    a(f"v_mov_b32 v1, {FLAG + 8}\nv_mov_b32 v2, 1\ns_mov_b64 exec, 1\nds_add_rtn_u32 v3, v1, v2\ns_mov_b64 exec, -1\ns_waitcnt lgkmcnt(0)")
    a(f"v_readfirstlane_b32 s{sT0}, v3\ns_nop 3\ns_cmp_lg_u32 s{sT0}, 3\ns_cbranch_scc1 L_or_sig")
    signal(a, 1)
    a("s_branch L_or_sig")
    a.label("L_oe_pw")
    pstamp(a, 11); pstamp(a, 12)
    poll_wait(a, 1, "L_pw1", "L_or_pw", f"vmcnt({13 * (12 - ks)})")
    a.label("L_opt")
    pstamp(a, 13)
    tl = fix_hazards(tail, halves[0][-26:])
    k = max(j for j, l in enumerate(tl) if l.startswith("v_mfma"))
    for l in tl[:k + 1]: a(l)
    a("; align")
    for l in tl[k + 1:]:
        if l == "@LAST@:": a(f"s_cmp_eq_u32 s{sQG}, 3\ns_cbranch_scc1 L_fin")
        else: a(l)

def kv_switch():
    return ["s_mov_b32 s12, s24", "s_mov_b32 s13, s25", "s_mov_b32 s14, 0x80000", "s_mov_b32 s16, s28", "s_mov_b32 s17, s29", "s_mov_b32 s18, 0x80000",
            f"s_mov_b32 s{sRAW}, 0", f"s_mov_b32 s{sDOFF}, s{sROT}", f"s_mov_b32 s{sMH}, 0xfffc0000", f"s_mov_b32 s{sML}, 0x3e000",
            f"s_movk_i32 s{sINC0}, 0x2000", f"s_movk_i32 s{sINC1}, 0x2000", f"s_movk_i32 s{sG1}, 0x1000", f"s_mov_b32 s{sG2}, 0", f"s_movk_i32 s{sG3}, 0x1000"]

def variant(a, nq, tag):
    w3 = nq == 4
    RC = VRC(nq)
    pro = ["v_lshrrev_b32 v2, 2, v30", "v_and_b32 v3, 1, v31", "v_lshl_add_u32 v3, v3, 2, v2", "v_bfe_u32 v1, v30, 1, 1", "v_xor_b32 v3, v3, v1",
           "v_lshl_add_u32 v2, v31, 3, v2", "v_lshlrev_b32 v2, 8, v2", "v_and_b32 v1, 1, v30", "v_lshl_add_u32 v2, v1, 4, v2"]
    for s in range(4): pro += [f"v_xor_b32 v1, {2*s}, v3", f"v_lshl_add_u32 v{VWA(nq)+s}, v1, 5, v2"]
    if w3:
        pro += ["v_xor_b32 v1, v30, v31"]
        for j in range(4): pro += [f"v_xor_b32 v2, {4*j}, v1", "v_lshlrev_b32 v2, 4, v2", f"v_lshl_add_u32 v{VPK+j}, v31, 8, v2", f"v_mov_b32 v{VDB+j}, v{VDA+j}"]
        pro += ["v_lshrrev_b32 v2, 1, v30", "v_xor_b32 v2, v2, v31", "v_and_b32 v3, 1, v30", "v_lshlrev_b32 v3, 4, v3"]
        for j in range(4): pro += [f"v_xor_b32 v1, {4*(j%2)}, v2", "v_lshl_add_u32 v1, v1, 5, v3", f"v_lshl_add_u32 v{VPV+j}, v31, 8, v1"]
        pro += [f"v_mov_b32 v1, {FLAG}", "ds_write_b64 v1, v[32:33]", "ds_write_b64 v1, v[32:33] offset:8"]
    else: pro += flat(x_dma(nq, 1, 1))
    pro += ["s_waitcnt vmcnt(?X:0) lgkmcnt(0)", "s_barrier"]
    pro += x_reads(nq, 0, 0) + w_reads(nq, 0, 0) + w_reads(nq, 0, 1)
    if w3: pro += flat(x_dma(nq, 1, 1)) + flat(ring_dma(2, f"s{sINC0}", 2))
    pro += [f"s_mov_b32 s{sCNT}, 4", "s_waitcnt lgkmcnt(0)"]
    body = []
    for u in range(4):
        if u == 1: body.append("@SWITCH@:")
        body += qproj_unit(nq, u)
    body = waits.insert_lgkm(body)
    _, pro, body = waits.resolve_vm([(first_loads(), 1, {}), (pro, 1, {}), (body, 4, {"R": 4, "X": 2})])
    for l in fix_hazards(pro): a(l)
    pstamp(a, 1)
    for e in hazard.check(body + body, f"q{tag}")[:10]: print(e)
    a.label(f"L_q{tag}")
    a("; noalign")
    a(f"s_cmp_eq_u32 s{sCNT}, 1\ns_cselect_b32 s10, 0, s10\ns_cselect_b32 s{sM0X}, 0x28000, s{sM0X}")
    for l in body:
        if l == "@SWITCH@:":
            if w3: a(f"s_cmp_eq_u32 s{sCNT}, 1\ns_cbranch_scc1 L_qs{tag}"); a.label(f"L_qn{tag}")
        else: a(l)
    a(f"s_sub_u32 s{sCNT}, s{sCNT}, 1\ns_cmp_lg_u32 s{sCNT}, 0\ns_cbranch_scc1 L_q{tag}")
    a("; align")
    pstamp(a, 2)
    def conv(sb, d):
        L = [f"v_pk_mul_f32 v[{sb+r}:{sb+r+1}], v[{sb+r}:{sb+r+1}], s[{sSC}:{sSC+1}]" for r in range(0, 8, 2)]
        return L + [f"v_cvt_pk_bf16_f32 v{d+r}, v{sb+2*r}, v{sb+2*r+1}" for r in range(3, -1, -1)]
    cv = ["s_waitcnt lgkmcnt(0)"] + k_reads(0)
    side = flat(ring_dma(3, "0x2000")) if w3 else kv_switch()
    side2 = ["v_and_b32 v1, 63, v0", f"v_lshlrev_b32 v{VOD}, 4, v1", "v_lshrrev_b32 v2, 1, v30", "v_xor_b32 v2, v2, v31", "v_and_b32 v3, 1, v30", "v_lshlrev_b32 v3, 4, v3",
             "v_lshl_add_u32 v3, v31, 10, v3"]
    for jj in range(4): side2 += [f"v_xor_b32 v1, {4*(jj%2)}, v2", "v_lshl_add_u32 v1, v1, 5, v3", f"v_add_u32 v{VWD+jj}, {jj*3072}, v1"]
    side2 += [f"s_lshl_b32 s{sT0}, s{sB1}, 4", f"s_lshr_b32 s{sT1}, s{sH0}, 1", f"s_add_u32 s{sHO}, s{sT0}, s{sT1}",
              f"s_and_b32 s{sT0}, s{sHO}, 3", f"s_lshl_b32 s{sT0}, s{sT0}, 8", f"s_add_u32 s4, s{sWO}, s{sT0}", f"s_addc_u32 s5, s{sWO+1}, 0",
              f"s_sub_u32 s6, 0x400000, s{sT0}", f"s_and_b32 s{sT0}, s{sHO}, -4", f"s_add_u32 s{sT0}, s{sT0}, s{sWAVE}",
              f"s_lshl_b32 s{sT0}, s{sT0}, 15", f"s_mul_i32 s{sM0X}, s{sWAVE}, 10240", f"s_add_u32 s{sM0X}, s{sM0X}, {XB}"]
    for G in range(2):
        side2 += [f"s_add_u32 m0, s{sM0X}, {G*4096}", f"s_add_u32 s{sT1}, s{sT0}, {G*16384}"]
        side2 += [f"buffer_load_dwordx4 v{VWD+jj}, s[4:7], s{sT1} offen offset:{jj*1024} nt lds" for jj in range(4)]
    side2 += ["v_mov_b32 v1, 0x3f803f80"] + [f"v_accvgpr_write_b32 a{A_ONES+r}, v1" for r in range(4)]
    side2 += [f"s_mov_b32 s{sHEAD}, 0", f"s_mov_b32 s{sREDO}, 0", f"s_mov_b32 s{sLAST}, 0", f"s_mov_b32 s{sEV}, 0", f"s_mov_b32 s{sCNT}, 8"]
    c1 = []
    for k in range(27, -1, -1):
        fi = k - 8 if k >= 8 else k + 12
        if fi // 4 < nq: c1 += conv(32 + 8 * k, 144 + 4 * k)
    zs = [zero16(b) for b in range(96, 32 * nq, 16)] + zero_L(nq)
    cv += weave(weave(c1, side + side2, 2), zs, 24, 40)
    if w3: cv += own_word(0)
    c2 = []
    for fi in range(12):
        tb = 32 + 8 * (fi % 3)
        c2 += [f"v_accvgpr_read_b32 v{tb+r}, a{8*fi+r}" for r in range(8)]
        if fi % 2: c2.append(zero16(8 * (fi - 1)))
        c2 += conv(tb, QLO + 4 * fi)
    mp = maxpass_mf(nq, QTOP)
    cv += ["s_waitcnt lgkmcnt(0)"] + weave(weave(c2[:4 * len(mp)], mp, 4) + c2[4 * len(mp):], max_chain(nq), 2, 5 * len(mp) + 8)
    if Opt.trace and not w3: cv += ["s_mov_b32 s47, 0", "v_mov_b32 v17, 0", "v_mov_b32 v18, 0"]
    for l in fix_hazards(cv, body[-26:]): a(l)
    pstamp(a, 3)
    a(f"s_branch L_loop{tag}")
    if w3:
        a.label(f"L_qs{tag}")
        for l in kv_switch(): a(l)
        for j in range(4): a(f"v_mov_b32 v{VDA+j}, v{VPK+j}\nv_mov_b32 v{VDB+j}, v{VPV+j}")
        a(f"s_branch L_qn{tag}")
    def og_pre(k):
        i, s = k // 4, k % 4
        tb = 32 + 8 * (k % 3)
        g = [f"v_accvgpr_read_b32 v{tb+r}, a{A_O + (i*8+2*s)*4 + r}" for r in range(8)]
        rc = RC[i]
        return g + [f"v_pk_mul_f32 v[{tb+r}:{tb+r+1}], v[{tb+r}:{tb+r+1}], v[{rc}:{rc+1}] op_sel_hi:[1,0]" for r in range(0, 8, 2)]
    def og_post(k):
        tb = 32 + 8 * (k % 3); d = QLO + k * 4
        return [f"v_cvt_pk_bf16_f32 v{d+r}, v{tb+2*r}, v{tb+2*r+1}" for r in range(4)]
    def og_rest(z):
        L = []
        for k in range(4 * nq):
            if k >= 3: L += og_pre(k)
            if k % 2 and k >= 3: L.append(zero16(8 * (k - 1), z))
            if k == 3: L.append(zero16(0, z))
            L += og_post(k)
        return L
    def steps(store):
        body = []
        for st in range(4):
            if Opt.trace and not w3:
                body += ["s_mov_b32 m0, s47", "s_add_u32 s47, s47, 1", "v_writelane_b32 v17, s98, m0", "v_writelane_b32 v18, s100, m0",
                         "s_memrealtime s[98:99]", "s_memtime s[100:101]"]
            if not store and not w3:
                if st == 2: body.append("s_waitcnt vmcnt(0)")
                if st == 3: body.append("@EV@:")
            body += attn_step(nq, st, store)
        for e in hazard.check(body + body, f"a{tag}")[:10]: print(e)
        return body
    a.label(f"L_t1{tag}")
    mv = [f"v_mov_b64 v[{QTOP+r}:{QTOP+r+1}], v[{QLO+r}:{QLO+r+1}]" for r in range(0, nq * 16, 2)]
    T = 131072
    sc = [f"s_lshl_b32 s{sT0}, s{sBR}, 22", f"s_add_u32 s{sT0}, s{sT0}, {WOP}", f"s_lshl_b32 s{sT1}, s{sN4}, 20", f"s_add_u32 s{sT1}, s{sT1}, s{sT0}",
          f"s_add_u32 s4, s{sWS}, s{sT1}", f"s_addc_u32 s5, s{sWS+1}, 0", "s_mov_b32 s6, 0x100000",
          f"s_and_b32 s{sT1}, s{sHO}, 3", f"s_lshl_b32 s{sT1}, s{sT1}, 20", f"s_add_u32 s{sT0}, s{sT0}, s{sT1}", f"s_and_b32 s{sT1}, s{sHO}, -4",
          f"s_add_u32 s{sT1}, s{sT1}, s{sWAVE}", f"s_lshl_b32 s{sT1}, s{sT1}, 13", f"s_add_u32 s{SQ[nq]}, s{sT0}, s{sT1}", f"s_add_u32 s{SQ[nq+1]}, s{SQ[nq]}, 4096"]
    if nq == 5: sc.append(f"s_mov_b32 s{SQ[7]}, s{SQ[5]}")
    sc += [f"s_add_u32 s{SQ[i]}, s{sOOFF}, {i*T}" for i in range(nq)]
    sc += [f"s_mov_b32 s{sHEAD}, 1", f"s_mov_b32 s{sLAST}, 1", f"s_mov_b32 s{sREDO}, 0", f"s_mov_b32 s{sCNT}, 8"]
    if not w3: sc += [f"s_cmp_eq_u32 s{sWAVE}, 0\ns_cselect_b32 s{sEV}, 4, 0"]
    sc += ["v_and_b32 v1, 2, v0", f"v_lshlrev_b32 v{VCX}, 4, v1", "v_and_b32 v2, 1, v0", "v_sub_u32 v1, v2, v1", f"v_lshl_add_u32 v{VCY}, v1, 3, s{sM0X}"]
    t1 = weave(mv, maxpass_mf(nq, QLO), 2) + zero_L(nq) + weave(weave(og_rest(ZQ), max_chain(nq), 4, 8), sc, 8)
    t1 = "\n".join(t1).split("\n")
    for l in fix_hazards(t1): a(l)
    pstamp(a, 5); pstamp(a, 6)
    a.label(f"L_loopS{tag}")
    a("; noalign")
    bodyS = steps(True)
    for e in hazard.check(t1[-26:] + bodyS, f"t1{tag}")[:10]: print(e)
    for l in bodyS: a(l)
    a(f"s_sub_u32 s{sCNT}, s{sCNT}, 1\ns_cmp_lg_u32 s{sCNT}, {5 if w3 else 4}\ns_cbranch_scc1 L_loopS{tag}")
    a.label(f"L_loop{tag}")
    body = steps(False)
    for e in hazard.check(cv[-26:] + body, f"t0{tag}")[:10]: print(e)
    if w3: a(f"s_cmp_eq_u32 s{sCNT}, s{sLAST}\ns_cselect_b32 s14, 0, s14\ns_cselect_b32 s18, 0, s18")
    for l in body:
        if l == "@EV@:":
            a(f"s_cmp_eq_u32 s{sCNT}, s{sEV}\ns_cbranch_scc1 L_ev{tag}"); a.label(f"L_evr{tag}")
        else: a(l)
    a(f"s_sub_u32 s{sCNT}, s{sCNT}, 1\ns_cmp_lg_u32 s{sCNT}, 0\ns_cbranch_scc1 L_loop{tag}")
    a("; align")
    if Opt.stamps:
        a(f"s_cmp_eq_u32 s{sHEAD}, 1\ns_cbranch_scc1 L_ps{tag}")
        pstamp(a, 4)
        a.label(f"L_ps{tag}")
        pstamp(a, 7)
    ep = [f"s_lshl_b32 s{sT0}, s{sHEAD}, 2", f"s_add_u32 s{sT0}, s{sT0}, {FLAG}", f"v_mov_b32 v1, s{sT0}", "v_mov_b32 v2, 1"]
    ep += [f"v_accvgpr_read_b32 v{RC[i]}, a{A_L+4*i}" for i in range(nq)]
    ep += [f"v_max3_f32 v3, v{RC[0]}, v{RC[1]}, v{RC[2]}", f"v_max3_f32 v3, v3, v{RC[3]}, v{RC[nq-1]}", f"v_cmp_ngt_f32 vcc, s{sTHR}, v3"]
    ep += [f"v_rcp_f32 v{RC[i]}, v{RC[i]}" for i in range(nq)]
    ep = fix_hazards(ep, body[-26:])
    for l in ep: a(l)
    a(f"s_cbranch_vccnz L_ovf{tag}")
    a.label(f"L_nof{tag}")
    a("s_waitcnt lgkmcnt(0)\ns_barrier\nds_read_b32 v3, v1")
    ep = og_pre(0) + og_pre(1) + og_pre(2) + ["s_waitcnt lgkmcnt(0)", f"v_readfirstlane_b32 s{sT0}, v3"]
    for l in fix_hazards(ep): a(l)
    a(f"s_nop 3\ns_andn2_b32 s{sT0}, s{sT0}, s{sREDO}\ns_cmp_lg_u32 s{sT0}, 0\ns_cbranch_scc1 L_redo{tag}")
    a(f"s_cmp_eq_u32 s{sHEAD}, 0\ns_cbranch_scc1 L_t1{tag}")
    e1 = op_setup() + ["v_mov_b64 v[64:65], 0", "v_mov_b64 v[66:67], 0"]
    rest = og_rest("v[64:67]")
    if w3: rest += [zero16(128, "v[64:67]"), zero16(144, "v[64:67]")]
    e1 += weave(rest, op_loads0(), Opt.ldgap if not w3 else Opt.ldgap - 1)
    if Opt.trace and not w3:
        e1 += [f"s_lshl_b32 s{sT0}, s2, 9", f"s_add_u32 s{sT0}, s{sT0}, {STAMP_OFF + 131072}", "v_lshlrev_b32 v1, 2, v0", f"v_add_u32 v1, s{sT0}, v1",
               "v_cmp_gt_u32 vcc, 64, v0", "s_nop 4", "s_mov_b64 exec, vcc", "s_cbranch_execz L_tr",
               f"global_store_dword v1, v17, s[{sWS}:{sWS+1}]", f"global_store_dword v1, v18, s[{sWS}:{sWS+1}] offset:256", "L_tr:", "s_mov_b64 exec, -1"]
    for l in fix_hazards(e1): a(l)
    pstamp(a, 8)
    a("s_branch L_op")
    a.label(f"L_ovf{tag}")
    a(f"ds_write_b32 v1, v2\ns_branch L_nof{tag}")
    if not w3:
        a.label(f"L_ev{tag}")
        a(f"s_cmp_eq_u32 s{sEV}, 2\ns_cbranch_scc1 L_ev2\ns_cmp_eq_u32 s{sEV}, 1\ns_cbranch_scc1 L_ev1")
        signal(a, 0)
        a(f"s_mov_b32 s{sEV}, 2\ns_branch L_evr{tag}")
        a.label("L_ev2")
        poll_issue(a, 0)
        a(f"s_mov_b32 s{sEV}, 1\ns_branch L_evr{tag}")
        a.label("L_ev1")
        a(f"s_mov_b32 s{sEV}, 0")
        poll_wait(a, 0, "L_pw0", f"L_evr{tag}")
    a.label(f"L_redo{tag}")
    a(f"s_mov_b32 s{sREDO}, 1\ns_waitcnt vmcnt(0) lgkmcnt(0)\ns_barrier")
    a(f"s_lshl_b32 s{sRAW}, s{sHEAD}, 18\ns_mov_b32 s14, 0x80000\ns_mov_b32 s18, 0x80000")
    rp = doff_update()
    if w3:
        for sl in range(4): rp += flat(ring_dma(sl, "0x2000")) + ["s_waitcnt vmcnt(16)"]
    for l in fix_hazards(rp): a(l)
    a("v_and_b32 v1, 15, v0\nv_lshlrev_b32 v1, 8, v1\nv_and_b32 v2, 48, v0\nv_add_u32 v1, v1, v2")
    a(f"s_lshl_b32 s{sT0}, s{sHEAD}, 18\ns_mov_b32 s{sCNT}, 64")
    for i in range(nq): a(f"v_mov_b32 v{NM0+i}, 0xff800000")
    a.label(f"L_rl{tag}")
    rb = [f"buffer_load_dwordx4 a[{A_K+4*s}:{A_K+4*s+3}], v1, s[12:15], s{sT0} offen offset:{s*64}" for s in range(4)]
    rb += ["s_waitcnt vmcnt(0)"] + maxpass_mf(nq, QTOP) + ["s_nop 7"]
    for i in range(nq):
        b = P0 + 4 * i
        rb += [f"v_max3_f32 v{NM0+i}, v{NM0+i}, v{b}, v{b+1}", f"v_max3_f32 v{NM0+i}, v{NM0+i}, v{b+2}, v{b+3}"]
    rb.append(f"s_add_u32 s{sT0}, s{sT0}, 0x1000")
    for l in fix_hazards(rb): a(l)
    a(f"s_sub_u32 s{sCNT}, s{sCNT}, 1\ns_cmp_lg_u32 s{sCNT}, 0\ns_cbranch_scc1 L_rl{tag}")
    rb = [f"v_mov_b32 v{P0+4*i}, v{NM0+i}" for i in range(nq)] + max_finish(nq) + [zero16(b) for b in range(0, 32 * nq, 16)] + zero_L(nq)
    rb += ["s_waitcnt vmcnt(0)", "s_barrier"] + k_reads(0) + [f"s_mov_b32 s{sCNT}, 8", "s_nop 7"]
    for l in fix_hazards(rb): a(l)
    a(f"s_branch L_loop{tag}")

def first_loads():
    L = [f"s_lshl_b32 s{sT0}, s{sWAVE}, 12", f"s_mov_b32 m0, s{sT0}", f"s_lshl_b32 s{sT1}, s{sWAVE}, 17"]
    for j in range(4): L.append(f"buffer_load_dwordx4 v{VDA+j}, s[12:15], s{sT1} offen offset:{j*1024}{Opt.nt_kv} lds ; tag=R:0")
    L += [f"s_add_u32 m0, s{sT0}, 16384", f"s_add_u32 s{sT1}, s{sT1}, 256"]
    for j in range(4): L.append(f"buffer_load_dwordx4 v{VDA+j}, s[12:15], s{sT1} offen offset:{j*1024}{Opt.nt_kv} lds ; tag=R:1")
    return L + flat(x_dma(5, 0, 0, list(range(8))))

def late_setup():
    L = []
    for s in range(4):
        L += [f"v_or_b32 v2, {4*s}, v31", "v_xor_b32 v2, v2, v30", "v_lshlrev_b32 v2, 4, v2", f"v_lshl_add_u32 v{VKA+s}, v30, 8, v2"]
    L += ["v_lshrrev_b32 v2, 2, v30", "v_lshl_add_u32 v2, v31, 2, v2", "v_and_b32 v3, 7, v2", "v_lshlrev_b32 v2, 8, v2", "v_and_b32 v1, 3, v30", "v_lshl_add_u32 v2, v1, 3, v2"]
    for dt in range(8): L += [f"v_xor_b32 v1, {dt}, v3", f"v_lshl_add_u32 v{VVA+dt}, v1, 5, v2"]
    L += ["v_lshrrev_b32 v3, 1, v30", "v_xor_b32 v3, v3, v31"]
    for kk in range(2):
        L += [f"v_xor_b32 v2, {4*kk}, v3", "v_lshlrev_b32 v2, 4, v2", "v_lshl_add_u32 v2, v30, 7, v2", f"v_add_u32 v{VXA+kk}, s{sM0X}, v2"]
    L += [f"s_lshl_b32 s{sT0}, s{sB1}, 5", f"s_add_u32 s{sT0}, s{sT0}, s{sH0}", f"s_lshl_b32 s{sT0}, s{sT0}, 18",
          f"s_add_u32 s24, s86, s{sT0}", "s_addc_u32 s25, s87, 0", f"s_add_u32 s28, s88, s{sT0}", "s_addc_u32 s29, s89, 0",
          f"s_mov_b32 s20, s{sWS}", f"s_mov_b32 s21, s{sWS+1}", f"s_mov_b32 s22, {FLW}", "s_mov_b32 s23, 0x20000",
          f"s_lshl_b32 s{sT0}, s{sBR}, 3", f"s_add_u32 s{sT0}, s{sT0}, s{sB1}", f"s_mul_i32 s{sT0}, s{sT0}, {19*131072}",
          f"s_mul_i32 s{sOOFF}, s{sWAVE}, {5*131072}", f"s_add_u32 s{sOOFF}, s{sOOFF}, s{sT0}", f"s_lshl_b32 s{sT0}, s{sH0}, 12", f"s_add_u32 s{sOOFF}, s{sOOFF}, s{sT0}",
          f"s_mov_b32 s{sSC}, {f2u(SCALE):#x}", f"s_mov_b32 s{sSC+1}, {f2u(SCALE):#x}", f"s_mov_b32 s{sTHR}, {f2u(2.0**Opt.thr):#x}", "s_mov_b32 s7, 0x20000",
          f"s_and_b32 s{sB2}, s2, 3", f"s_lshl_b32 s{sB2}, s{sB2}, 1", f"s_lshr_b32 s{sT0}, s2, 7", f"s_add_u32 s{sB2}, s{sB2}, s{sT0}",
          f"s_bfe_u32 s{sQG}, s2, 0x20005", f"s_bfe_u32 s{sN4}, s2, 0x20003",
          f"s_movk_i32 s{sINC0}, 256", f"s_mov_b32 s{sINC1}, {524288-256}", f"s_mov_b32 s{sG1}, 0x20000", f"s_mov_b32 s{sG2}, 0x40000", f"s_mov_b32 s{sG3}, 0x60000",
          "s_mov_b32 s16, s12", "s_mov_b32 s17, s13", "s_mov_b32 s18, s14", "s_mov_b32 s19, 0x20000",
          f"s_mov_b32 s{sRAW}, 0x80000", f"s_mov_b32 s{sDOFF}, 0x80000", f"s_mov_b32 s{sMH}, -1", f"s_mov_b32 s{sML}, 0"]
    if Opt.rot: L += [f"s_lshr_b32 s{sROT}, s2, 5", f"s_xor_b32 s{sROT}, s{sROT}, s2", f"s_and_b32 s{sROT}, s{sROT}, 31", f"s_lshl_b32 s{sROT}, s{sROT}, 13"]
    else: L += [f"s_mov_b32 s{sROT}, 0"]
    return L

def kernel():
    a = Asm()
    a("s_cmp_ge_u32 s2, 256\ns_cbranch_scc1 L_end")
    a("s_load_dwordx8 s[84:91], s[0:1], 0\ns_load_dwordx2 s[92:93], s[0:1], 32\ns_load_dwordx8 s[40:47], s[0:1], 40\ns_load_dwordx2 s[94:95], s[0:1], 72")
    a(f"s_load_dwordx2 s[{sOUT}:{sOUT+1}], s[0:1], 80\ns_load_dwordx2 s[{sDBG}:{sDBG+1}], s[0:1], 88\ns_load_dwordx2 s[{sWS}:{sWS+1}], s[0:1], 96")
    pstamp(a, 0)
    a(f"v_lshrrev_b32 v2, 6, v0\nv_and_b32 v1, 63, v0\nv_readfirstlane_b32 s{sWAVE}, v2")
    if Opt.code_pf:
        a("s_getpc_b64 s[96:97]\ns_bfe_u32 s48, s2, 0x20003\ns_lshl_b32 s48, s48, 15\nv_lshlrev_b32 v3, 7, v0\nv_add_u32 v3, s48, v3")
        a("v_min_u32 v3, CODE_SIZE, v3\nglobal_load_dword a255, v3, s[96:97]")
    a(f"s_bfe_u32 s{sBR}, s2, 0x10002\ns_lshr_b32 s{sB1}, s2, 5\ns_and_b32 s{sH0}, s2, 3\ns_lshl_b32 s{sH0}, s{sH0}, 3")
    a(f"s_bfe_u32 s{sT0}, s2, 0x20003\ns_lshl_b32 s{sT0}, s{sT0}, 1\ns_add_u32 s{sH0}, s{sH0}, s{sT0}")
    a("v_and_b32 v30, 15, v1\nv_lshrrev_b32 v31, 4, v1")
    a("v_and_b32 v33, 7, v1\nv_xor_b32 v33, v33, v31\nv_lshrrev_b32 v34, 3, v1")
    for jj in range(4):
        a(f"v_xor_b32 v32, {4*(jj%2)}, v33\nv_lshlrev_b32 v32, 4, v32\nv_lshl_add_u32 v32, v34, 10, v32\nv_add_u32 v{VXD+jj}, {jj*8192 - jj*1024}, v32")
    a("v_lshrrev_b32 v2, 1, v30\nv_xor_b32 v2, v2, v31\nv_and_b32 v3, 1, v30\nv_lshlrev_b32 v3, 4, v3\nv_lshl_add_u32 v3, v31, 13, v3")
    for j in range(4):
        a(f"v_xor_b32 v32, {(j>>1)<<2}, v2\nv_lshl_add_u32 v32, v32, 5, v3\nv_add_u32 v{VDA+j}, {j*32768 - j*1024}, v32")
    a(f"s_mul_i32 s{sM0X}, s{sWAVE}, 10240\ns_add_u32 s{sM0X}, s{sM0X}, {XB}\ns_mul_i32 s{sXOFF}, s{sWAVE}, {80*1024}")
    a(f"s_mov_b32 s10, 311296\ns_mov_b32 s11, 0x20000\ns_mov_b32 s15, 0x20000")
    a(f"s_mul_i32 s{sT0}, s{sB1}, 311296\ns_lshl_b32 s{sT1}, s{sH0}, 8\ns_sub_u32 s14, 0x400000, s{sT1}")
    a(f"s_waitcnt lgkmcnt(0)\ns_cmp_eq_u32 s{sBR}, 1")
    for r in range(8): a(f"s_cselect_b32 s{84+r}, s{40+r}, s{84+r}")
    a(f"s_cselect_b32 s{sWO}, s94, s92\ns_cselect_b32 s{sWO+1}, s95, s93")
    a(f"s_add_u32 s8, s84, s{sT0}\ns_addc_u32 s9, s85, 0\ns_add_u32 s12, s90, s{sT1}\ns_addc_u32 s13, s91, 0")
    if Opt.stamps: stamp_start(a, 40)
    for l in fix_hazards(first_loads()): a(l)
    a(f"s_cmp_eq_u32 s{sWAVE}, 3\ns_cbranch_scc1 L_x8")
    for l in flat(x_dma(5, 0, 0, [8, 9]))[:-1]: a(l)
    a.label("L_x8")
    a(f"s_add_u32 s{sXOFF}, s{sXOFF}, 128")
    zs = [f"{MF32} v[{r}:{r+15}], {ZQ}, {ZQ}, 0" for r in range(240, 31, -16)] + [zero16(16 * k) for k in range(6)]
    sh = [f"v_accvgpr_write_b32 a{A_Z+r}, 0" for r in range(4)] + weave(late_setup(), zs, 4)
    for l in fix_hazards(sh): a(l)
    a(f"s_cmp_eq_u32 s{sWAVE}, 3\ns_cbranch_scc1 L_var4")
    variant(a, 5, "5")
    a.label("L_var4")
    variant(a, 4, "4")
    oproj(a)
    a.label("L_fin")
    if Opt.stamps:
        a("s_waitcnt vmcnt(0)\ns_barrier")
        pstamp(a, 14)
        stamp_end(a, 40, sWS, 32, 0, 2, 48)
        pdump(a, sWS, 15, 2)
    a.label("L_end")
    a("s_endpgm")
    return a.text()

HDR = open("cdna_kernels/" + NAME + ".s.ref").read().split("; Override launch")[0]

def build(fname):
    k = NAME + "_kernel"
    txt = HDR + f"; @launch grid=(256,1,1) block=(256,1,1) lds={LDS1}\n" + '.amdgcn_target "amdgcn-amd-amdhsa--gfx950"\n.text\n'
    txt += kernel_open(k)
    post = f"L_code_end:\n.set CODE_SIZE, L_code_end - {k} - 256\n"
    body = kernel().rstrip("\n").split("\n")
    if Opt.al:
        body, nn, ne = align.align(txt, body, post)
    txt += "\n".join(body) + "\n" + post
    txt += '.section .rodata,"a"\n' + kernel_desc(k, 512, 256)
    open(fname, "w").write(txt)

if __name__ == "__main__":
    out = sys.argv[1] if len(sys.argv) > 1 else "cdna_kernels/" + NAME + ".s"
    for kv in sys.argv[2:]:
        k, v = kv.split("=")
        cur = getattr(Opt, k)
        if isinstance(cur, bool): v = v == "1"
        elif isinstance(cur, int): v = int(v)
        else: v = (" " + v.replace("+", " ")) if v else ""
        setattr(Opt, k, v)
    build(out)
```

```python
import sys, math, struct, re
sys.path.insert(0, "tools")
from asmlib import *
from sched import *
import hazard, waits, align

def f2u(x): return struct.unpack("<I", struct.pack("<f", x))[0]
SCALE = math.log2(math.e) / math.sqrt(128.0)

class Opt:
    stamps = False
    clk = False
    trace = False
    traceq = False
    nt_kv = " nt"
    nt_x = " nt"
    st_o = " sc1"
    ld_o = " sc1"
    ld_wo = " sc1"
    st_out = ""
    delay = 4
    ldscost = 8
    poll_ks = 9
    bpos = 3
    al = True
    rot = 1
    code_pf = True
    thr = 32
    ldgap = 7
    sm = 2
    spos = 0
    touch = 0
    nl1 = 44
    ns1 = 20
    sig_ks = 3
    wgap = 56

def vq(b): return f"v[{b}:{b+3}]"
def aq(b): return f"a[{b}:{b+3}]"
MF = "v_mfma_f32_16x16x32_bf16"
MF32 = "v_mfma_f32_32x32x16_bf16"

def pstamp(a, k):
    if Opt.stamps: a(f"{'s_memtime' if Opt.clk else 's_memrealtime'} s[{72+2*k}:{73+2*k}]")
def pdump(a, ws, n, rec):
    a("s_waitcnt lgkmcnt(0)")
    for k in range(16): a(f"v_mov_b32 v{32+k}, s{72+2*min(k, n-1)}")
    a(f"s_lshl_b32 s48, s{rec}, 6\ns_add_u32 s48, s48, {STAMP_OFF + 65536}\nv_mov_b32 v48, s48")
    a("v_cmp_eq_u32 vcc, 0, v0\ns_and_saveexec_b64 s[46:47], vcc")
    a(f"s_cbranch_execz L_pd")
    for k in range(4): a(f"global_store_dwordx4 v48, v[{32+4*k}:{35+4*k}], s[{ws}:{ws+1}] offset:{16*k}")
    a("s_waitcnt vmcnt(0)")
    a.label("L_pd")
    a("s_mov_b64 exec, s[46:47]")

def fix_hazards(lines, prefix=()):
    out = list(prefix)
    npre = len(out)
    for l in lines:
        while True:
            win = out[-26:] + [l]
            new = hazard.check(win)[len(hazard.check(win[:-1])):]
            if not new: break
            need = max(int(m.group(1)) - int(m.group(2)) for m in (re.search(r"need (\d+) have (\d+)", e) for e in new))
            out.append(f"s_nop {need-1}")
        out.append(l)
    return out[npre:]

def flat(items):
    r = []
    for (t, c) in items: r += t.split("\n")
    return r

def spread(fl, items, lo, hi, prio):
    prev = None
    n = len(items)
    for k, (txt, cost) in enumerate(items):
        p = lo + (k * (hi - lo + 1)) // n
        nx = max(p, lo + ((k + 1) * (hi - lo + 1)) // n - 1)
        f = F(txt, cost, p, nx, deps=[prev] if prev else [], prio=prio + k, depgap=1 if (hi - lo + 1) >= n else 0)
        fl.append(f); prev = f

def weave(main, extra, every, start=0):
    out = []; extra = list(extra)
    for k, l in enumerate(main):
        out.append(l)
        if k >= start and (k - start) % every == every - 1 and extra: out.append(extra.pop(0))
    return out + extra

VKA, VVA, VDA, VDB, VXD, VXA = 4, 8, 16, 20, 24, 28
VPK, VPV = 240, 244
VOD, VSR, VSW = 24, 25, 27
def VRC(nq): return [26, 28, 30, 20, 22] if nq == 5 else [26, 28, 30, 72]
VPA, VPD = 29, 31
S0, P0, NM0, QLO, QTOP = 32, 56, 76, 96, 176
A_O, A_K, A_V, A_L, A_ONES, A_Z = 0, 160, 192, 224, 244, 248
A_X, A_W = 96, 176
XB, XBUF = 65536, 40960
FLAG = XB + 2 * XBUF
LDS1 = FLAG + 64
sWAVE = 3
sDOFF, sINC0, sINC1, sXOFF, sM0X, sCNT, sHEAD, sREDO, sLAST, sEV = 30, 31, 32, 33, 34, 35, 36, 37, 26, 27
sSC = 38
sT0, sT1, sOOFF, sTHR = 48, 49, 50, 51
sG1, sG2, sG3 = 52, 53, 54
sDBG, sOUT, sWS = 56, 58, 60
sBR, sB1, sH0, sB2, sQG, sN4 = 62, 63, 64, 65, 66, 67
sWO = 68
sHO, sHW = 70, 71
sRAW, sROT, sMH, sML = 0, 1, 44, 45
sSO, sSX, sWB = 68, 69, 46
PAD = 256
TS, WN = 131072 + PAD, 0x100000 + PAD
WOP = (2 * 8 * 19 + 2) * TS
FLW = WOP + 8 * WN + PAD
def SM(): return [((0, 1, 2, 0), 3, (7, 6, 6, 0)), ((0, 5, 10, 15), 1, (5, 5, 5, 4)), ((0, 1, 2, 18), 3, (6, 6, 6, 1))][Opt.sm]
def VWR(nq): return (16, 19) if nq == 5 else (252, 253)
def VWA(nq): return 20 if nq == 5 else 248

def O(i, dt): return aq(A_O + (i * 8 + dt) * 4)
def Q(i, s, base=QTOP): return vq(base + (i * 4 + s) * 4)
def Sreg(i, t): return S0 + (i % 3) * 8 + t * 4
ZQ = aq(A_Z)

def acc_loc(eta, i, s):
    fi = i * 4 + s
    if eta == 0: return ("v", 32 + 8 * (8 + fi))
    if fi >= 12: return ("v", 32 + 8 * (fi - 12))
    return ("a", 8 * fi)
def acc(eta, i, nt):
    f, b = acc_loc(eta, i, nt // 2)
    b += (nt % 2) * 4
    return f"{f}[{b}:{b+3}]"

def doff_update():
    return [f"s_add_u32 s{sT1}, s{sRAW}, s{sROT}", f"s_and_b32 s{sT1}, s{sT1}, s{sML}", f"s_and_b32 s{sDOFF}, s{sRAW}, s{sMH}", f"s_or_b32 s{sDOFF}, s{sDOFF}, s{sT1}"]
def ring_dma(slot, inc, tag=0):
    res = []
    for g in range(4):
        srd = "s[12:15]" if g < 2 else "s[16:19]"
        vb = VDA if g < 2 else VDB
        for j in range(4):
            t = ""; c = 4
            so = f"s{sDOFF}" if g == 0 else f"s{sT1}"
            if j == 0:
                t = f"s_mov_b32 m0, {slot*16384 + g*4096}\n"
                t += f"s_add_u32 s{sT1}, s{sDOFF}, s{sG1 + g - 1}\n" if g else f"s_add_u32 s{sRAW}, s{sRAW}, {inc}\n"
                c = 8
            t += f"buffer_load_dwordx4 v{vb+j}, {srd}, {so} offen offset:{j*1024}{Opt.nt_kv} lds ; tag=R:{tag}"
            res.append((t, c))
    res.append(("\n".join(doff_update()), 8))
    return res

def x_dma(nq, buf, tag, js=None):
    res = []
    js = list(range(2 * nq)) if js is None else js
    for j in js:
        G, jj = j // 4, j % 4
        t = ""; c = 4
        if jj == 0 or j == js[0]:
            t = f"s_add_u32 m0, s{sM0X}, {buf*XBUF + G*4096}\ns_add_u32 s{sT0}, s{sXOFF}, {G*32768}\n"; c = 8
        t += f"buffer_load_dwordx4 v{VXD+jj}, s[8:11], s{sT0} offen offset:{jj*1024}{Opt.nt_x} lds ; tag=X:{tag}"
        if j == 2 * nq - 1:
            t += f"\ns_add_u32 s{sXOFF}, s{sXOFF}, 128"; c = 8
        res.append((t, c))
    return res

def wo_reads(nq):
    return [f"ds_read_b64_tr_b16 a[{A_V + f*4 + t*2}:{A_V + f*4 + t*2 + 1}], v{VWR(nq)[(f//2)%2]} offset:{(f//4)*4096 + t*2048 + (f%2)*8}" for f in range(8) for t in range(2)]
def wo_stores():
    return [f"buffer_store_dwordx4 {aq(A_V + f*4)}, v{VOD}, s[20:23], s{sHW if f < 4 else sHO} offen offset:{(f%4)*1024}{Opt.st_o}" for f in range(8)]

def w_reads(nq, slot, nt):
    r = []
    for kk in range(2):
        for h in range(2):
            b = A_W + (nt % 4) * 8 + kk * 4 + h * 2
            r.append(f"ds_read_b64_tr_b16 a[{b}:{b+1}], v{VWA(nq) + nt//2} offset:{slot*16384 + kk*8192 + h*1024 + (nt%2)*8}")
    return r
def x_reads(nq, xset, buf):
    r = []
    for i in range(nq):
        for kk in range(2):
            b = A_X + xset * 40 + (i * 2 + kk) * 4
            r.append(f"ds_read_b128 a[{b}:{b+3}], v{VXA+kk} offset:{buf*XBUF + i*2048}")
    return r
def k_reads(slot):
    r = []
    for t in range(2):
        for s in range(4):
            b = A_K + (t * 4 + s) * 4
            r.append(f"ds_read_b128 a[{b}:{b+3}], v{VKA+s} offset:{slot*16384 + t*4096}")
    return r

def qproj_unit(nq, u):
    slot, eta, xset = u % 4, u % 2, (u // 2) % 2
    G = 2 * nq
    mf = []
    for nt in range(8):
        for i in range(nq):
            for kk in range(2):
                c = acc(eta, i, nt)
                mf.append(f"{MF} {c}, {aq(A_W + (nt%4)*8 + kk*4)}, {aq(A_X + xset*40 + (i*2+kk)*4)}, {c}")
    n = len(mf)
    fl = []
    for nt in range(8):
        n2 = nt + 2
        rs = w_reads(nq, slot, n2) if n2 < 8 else w_reads(nq, (slot + 1) % 4, n2 - 8)
        for k, r in enumerate(rs):
            fl.append(F(r, 4, nt * G + 1, nt * G + 4, prio=k))
    pre = {}
    if eta == 1:
        pre[3 * G] = [f"s_waitcnt vmcnt(?X:{u//2 + 1})"]
        for k, r in enumerate(x_reads(nq, xset ^ 1, xset ^ 1)):
            fl.append(F(r, 4, 3 * G + 2, 5 * G + 3, prio=100 + k))
    items = x_dma(nq, xset, u // 2 + 2, list(range(eta * nq, eta * nq + nq)))
    if nq == 4:
        pre[6 * G] = [f"s_waitcnt vmcnt(?R:{u+1}) lgkmcnt(0)", "s_barrier"]
        items += ring_dma((slot - 1) % 4, f"s{sINC0 + (1 - eta)}", u + 3)
        spread(fl, items, 0, n - 1, 200)
    else:
        pre[6 * G] = [f"s_waitcnt lgkmcnt(0)", "s_barrier"]
        spread(fl, items, 3, 5 * G, 200)
    out, over = schedule(mf, fl, 8, pre)
    return out

def attn_step(nq, slot, store):
    nslot = (slot + 1) % 4
    w3 = nq == 4
    mf = []
    for i in range(nq):
        for t in range(2):
            for s in range(4):
                d = vq(Sreg(i, t))
                c = vq(NM0 + i * 4) if s == 0 else d
                mf.append(f"{MF} {d}, {aq(A_K + (t*4+s)*4)}, {Q(i,s)}, {c}")
    nA = len(mf)
    for i in range(nq):
        for dt in range(8):
            mf.append(f"{MF} {O(i,dt)}, {aq(A_V + dt*4)}, {vq(P0 + i*4)}, {O(i,dt)}")
        mf.append(f"{MF} {aq(A_L+i*4)}, {aq(A_ONES)}, {vq(P0 + i*4)}, {aq(A_L+i*4)}")
    n = len(mf)
    fl = []
    so = slot * 16384
    for dt in range(8):
        for t in range(2):
            b = A_V + dt * 4 + t * 2
            fl.append(F(f"ds_read_b64_tr_b16 a[{b}:{b+1}], v{VVA+dt} offset:{so + 8192 + t*4096}", 4, 0, 12, prio=dt))
    for i in range(nq):
        dl = nA + 9 * i
        for t in range(2):
            dlc = dl - 3
            if i + 3 < nq: dlc = min(dlc, 8 * (i + 3) + 4 * t - 1)
            es = []
            for r in range(4):
                v = Sreg(i, t) + r
                e = F(f"v_exp_f32 v{v}, v{v}", 8, i * 8 + t * 4 + 3 + Opt.delay, dlc - 1, prio=i * 8 + t * 4 + r)
                es.append(e); fl.append(e)
            for h in range(2):
                v = Sreg(i, t) + 2 * h
                fl.append(F(f"v_cvt_pk_bf16_f32 v{P0+i*4+t*2+h}, v{v}, v{v+1}", 4, 0, dlc, deps=es[2*h:2*h+2], prio=i * 8 + t * 4 + 2*h + 1))
    for k, r in enumerate(k_reads(nslot)):
        fl.append(F(r, Opt.ldscost if (nq == 5 and not (store and slot == 0)) else 4, nA, n - 10, prio=500 + k))
    pre = {0: ["s_waitcnt lgkmcnt(0)"]}
    if w3: spread(fl, ring_dma(slot, "0x2000"), nA, n - 1, 600)
    pre[nA] = [f"s_waitcnt {'vmcnt(32) ' if w3 else ''}lgkmcnt(0)", "s_barrier"]
    if store:
        stride = SM()[1]
        if slot == 0:
            rs = [F(f"ds_read_b128 {vq(QLO + 4*q)}, v{VSR} offset:{q*1024}", 4, nA + 2, n - 8, prio=700 + q) for q in range(4)]
            fl += rs + [F(f"v_add_u32 v{VSR}, {stride*4096}, v{VSR}", 4, 0, n - 1, deps=rs, prio=800)]
        qs = [{0: [], 1: [0, 1], 2: [2, 3], 3: []}, {0: [], 1: [0, 1], 2: [2], 3: [3]}][Opt.spos][slot]
        for k, q in enumerate(qs):
            pos = 14 + k * (n // 2)
            t = f"buffer_store_dwordx4 {vq(QLO + 4*q)}, v{VOD}, s[20:23], s{sSO} offen offset:{q*1024}{Opt.st_o}"
            fl.append(F(t + (f"\ns_add_u32 s{sSO}, s{sSO}, {stride*TS}" if q == 3 else ""), 4 + 4 * (q == 3), pos, pos + 12, prio=700 + k))
    out, over = schedule(mf, fl, 8, pre)
    return out

def maxpass_mf(nq, qbase):
    return [f"{MF} {vq(P0 + 4*i)}, {aq(A_K + s*4)}, {Q(i, s, qbase)}, {vq(P0 + 4*i) if s else 0}" for i in range(nq) for s in range(4)]
def max_finish(nq):
    L = []
    for sw in ("v_permlane32_swap_b32", "v_permlane16_swap_b32"):
        for i in range(nq): L.append(f"v_mov_b32 v{P0+4*i+1}, v{P0+4*i}")
        for i in range(nq): L.append(f"{sw} v{P0+4*i}, v{P0+4*i+1}")
        for i in range(nq): L.append(f"v_max_f32 v{P0+4*i}, v{P0+4*i}, v{P0+4*i+1}")
    for i in range(nq):
        for r in range(4): L.append(f"v_xor_b32 v{NM0+i*4+r}, 0x80000000, v{P0+4*i}")
    return L
def max_chain(nq):
    L = [f"v_max3_f32 v{P0+4*i}, v{P0+4*i}, v{P0+4*i+1}, v{P0+4*i+2}" for i in range(nq)]
    L += [f"v_max_f32 v{P0+4*i}, v{P0+4*i}, v{P0+4*i+3}" for i in range(nq)]
    return L + max_finish(nq)
def zero16(b, z=ZQ): return f"{MF32} a[{b}:{b+15}], {z}, {z}, 0"
def zero_L(nq):
    return [zero16(A_L)] + ([f"{MF} {aq(A_L+16)}, {ZQ}, {ZQ}, 0"] if nq == 5 else [])

_Q = [("v", 176 + 4 * k) for k in range(20)] + [("a", 160 + 4 * k) for k in range(24)]
AQ = [_Q[0:8], _Q[8:16], _Q[20:28], [("v", 32 + 4 * k) for k in range(8)]]
BQ = [_Q[16:20] + _Q[28:44], [("v", 96 + 4 * k) for k in range(20)]]
def _q(t): return f"{t[0]}[{t[1]}:{t[1]+3}]"
def fa(st, nu): return _q(AQ[st][nu])
def fb(hb, st, i): return _q(BQ[hb][st * 5 + i])
VO2, VW2, VRW, VRR = 4, 9, 13, 16
def ld_a(st, nu, tag):
    so = f"s{sHW}" if st == 0 else f"s{sG1 + st - 1}"
    return f"buffer_load_dwordx4 {fa(st, nu)}, v{VW2 + nu//2}, s[4:7], {so} offen offset:{(nu%2)*1024}{Opt.ld_wo} ; tag=A{st}{nu//2}:{tag}"
def ld_b(hb, st, i, tag):
    return f"buffer_load_dwordx4 {fb(hb, st, i)}, v{VO2 + i}, s[8:11], s{sHO} offen offset:{st*1024}{Opt.ld_o} ; tag=B{st}:{tag}"
def op_wsoff():
    return [f"s_add_u32 s{sG1 + st - 1}, s{sHW}, {st*8192}" for st in range(1, 4)]
def osrc(d):
    return [f"s_lshl_b32 s{sT0}, s{sBR}, 3", f"s_add_u32 s{sT0}, s{sT0}, s{sB2}", f"s_mul_i32 s{sT0}, s{sT0}, 19", f"s_mul_i32 s{sT1}, s{sQG}, 5",
            f"s_add_u32 s{sT0}, s{sT0}, s{sT1}", f"s_mul_i32 s{d}, s{sT0}, {TS}"]
def op_srd():
    return osrc(sT0) + [f"s_add_u32 s8, s{sWS}, s{sT0}", f"s_addc_u32 s9, s{sWS+1}, 0", f"s_sub_u32 s10, 19, s{sT1}", f"s_mul_i32 s10, s10, {TS}"]
def out_off():
    return [f"s_mul_i32 s{sT0}, s{sB2}, 304", f"s_mul_i32 s{sT1}, s{sQG}, 80", f"s_add_u32 s{sT0}, s{sT0}, s{sT1}", f"s_lshl_b32 s{sT0}, s{sT0}, 11"]
def touches():
    L = ["v_mov_b32 v1, 0", f"v_mov_b32 v2, s{sHW}", "global_load_dword a254, v1, s[24:25]", "global_load_dword a254, v1, s[28:29]",
         f"buffer_load_dword a254, off, s[4:7], s{sHO}"]
    for k in range(3): L += [f"s_add_u32 s{sT0}, s{sOOFF}, {4*k*TS}", f"v_writelane_b32 v2, s{sT0}, {1+k}"]
    L += [f"s_mov_b32 s{sT0}, {FLW + 4096}", f"v_writelane_b32 v2, s{sT0}, 4"]
    L += osrc(sT0) + [f"v_writelane_b32 v2, s{sT0}, 5", f"s_add_u32 s{sT0}, s{sT0}, {5*TS}", f"v_writelane_b32 v2, s{sT0}, 6",
                      f"s_sub_u32 s{sT0}, s{sWB}, {PAD}", f"v_writelane_b32 v2, s{sT0}, 7", f"s_add_u32 s{sT0}, s{sT0}, {WN}", f"v_writelane_b32 v2, s{sT0}, 8",
                      f"global_load_dword a254, v2, s[{sWS}:{sWS+1}]"]
    L += out_off() + [f"v_mov_b32 v3, s{sT0}", f"s_add_u32 s{sT0}, s{sT0}, {63*2048}", f"v_writelane_b32 v3, s{sT0}, 1",
                      f"global_load_dword a254, v3, s[{sOUT}:{sOUT+1}]", f"global_load_dword a254, v1, s[{sDBG}:{sDBG+1}] offset:128 sc0 sc1"]
    return L
def op_setup():
    L = []
    for i in range(5): L.append(f"v_add_u32 v{VO2+i}, {i*TS + PAD}, v{VOD}")
    for p in range(4):
        L += [f"s_add_u32 s{sT0}, s{sWAVE}, {p}", f"s_and_b32 s{sT0}, s{sT0}, 3", f"s_lshl_b32 s{sT0}, s{sT0}, 11", f"v_add_u32 v{VW2+p}, s{sT0}, v{VOD}"]
    L += [f"s_lshl_b32 s{sHO}, s{sWAVE}, 13", f"s_lshl_b32 s{sHW}, s{sWAVE}, 16"] + op_wsoff()
    return L
def op_loads0():
    L = []
    for st in range(4):
        L += [ld_b(0, st, i, 0) for i in range(5)]
        if st < 3: L += [ld_a(st, nu, 0) for nu in range(8)]
    return L
sOT = 30
def st_o(k):
    return f"buffer_store_dwordx4 {vq(QLO + 4*k)}, v{VOD}, s[20:23], s{sOT + k//4} offen offset:{(k%4)*1024}{Opt.st_o} ; tag=S:0"
E1 = {}
def op_advance():
    return [f"s_add_u32 s{sHW}, s{sHW}, 0x40000", f"s_cmp_ge_u32 s{sHW}, 0x100000", f"s_cselect_b32 s{sT0}, {0x100000 - 0x8000}, 0",
            f"s_sub_u32 s{sHW}, s{sHW}, s{sT0}", f"s_lshr_b32 s{sHO}, s{sHW}, 3"] + op_wsoff()

def own_word(kind):
    L = [f"s_lshl_b32 s{sT0}, s{sBR}, 3", f"s_add_u32 s{sT0}, s{sT0}, s{sB1}", f"s_lshl_b32 s{sT0}, s{sT0}, 7", f"s_lshl_b32 s{sT1}, s{sH0}, 1",
         f"s_add_u32 s{sT0}, s{sT0}, s{sT1}", f"s_add_u32 s{sT0}, s{sT0}, {FLW + (64 if kind == 2 else 0)}"]
    L += [f"v_lshl_add_u32 v1, v{VOD}, 2, s{sT0}", f"v_mov_b32 v2, {16 if kind else 0}", f"s_mov_b64 exec, {1 if kind else 3}"]
    return L + [f"global_store_dword v1, v2, s[{sWS}:{sWS+1}] sc0 sc1", "s_mov_b64 exec, -1"]
def signal(a, kind):
    if kind:
        for l in own_word(kind): a(l)
        return
    a(f"s_lshl_b32 s{sT0}, s{sBR}, 3\ns_add_u32 s{sT0}, s{sT0}, s{sB1}\ns_lshl_b32 s{sT0}, s{sT0}, 2")
    a(f"v_mov_b32 v1, s{sT0}\nv_mov_b32 v2, 1\ns_mov_b64 exec, 1")
    a(f"global_atomic_add v1, v2, s[{sDBG}:{sDBG+1}] sc1\ns_mov_b64 exec, -1")
def poll_issue(a, kind):
    if kind == 0:
        a(f"s_lshl_b32 s{sT0}, s{sBR}, 5\nv_and_b32 v{VPA}, 7, v0\nv_lshl_add_u32 v{VPA}, v{VPA}, 2, s{sT0}")
    else:
        a(f"s_lshl_b32 s{sT0}, s{sBR}, 3\ns_add_u32 s{sT0}, s{sT0}, s{sB2}\ns_lshl_b32 s{sT0}, s{sT0}, 7\ns_add_u32 s{sT0}, s{sT0}, {FLW + (64 if kind == 2 else 0)}")
        a(f"v_and_b32 v{VPA}, 15, v0\nv_lshl_add_u32 v{VPA}, v{VPA}, 2, s{sT0}")
    b = sWS if kind else sDBG
    a(f"global_load_dword v{VPD}, v{VPA}, s[{b}:{b+1}] sc0 sc1")
def poll_wait(a, kind, lbl, done, first_wait="vmcnt(0)"):
    b = sWS if kind else sDBG
    a(f"s_mov_b32 s{sT1}, 0x20000\ns_waitcnt {first_wait}")
    a.label(lbl)
    a(f"v_cmp_gt_u32 vcc, 16, v{VPD}\ns_sub_u32 s{sT1}, s{sT1}, 1\ns_cmp_eq_u32 s{sT1}, 0\ns_cbranch_scc1 {done}")
    a(f"s_nop 2\ns_cbranch_vccz {done}")
    a(f"global_load_dword v{VPD}, v{VPA}, s[{b}:{b+1}] sc0 sc1\ns_sleep 4\ns_waitcnt vmcnt(0)\ns_branch {lbl}")

def oproj(a):
    a.label("L_op")
    pstamp(a, 9)
    pro = op_loads0()[Opt.nl1:] + [ld_a(3, nu, 0) for nu in range(8)] + op_advance() + [f"s_mov_b32 s{sCNT}, 7"]
    def kstep_mf(hb, st, first=False):
        return [f"{MF} {aq((i*8+nu)*4)}, {fa(st, nu)}, {fb(hb, st, i)}, {0 if first else aq((i*8+nu)*4)}" for nu in range(8) for i in range(5)]
    def kstep_waits(st, tag):
        pre = {10 * p: [f"s_waitcnt vmcnt(?A{st}{p}:{tag})"] for p in range(4)}
        pre[0] = [f"s_waitcnt vmcnt(?B{st}:{tag})"] + pre[0]
        return pre
    def half(hb, tag, peel=False):
        body = []
        for st in range(4):
            fl = []
            for i in range(5):
                t = ld_b(hb ^ 1, st, i, tag + 1)
                if peel and st * 5 + i >= Opt.ns1: fl.append(F(st_o(st * 5 + i) + "\ns_nop 0\n" + t, 4, 7 * i + 2, 7 * i + 4, prio=i))
                else: fl.append(F(t, 4, Opt.bpos * i + 2, Opt.bpos * i + 4, prio=i))
            for nu in range(8): fl.append(F(ld_a(st, nu, tag + 1), 4, min(39, 5 * nu + 5), min(39, 5 * nu + 8), prio=100 + nu))
            out, over = schedule(kstep_mf(hb, st, peel and st == 0), fl, 4, kstep_waits(st, tag))
            body += [f"@HOOK{hb}{st}@:"] + out
        return body + op_advance() + ([] if peel else [f"s_sub_u32 s{sCNT}, s{sCNT}, 1"])
    mf = kstep_mf(1, 0)
    fl = []
    RQ = [176 + 4 * k for k in range(8)] + [240 + 4 * k for k in range(4)] + [96 + 4 * k for k in range(5)] + [208 + 4 * k for k in range(8)] + [116 + 4 * k for k in range(5)]
    AC = 56
    for p in (1, 2, 3, 0):
        for i in range(5):
            for e in range(2):
                nu = 2 * p + e
                b = (i * 8 + nu) * 4
                for st in (1, 2, 3): mf.append(f"{MF} {aq(b)}, {fa(st, nu)}, {fb(1, st, i)}, {aq(b)}")
                g = len(mf) - 1
                if p: fl.append(F(f"ds_write_b128 v{VRW+p-1}, a[{b}:{b+3}] offset:{(i*2+e)*1024}", 8, g + 6, g + 8))
                elif g + 6 < 159:
                    for r in range(4): fl.append(F(f"v_accvgpr_read_b32 v{AC+(i*2+e)*4+r}, a{b+r}", 4, g + 5, 159, prio=50))
    misc = []
    for p in range(1, 4):
        misc += [f"s_add_u32 s{sT0}, s{sWAVE}, {p}", f"s_and_b32 s{sT0}, s{sT0}, 3", f"s_mul_i32 s{sT0}, s{sT0}, 30720",
                 f"s_add_u32 s{sT0}, s{sT0}, {(p-1)*10240}", f"v_add_u32 v{VRW+p-1}, s{sT0}, v{VOD}"]
    misc += [f"s_mul_i32 s{sT0}, s{sWAVE}, 30720", f"v_add_u32 v{VRR}, s{sT0}, v{VOD}",
             "v_and_b32 v3, 15, v0", "v_and_b32 v1, 48, v0",
             *out_off(), f"s_lshl_b32 s{sT1}, s{sBR}, 10", f"s_add_u32 s{sT0}, s{sT0}, s{sT1}", f"s_lshl_b32 s{sT1}, s{sN4}, 8",
             f"s_add_u32 s{sT0}, s{sT0}, s{sT1}", f"s_lshl_b32 s{sT1}, s{sWAVE}, 6", f"s_add_u32 s{sT0}, s{sT0}, s{sT1}",
             "v_lshl_add_u32 v2, v3, 11, v1", f"v_add_u32 v2, s{sT0}, v2",
             f"s_mov_b32 s16, s{sOUT}", f"s_mov_b32 s17, s{sOUT+1}", f"s_mov_b32 s18, {8*304*1024*2}"]
    spread(fl, [(m, 4) for m in misc], 0, 38, 10)
    BG = 146
    rds = []
    for i in range(5):
        for p in range(3):
            for e in range(2):
                b = RQ[i * 6 + p * 2 + e]
                rds.append(f"ds_read_b128 v[{b}:{b+3}], v{VRR} offset:{p*10240 + (i*2+e)*1024}")
    for k, r in enumerate(rds[:14]): fl.append(F(r, 4, BG + k, BG + k, prio=k))
    tpre = kstep_waits(0, 7)
    tpre.update({39: ["s_waitcnt vmcnt(?B3:7)"], 40: ["s_waitcnt vmcnt(?A31:7)"], 70: ["s_waitcnt vmcnt(?A32:7)"], 100: ["s_waitcnt vmcnt(0)"],
                 BG: ["s_waitcnt lgkmcnt(0)", "s_barrier"]})
    tail, over = schedule(mf, fl, 8, tpre)
    done = set(tail)
    tail += rds[14:]
    for i in range(5):
        for e in range(2):
            for r in range(4):
                l = f"v_accvgpr_read_b32 v{AC+(i*2+e)*4+r}, a{(i*8+e)*4+r}"
                if l not in done: tail.append(l)
    OF = 32
    for i in range(5):
        if i == 4: tail.append("@LAST@:")
        if i != 1: tail.append(f"s_waitcnt lgkmcnt({min(14, 6 * (4 - i))})")
        for p in range(3):
            for e in range(2):
                for r in range(0, 4, 2):
                    d = AC + (i * 2 + e) * 4 + r; b = RQ[i * 6 + p * 2 + e] + r
                    tail.append(f"v_pk_add_f32 v[{d}:{d+1}], v[{d}:{d+1}], v[{b}:{b+1}]")
        b = AC + i * 8; d = OF + i * 4
        tail.append(f"s_mov_b32 s{sT0}, {i*32768}")
        for r in range(4): tail.append(f"v_cvt_pk_bf16_f32 v{d+r}, v{b+2*r}, v{b+2*r+1}")
        tail.append(f"buffer_store_dwordx4 v[{d}:{d+3}], v2, s[16:19], s{sT0} offen{Opt.st_out}")
    tail = waits.insert_lgkm(tail, loop=False)
    per = {f"B{st}": 2 for st in range(4)}
    per.update({f"A{st}{p}": 2 for st in range(4) for p in range(4)})
    peel = half(0, 0, True)
    body = half(1, 1) + half(0, 2)
    SW = "s_waitcnt vmcnt(?S:0)"
    sk = Opt.sig_ks
    if sk < 4: peel.insert(peel.index(f"@HOOK0{sk}@:"), SW)
    cut = body[:body.index(f"@HOOK1{sk % 4}@:")] + [SW]
    res = []
    for nq in (4, 5):
        r = waits.resolve_vm([(E1[nq], 1, {}), (pro, 1, {}), (peel, 1, {}), (body, 3, per), (tail, 1, {})])[1:]
        res.append(r + [waits.resolve_vm([(E1[nq], 1, {}), (pro, 1, {}), (peel, 1, {}), (cut, 1, {})])[3][-1:]])
    def cnt(l): return int(re.search(r"vmcnt\((\d+)", l).group(1))
    pro, peel, body, tail, swait = [[l1 if (l1 == l2 or cnt(l1) <= cnt(l2)) else l2 for l1, l2 in zip(x, y)] for x, y in zip(*res)]
    def sig(ret):
        pstamp(a, 10)
        a(f"v_mov_b32 v1, {FLAG + 8}\nv_mov_b32 v2, 1\ns_mov_b64 exec, 1\nds_add_rtn_u32 v3, v1, v2\ns_mov_b64 exec, -1\ns_waitcnt lgkmcnt(0)")
        a(f"v_readfirstlane_b32 s{sT0}, v3\ns_nop 3\ns_cmp_lg_u32 s{sT0}, 3\ns_cbranch_scc1 {ret}")
        signal(a, 2)
    for l in fix_hazards(pro): a(l)
    for e in hazard.check(pro + peel + body + body, "op")[:10]: print(e)
    a("; noalign")
    for l in peel:
        if l == f"@HOOK0{sk}@:":
            sig("L_or_sig"); a.label("L_or_sig")
        elif not l.startswith("@"): a(l)
    a.label("L_opl")
    ks = Opt.poll_ks
    for l in body:
        m = re.match(r"@HOOK(\d)(\d)@:", l)
        if not m: a(l); continue
        hb, st = int(m.group(1)), int(m.group(2))
        if (hb, st) == ((ks // 4) % 2, ks % 4):
            a(f"s_cmp_eq_u32 s{sCNT}, {8 - ks // 4}\ns_cbranch_scc1 L_oe_pi"); a.label("L_or_pi")
        if (hb, st) == (1, sk - 4):
            a(f"s_cmp_eq_u32 s{sCNT}, 7\ns_cbranch_scc1 L_oe_sig"); a.label("L_or_sig")
        if (hb, st) == (1, 0):
            a(f"s_cmp_eq_u32 s{sCNT}, 5\ns_cbranch_scc1 L_oe_pw"); a.label("L_or_pw")
    a(f"s_cmp_lg_u32 s{sCNT}, 1\ns_cbranch_scc1 L_opl")
    pstamp(a, 13)
    tl = fix_hazards(tail, body[-26:])
    k = max(j for j, l in enumerate(tl) if l.startswith("v_mfma"))
    for l in tl[:k + 1]: a(l)
    a("; align")
    for l in tl[k + 1:]:
        if l == "@LAST@:": a(f"s_cmp_eq_u32 s{sQG}, 3\ns_cbranch_scc1 L_fin")
        else: a(l)
    def side_code():
        a.label("L_oe_pi")
        poll_issue(a, 2)
        a("s_branch L_or_pi")
        if sk >= 4:
            a.label("L_oe_sig")
            a(swait[0])
            sig("L_or_sig")
            a("s_branch L_or_sig")
        a.label("L_oe_pw")
        pstamp(a, 11); pstamp(a, 12)
        poll_wait(a, 2, "L_pw2", "L_or_pw", f"vmcnt({13 * (12 - ks)})")
    return side_code

def kv_switch():
    return ["s_mov_b32 s12, s24", "s_mov_b32 s13, s25", "s_mov_b32 s14, 0x80000", "s_mov_b32 s16, s28", "s_mov_b32 s17, s29", "s_mov_b32 s18, 0x80000",
            f"s_mov_b32 s{sRAW}, 0", f"s_mov_b32 s{sDOFF}, s{sROT}", f"s_mov_b32 s{sMH}, 0xfffc0000", f"s_mov_b32 s{sML}, 0x3e000",
            f"s_movk_i32 s{sINC0}, 0x2000", f"s_movk_i32 s{sINC1}, 0x2000", f"s_movk_i32 s{sG1}, 0x1000", f"s_mov_b32 s{sG2}, 0", f"s_movk_i32 s{sG3}, 0x1000"]

TRACE = ["s_mov_b32 m0, s47", "s_add_u32 s47, s47, 1", "v_writelane_b32 v17, s98, m0", "v_writelane_b32 v18, s100, m0",
         "s_memrealtime s[98:99]", "s_memtime s[100:101]"]
def variant(a, nq, tag):
    w3 = nq == 4
    RC = VRC(nq)
    pro = ["v_lshrrev_b32 v2, 2, v30", "v_and_b32 v3, 1, v31", "v_lshl_add_u32 v3, v3, 2, v2", "v_bfe_u32 v1, v30, 1, 1", "v_xor_b32 v3, v3, v1",
           "v_lshl_add_u32 v2, v31, 3, v2", "v_lshlrev_b32 v2, 8, v2", "v_and_b32 v1, 1, v30", "v_lshl_add_u32 v2, v1, 4, v2"]
    for s in range(4): pro += [f"v_xor_b32 v1, {2*s}, v3", f"v_lshl_add_u32 v{VWA(nq)+s}, v1, 5, v2"]
    pro += ["v_bfe_u32 v1, v0, 2, 4", "v_lshrrev_b32 v2, 1, v1", "v_and_b32 v3, 3, v0", "v_xor_b32 v2, v2, v3", "v_lshlrev_b32 v2, 4, v2", "v_lshl_add_u32 v2, v1, 7, v2",
            f"v_add_u32 v{VWR(nq)[0]}, s{sM0X}, v2", "v_xor_b32 v2, 64, v2", f"v_add_u32 v{VWR(nq)[1]}, s{sM0X}, v2"]
    if w3:
        pro += ["v_xor_b32 v1, v30, v31"]
        for j in range(4): pro += [f"v_xor_b32 v2, {4*j}, v1", "v_lshlrev_b32 v2, 4, v2", f"v_lshl_add_u32 v{VPK+j}, v31, 8, v2", f"v_mov_b32 v{VDB+j}, v{VDA+j}"]
        pro += ["v_lshrrev_b32 v2, 1, v30", "v_xor_b32 v2, v2, v31", "v_and_b32 v3, 1, v30", "v_lshlrev_b32 v3, 4, v3"]
        for j in range(4): pro += [f"v_xor_b32 v1, {4*(j%2)}, v2", "v_lshl_add_u32 v1, v1, 5, v3", f"v_lshl_add_u32 v{VPV+j}, v31, 8, v1"]
        pro += [f"v_mov_b32 v1, {FLAG}", "ds_write_b64 v1, v[32:33]", "ds_write_b64 v1, v[32:33] offset:8"]
    else: pro += flat(x_dma(nq, 1, 1)) + (touches() if Opt.touch & 2 else [])
    pro += ["s_waitcnt vmcnt(?X:0) lgkmcnt(0)", "s_barrier"]
    pro += x_reads(nq, 0, 0) + w_reads(nq, 0, 0) + w_reads(nq, 0, 1)
    if w3: pro += flat(x_dma(nq, 1, 1)) + flat(ring_dma(2, f"s{sINC0}", 2))
    pro += [f"s_mov_b32 s{sCNT}, 4", "s_waitcnt lgkmcnt(0)"]
    if Opt.traceq: pro += ["s_mov_b32 s47, 0", "v_mov_b32 v17, 0", "v_mov_b32 v18, 0"] if not w3 else []
    body = []
    for u in range(4):
        if u == 1: body.append("@SWITCH@:")
        if u == 2: body += [f"s_cmp_eq_u32 s{sCNT}, 1", "s_cselect_b32 s10, 0, s10"]
        if Opt.traceq and not w3: body += TRACE
        body += qproj_unit(nq, u)
    body = waits.insert_lgkm(body)
    _, pro, body = waits.resolve_vm([(first_loads(), 1, {}), (pro, 1, {}), (body, 4, {"R": 4, "X": 2})])
    for l in fix_hazards(pro): a(l)
    pstamp(a, 1)
    for e in hazard.check(body + body, f"q{tag}")[:10]: print(e)
    a.label(f"L_q{tag}")
    a("; noalign")
    a(f"s_cmp_eq_u32 s{sCNT}, 1\ns_cselect_b32 s8, s4, s8\ns_cselect_b32 s9, s5, s9\ns_cselect_b32 s10, s6, s10\ns_cselect_b32 s{sXOFF}, s{sHO}, s{sXOFF}")
    for l in body:
        if l == "@SWITCH@:":
            if w3: a(f"s_cmp_eq_u32 s{sCNT}, 1\ns_cbranch_scc1 L_qs{tag}"); a.label(f"L_qn{tag}")
        else: a(l)
    a(f"s_sub_u32 s{sCNT}, s{sCNT}, 1\ns_cmp_lg_u32 s{sCNT}, 0\ns_cbranch_scc1 L_q{tag}")
    a("; align")
    pstamp(a, 2)
    def conv(sb, d):
        L = [f"v_pk_mul_f32 v[{sb+r}:{sb+r+1}], v[{sb+r}:{sb+r+1}], s[{sSC}:{sSC+1}]" for r in range(0, 8, 2)]
        return L + [f"v_cvt_pk_bf16_f32 v{d+r}, v{sb+2*r}, v{sb+2*r+1}" for r in range(3, -1, -1)]
    cv = ["s_waitcnt lgkmcnt(0)"] + k_reads(0) + [f"s_add_u32 s{sHO}, s{sHW}, 8192"] + wo_reads(nq)[:6]
    side = wo_reads(nq)[6:] + (flat(ring_dma(3, "0x2000")) if w3 else kv_switch())
    side2 = ["v_and_b32 v1, 63, v0", f"v_lshlrev_b32 v{VOD}, 4, v1", f"s_mul_i32 s{sT0}, s{sWAVE}, 20480", f"s_add_u32 s{sT0}, s{sT0}, {XB}",
             f"v_add_u32 v{VSW}, s{sT0}, v{VOD}"]
    t0s, stride, cnts = SM()
    if w3: side2 += [f"v_add_u32 v{VSR}, {XB + t0s[3]*4096}, v{VOD}"]
    else: side2 += [f"s_mul_i32 s{sT0}, s{sWAVE}, {t0s[1]*4096}", f"s_add_u32 s{sT0}, s{sT0}, {XB}", f"v_add_u32 v{VSR}, s{sT0}, v{VOD}"]
    side2 += [f"s_add_u32 s4, s{sWS}, s{sWB}", f"s_addc_u32 s5, s{sWS+1}, 0", "s_mov_b32 s6, 0x100000"] + op_srd()
    side2 += ["v_mov_b32 v1, 0x3f803f80"] + [f"v_accvgpr_write_b32 a{A_ONES+r}, v1" for r in range(4)]
    side2 += [f"s_mov_b32 s{sCNT}, 8"]
    c1 = []
    for k in range(27, -1, -1):
        fi = k - 8 if k >= 8 else k + 12
        if fi // 4 < nq: c1 += conv(32 + 8 * k, 144 + 4 * k)
    zs = [zero16(b) for b in range(96, 32 * nq, 16)] + zero_L(nq)
    cv += weave(weave(c1, side + side2, 2), zs, 24, 40)
    if w3: cv += own_word(0)[:-3] + ["\n".join(own_word(0)[-3:])]
    c2 = []
    for fi in range(12):
        tb = 32 + 8 * (fi % 3)
        c2 += [f"v_accvgpr_read_b32 v{tb+r}, a{8*fi+r}" for r in range(8)]
        if fi % 2: c2.append(zero16(8 * (fi - 1)))
        c2 += conv(tb, QLO + 4 * fi)
    mp = maxpass_mf(nq, QTOP)
    cv += ["s_waitcnt lgkmcnt(0)"] + weave(weave(c2[:4 * len(mp)], mp, 4) + c2[4 * len(mp):], max_chain(nq), 2, 5 * len(mp) + 8)
    k0 = max(k for k, l in enumerate(cv) if f"v_lshlrev_b32 v{VOD}," in l or "buffer_load" in l) + 2
    cv = cv[:k0] + ["s_waitcnt lgkmcnt(0)"] + weave(cv[k0:], wo_stores(), min(Opt.wgap, (len(cv) - k0 - 30) // 8))
    cv = "\n".join(cv).split("\n")
    if Opt.trace and not w3: cv = (TRACE if Opt.traceq else []) + cv + (["s_mov_b32 s47, 0", "v_mov_b32 v17, 0", "v_mov_b32 v18, 0"] if not Opt.traceq else [])
    for l in fix_hazards(cv, body[-26:]): a(l)
    pstamp(a, 3)
    a(f"s_branch L_loop{tag}")
    if w3:
        a.label(f"L_qs{tag}")
        for l in kv_switch(): a(l)
        for j in range(4): a(f"v_mov_b32 v{VDA+j}, v{VPK+j}\nv_mov_b32 v{VDB+j}, v{VPV+j}")
        a(f"s_branch L_qn{tag}")
    def og_pre(k):
        i, s = k // 4, k % 4
        tb = 32 + 8 * (k % 3)
        g = [f"v_accvgpr_read_b32 v{tb+r}, a{A_O + (i*8+2*s)*4 + r}" for r in range(8)]
        rc = RC[i]
        return g + [f"v_pk_mul_f32 v[{tb+r}:{tb+r+1}], v[{tb+r}:{tb+r+1}], v[{rc}:{rc+1}] op_sel_hi:[1,0]" for r in range(0, 8, 2)]
    def og_post(k):
        tb = 32 + 8 * (k % 3); d = QLO + k * 4
        return [f"v_cvt_pk_bf16_f32 v{d+r}, v{tb+2*r}, v{tb+2*r+1}" for r in range(4)]
    def og_rest(z, stage=False):
        L = []
        for k in range(4 * nq):
            if k >= 3: L += og_pre(k)
            if z and k % 2 and k >= 3: L.append(zero16(8 * (k - 1), z))
            if z and k == 3: L.append(zero16(0, z))
            L += og_post(k)
            if stage: L.append(f"ds_write_b128 v{VSW}, {vq(QLO + 4*k)} offset:{k*1024}")
            elif k < Opt.ns1: L.append(st_o(k))
        return L
    def steps(store):
        body = []
        for st in range(4):
            if Opt.trace and not w3 and (not Opt.traceq or st % 2 == 0): body += TRACE
            if not store and not w3:
                if st == 2: body.append("s_waitcnt vmcnt(0)")
                if st == 3: body.append("@EV@:")
            body += attn_step(nq, st, store)
        for e in hazard.check(body + body, f"a{tag}")[:10]: print(e)
        return body
    a.label(f"L_t1{tag}")
    mv = [f"v_mov_b64 v[{QTOP+r}:{QTOP+r+1}], v[{QLO+r}:{QLO+r+1}]" for r in range(0, nq * 16, 2)]
    sc = [f"s_mov_b32 s{sHEAD}, 1", f"s_mov_b32 s{sLAST}, 1", f"s_mov_b32 s{sREDO}, 0", f"s_mov_b32 s{sCNT}, 8"]
    EV1 = 8 - max(cnts[:3])
    if not w3: sc += [f"s_cmp_eq_u32 s{sWAVE}, 0\ns_cselect_b32 s{sEV}, {EV1}, -1"]
    t1 = weave(mv, maxpass_mf(nq, QLO), 2) + zero_L(nq) + weave(weave(og_rest(ZQ, True), max_chain(nq), 4, 8), sc, 8)
    t1 = "\n".join(t1).split("\n")
    for l in fix_hazards(t1): a(l)
    pstamp(a, 5); pstamp(a, 6)
    a("; noalign")
    if not w3 or cnts[3]:
        a.label(f"L_loopS{tag}")
        bodyS = steps(True)
        for e in hazard.check(t1[-26:] + bodyS, f"t1{tag}")[:10]: print(e)
        for l in bodyS: a(l)
        a(f"s_sub_u32 s{sCNT}, s{sCNT}, 1\ns_cmp_lg_u32 s{sCNT}, s{sSX}\ns_cbranch_scc1 L_loopS{tag}")
    a.label(f"L_loop{tag}")
    body = steps(False)
    for e in hazard.check(cv[-26:] + body, f"t0{tag}")[:10] + hazard.check(t1[-26:] + body, f"t1{tag}")[:10]: print(e)
    if w3: a(f"s_cmp_eq_u32 s{sCNT}, s{sLAST}\ns_cselect_b32 s14, 0, s14\ns_cselect_b32 s18, 0, s18")
    for l in body:
        if l == "@EV@:":
            a(f"s_cmp_eq_u32 s{sCNT}, s{sEV}\ns_cbranch_scc1 L_ev{tag}"); a.label(f"L_evr{tag}")
        else: a(l)
    a(f"s_sub_u32 s{sCNT}, s{sCNT}, 1\ns_cmp_lg_u32 s{sCNT}, 0\ns_cbranch_scc1 L_loop{tag}")
    a("; align")
    if Opt.stamps:
        a(f"s_cmp_eq_u32 s{sHEAD}, 1\ns_cbranch_scc1 L_ps{tag}")
        pstamp(a, 4)
        a.label(f"L_ps{tag}")
        pstamp(a, 7)
    ep = [f"s_lshl_b32 s{sT0}, s{sHEAD}, 2", f"s_add_u32 s{sT0}, s{sT0}, {FLAG}", f"v_mov_b32 v1, s{sT0}", "v_mov_b32 v2, 1"]
    ep += [f"v_accvgpr_read_b32 v{RC[i]}, a{A_L+4*i}" for i in range(nq)]
    ep += [f"v_max3_f32 v3, v{RC[0]}, v{RC[1]}, v{RC[2]}", f"v_max3_f32 v3, v3, v{RC[3]}, v{RC[nq-1]}", f"v_cmp_ngt_f32 vcc, s{sTHR}, v3"]
    ep += [f"v_rcp_f32 v{RC[i]}, v{RC[i]}" for i in range(nq)]
    ep = fix_hazards(ep, body[-26:])
    for l in ep: a(l)
    a(f"s_cbranch_vccnz L_ovf{tag}")
    a.label(f"L_nof{tag}")
    if not w3:
        a(f"s_cmp_eq_u32 s{sEV}, 0\ns_cbranch_scc1 L_evw"); a.label("L_evwr")
    a("s_waitcnt lgkmcnt(0)\ns_barrier\nds_read_b32 v3, v1")
    ep = og_pre(0) + og_pre(1) + og_pre(2) + ["s_waitcnt lgkmcnt(0)", f"v_readfirstlane_b32 s{sT0}, v3"]
    for l in fix_hazards(ep): a(l)
    a(f"s_nop 3\ns_andn2_b32 s{sT0}, s{sT0}, s{sREDO}\ns_cmp_lg_u32 s{sT0}, 0\ns_cbranch_scc1 L_redo{tag}")
    a(f"s_cmp_eq_u32 s{sHEAD}, 0\ns_cbranch_scc1 L_t1{tag}")
    e1 = op_setup() + [f"s_add_u32 s{sOT+i}, s{sOOFF}, {i*TS + 4096}" if i < nq else f"s_mov_b32 s{sOT+i}, {FLW}" for i in range(5)]
    e1 += weave(og_rest(None), op_loads0()[:Opt.nl1], Opt.ldgap if not w3 else Opt.ldgap * 4 // 5)
    E1[nq] = list(e1)
    if Opt.trace and not w3:
        e1 += [f"s_lshl_b32 s{sT0}, s2, 9", f"s_add_u32 s{sT0}, s{sT0}, {STAMP_OFF + 131072}", "v_lshlrev_b32 v1, 2, v0", f"v_add_u32 v1, s{sT0}, v1",
               "v_cmp_gt_u32 vcc, 64, v0", "s_nop 4", "s_mov_b64 exec, vcc", "s_cbranch_execz L_tr",
               f"global_store_dword v1, v17, s[{sWS}:{sWS+1}]", f"global_store_dword v1, v18, s[{sWS}:{sWS+1}] offset:256", "L_tr:", "s_mov_b64 exec, -1"]
    for l in fix_hazards(e1): a(l)
    pstamp(a, 8)
    a("s_branch L_op")
    a.label(f"L_ovf{tag}")
    a(f"ds_write_b32 v1, v2\ns_branch L_nof{tag}")
    if not w3:
        a.label(f"L_ev{tag}")
        a(f"s_cmp_eq_u32 s{sHEAD}, 1\ns_cbranch_scc1 L_evh")
        a(f"s_cmp_eq_u32 s{sEV}, 2\ns_cbranch_scc1 L_ev2\ns_cmp_eq_u32 s{sEV}, 1\ns_cbranch_scc1 L_ev1")
        signal(a, 0)
        a(f"s_mov_b32 s{sEV}, 2\ns_branch L_evr{tag}")
        a.label("L_ev2")
        poll_issue(a, 0)
        a(f"s_mov_b32 s{sEV}, 1\ns_branch L_evr{tag}")
        a.label("L_ev1")
        a(f"s_mov_b32 s{sEV}, -1")
        poll_wait(a, 0, "L_pw0", f"L_evr{tag}")
        a.label("L_evh")
        if EV1 != 1: a(f"s_cmp_eq_u32 s{sEV}, 1\ns_cbranch_scc1 L_evp")
        signal(a, 1)
        if EV1 != 1: a(f"s_mov_b32 s{sEV}, 1\ns_branch L_evr{tag}")
        a.label("L_evp")
        poll_issue(a, 1)
        a(f"s_mov_b32 s{sEV}, 0\ns_branch L_evr{tag}")
        a.label("L_evw")
        a(f"s_mov_b32 s{sEV}, -1")
        poll_wait(a, 1, "L_pw1", "L_evwr")
    a.label(f"L_redo{tag}")
    a(f"s_mov_b32 s{sREDO}, 1\ns_waitcnt vmcnt(0) lgkmcnt(0)\ns_barrier")
    a(f"s_lshl_b32 s{sRAW}, s{sHEAD}, 18\ns_mov_b32 s14, 0x80000\ns_mov_b32 s18, 0x80000")
    rp = doff_update()
    if w3:
        for sl in range(4): rp += flat(ring_dma(sl, "0x2000")) + ["s_waitcnt vmcnt(16)"]
    for l in fix_hazards(rp): a(l)
    a("v_and_b32 v1, 15, v0\nv_lshlrev_b32 v1, 8, v1\nv_and_b32 v2, 48, v0\nv_add_u32 v1, v1, v2")
    a(f"s_lshl_b32 s{sT0}, s{sHEAD}, 18\ns_mov_b32 s{sCNT}, 64")
    for i in range(nq): a(f"v_mov_b32 v{NM0+i}, 0xff800000")
    a.label(f"L_rl{tag}")
    rb = [f"buffer_load_dwordx4 a[{A_K+4*s}:{A_K+4*s+3}], v1, s[12:15], s{sT0} offen offset:{s*64}" for s in range(4)]
    rb += ["s_waitcnt vmcnt(0)"] + maxpass_mf(nq, QTOP) + ["s_nop 7"]
    for i in range(nq):
        b = P0 + 4 * i
        rb += [f"v_max3_f32 v{NM0+i}, v{NM0+i}, v{b}, v{b+1}", f"v_max3_f32 v{NM0+i}, v{NM0+i}, v{b+2}, v{b+3}"]
    rb.append(f"s_add_u32 s{sT0}, s{sT0}, 0x1000")
    for l in fix_hazards(rb): a(l)
    a(f"s_sub_u32 s{sCNT}, s{sCNT}, 1\ns_cmp_lg_u32 s{sCNT}, 0\ns_cbranch_scc1 L_rl{tag}")
    rb = [f"v_mov_b32 v{P0+4*i}, v{NM0+i}" for i in range(nq)] + max_finish(nq) + [zero16(b) for b in range(0, 32 * nq, 16)] + zero_L(nq)
    rb += ["s_waitcnt vmcnt(0)", "s_barrier"] + k_reads(0) + [f"s_mov_b32 s{sCNT}, 8", "s_nop 7"]
    for l in fix_hazards(rb): a(l)
    a(f"s_branch L_loop{tag}")

def first_loads():
    L = [f"s_lshl_b32 s{sT0}, s{sWAVE}, 12", f"s_mov_b32 m0, s{sT0}", f"s_lshl_b32 s{sT1}, s{sWAVE}, 17"]
    for j in range(4): L.append(f"buffer_load_dwordx4 v{VDA+j}, s[12:15], s{sT1} offen offset:{j*1024}{Opt.nt_kv} lds ; tag=R:0")
    L += [f"s_add_u32 m0, s{sT0}, 16384", f"s_add_u32 s{sT1}, s{sT1}, 256"]
    for j in range(4): L.append(f"buffer_load_dwordx4 v{VDA+j}, s[12:15], s{sT1} offen offset:{j*1024}{Opt.nt_kv} lds ; tag=R:1")
    return L + flat(x_dma(5, 0, 0, list(range(8))))

def late_setup():
    L = []
    for s in range(4):
        L += [f"v_or_b32 v2, {4*s}, v31", "v_xor_b32 v2, v2, v30", "v_lshlrev_b32 v2, 4, v2", f"v_lshl_add_u32 v{VKA+s}, v30, 8, v2"]
    L += ["v_lshrrev_b32 v2, 2, v30", "v_lshl_add_u32 v2, v31, 2, v2", "v_and_b32 v3, 7, v2", "v_lshlrev_b32 v2, 8, v2", "v_and_b32 v1, 3, v30", "v_lshl_add_u32 v2, v1, 3, v2"]
    for dt in range(8): L += [f"v_xor_b32 v1, {dt}, v3", f"v_lshl_add_u32 v{VVA+dt}, v1, 5, v2"]
    L += ["v_lshrrev_b32 v3, 1, v30", "v_xor_b32 v3, v3, v31"]
    for kk in range(2):
        L += [f"v_xor_b32 v2, {4*kk}, v3", "v_lshlrev_b32 v2, 4, v2", "v_lshl_add_u32 v2, v30, 7, v2", f"v_add_u32 v{VXA+kk}, s{sM0X}, v2"]
    L += [f"s_lshl_b32 s{sT0}, s{sB1}, 5", f"s_add_u32 s{sT0}, s{sT0}, s{sH0}", f"s_lshl_b32 s{sT0}, s{sT0}, 18",
          f"s_add_u32 s24, s86, s{sT0}", "s_addc_u32 s25, s87, 0", f"s_add_u32 s28, s88, s{sT0}", "s_addc_u32 s29, s89, 0",
          f"s_mov_b32 s20, s{sWS}", f"s_mov_b32 s21, s{sWS+1}", f"s_mov_b32 s22, {FLW}", "s_mov_b32 s23, 0x20000",
          f"s_lshl_b32 s{sT0}, s{sBR}, 3", f"s_add_u32 s{sT0}, s{sT0}, s{sB1}", f"s_mul_i32 s{sT0}, s{sT0}, {19*TS}",
          f"s_mul_i32 s{sOOFF}, s{sWAVE}, {5*TS}", f"s_add_u32 s{sOOFF}, s{sOOFF}, s{sT0}", f"s_add_u32 s{sOOFF}, s{sOOFF}, {PAD}", f"s_lshl_b32 s{sT0}, s{sH0}, 12", f"s_add_u32 s{sOOFF}, s{sOOFF}, s{sT0}",
          f"s_mov_b32 s{sSC}, {f2u(SCALE):#x}", f"s_mov_b32 s{sSC+1}, {f2u(SCALE):#x}", f"s_mov_b32 s{sTHR}, {f2u(2.0**Opt.thr):#x}", "s_mov_b32 s7, 0x20000",
          f"s_and_b32 s{sB2}, s2, 3", f"s_lshl_b32 s{sB2}, s{sB2}, 1", f"s_lshr_b32 s{sT0}, s2, 7", f"s_add_u32 s{sB2}, s{sB2}, s{sT0}",
          f"s_bfe_u32 s{sQG}, s2, 0x20005", f"s_bfe_u32 s{sN4}, s2, 0x20003",
          f"s_movk_i32 s{sINC0}, 256", f"s_mov_b32 s{sINC1}, {524288-256}", f"s_mov_b32 s{sG1}, 0x20000", f"s_mov_b32 s{sG2}, 0x40000", f"s_mov_b32 s{sG3}, 0x60000",
          "s_mov_b32 s16, s12", "s_mov_b32 s17, s13", "s_mov_b32 s18, s14", "s_mov_b32 s19, 0x20000",
          f"s_mov_b32 s{sRAW}, 0x80000", f"s_mov_b32 s{sDOFF}, 0x80000", f"s_mov_b32 s{sMH}, -1", f"s_mov_b32 s{sML}, 0"]
    L += [f"s_lshl_b32 s{sT0}, s{sB1}, 4", f"s_lshr_b32 s{sT1}, s{sH0}, 1", f"s_add_u32 s{sT1}, s{sT0}, s{sT1}", f"s_and_b32 s{sT0}, s{sT1}, 3",
          f"s_mul_i32 s{sHW}, s{sT0}, {WN}", f"s_lshl_b32 s{sHO}, s{sT0}, 8", f"s_lshr_b32 s{sT1}, s{sT1}, 2", f"s_lshl_b32 s{sT1}, s{sT1}, 1", f"s_and_b32 s{sT0}, s{sWAVE}, 1",
          f"s_add_u32 s{sT1}, s{sT1}, s{sT0}", f"s_lshl_b32 s{sT0}, s{sT1}, 14", f"s_add_u32 s{sHW}, s{sHW}, s{sT0}", f"s_lshl_b32 s{sT1}, s{sT1}, 16",
          f"s_add_u32 s{sHO}, s{sHO}, s{sT1}", f"s_add_u32 s6, s{sT1}, 0x10000", f"s_mov_b32 s4, s{sWO}", f"s_mov_b32 s5, s{sWO+1}",
          f"s_lshr_b32 s{sT0}, s{sWAVE}, 1", f"s_lshl_b32 s{sT1}, s{sT0}, 7", f"s_add_u32 s{sHO}, s{sHO}, s{sT1}", f"s_lshl_b32 s{sT1}, s{sT0}, 12", f"s_add_u32 s{sHW}, s{sHW}, s{sT1}",
          f"s_mul_i32 s{sWB}, s{sBR}, {4*WN}", f"s_add_u32 s{sWB}, s{sWB}, {WOP + PAD}", f"s_add_u32 s{sHW}, s{sHW}, s{sWB}",
          f"s_mul_i32 s{sT0}, s{sN4}, {WN}", f"s_add_u32 s{sWB}, s{sWB}, s{sT0}"]
    t0s, stride, cnts = SM()
    L += [f"s_mul_i32 s{sT0}, s{sWAVE}, {(5 - t0s[1])*TS}", f"s_sub_u32 s{sSO}, s{sOOFF}, s{sT0}", f"s_add_u32 s{sT0}, s{sOOFF}, {(t0s[3] - 15)*TS}",
          f"s_cmp_eq_u32 s{sWAVE}, 3", f"s_cselect_b32 s{sSO}, s{sT0}, s{sSO}", f"s_cselect_b32 s{sSX}, {8 - cnts[3]}, {8 - cnts[1]}",
          f"s_cmp_eq_u32 s{sWAVE}, 0", f"s_cselect_b32 s{sSX}, {8 - cnts[0]}, s{sSX}", f"s_cselect_b32 s{sEV}, 4, -1",
          f"s_mov_b32 s{sHEAD}, 0", f"s_mov_b32 s{sREDO}, 0", f"s_mov_b32 s{sLAST}, 0"]
    if Opt.rot: L += [f"s_lshr_b32 s{sROT}, s2, 5", f"s_xor_b32 s{sROT}, s{sROT}, s2", f"s_and_b32 s{sROT}, s{sROT}, 31", f"s_lshl_b32 s{sROT}, s{sROT}, 13"]
    else: L += [f"s_mov_b32 s{sROT}, 0"]
    return L

def kernel():
    a = Asm()
    a("s_cmp_ge_u32 s2, 256\ns_cbranch_scc1 L_end")
    a("s_load_dwordx8 s[84:91], s[0:1], 0\ns_load_dwordx2 s[92:93], s[0:1], 32\ns_load_dwordx8 s[40:47], s[0:1], 40\ns_load_dwordx2 s[94:95], s[0:1], 72")
    a(f"s_load_dwordx2 s[{sOUT}:{sOUT+1}], s[0:1], 80\ns_load_dwordx2 s[{sDBG}:{sDBG+1}], s[0:1], 88\ns_load_dwordx2 s[{sWS}:{sWS+1}], s[0:1], 96")
    pstamp(a, 0)
    a(f"v_lshrrev_b32 v2, 6, v0\nv_and_b32 v1, 63, v0\nv_readfirstlane_b32 s{sWAVE}, v2")
    if Opt.code_pf:
        a("s_getpc_b64 s[96:97]\ns_bfe_u32 s48, s2, 0x20003\ns_lshl_b32 s48, s48, 15\nv_lshlrev_b32 v3, 7, v0\nv_add_u32 v3, s48, v3")
        a("v_min_u32 v3, CODE_SIZE, v3\nglobal_load_dword a255, v3, s[96:97]")
    a(f"s_bfe_u32 s{sBR}, s2, 0x10002\ns_lshr_b32 s{sB1}, s2, 5\ns_and_b32 s{sH0}, s2, 3\ns_lshl_b32 s{sH0}, s{sH0}, 3")
    a(f"s_bfe_u32 s{sT0}, s2, 0x20003\ns_lshl_b32 s{sT0}, s{sT0}, 1\ns_add_u32 s{sH0}, s{sH0}, s{sT0}")
    a("v_and_b32 v30, 15, v1\nv_lshrrev_b32 v31, 4, v1")
    a("v_and_b32 v33, 7, v1\nv_xor_b32 v33, v33, v31\nv_lshrrev_b32 v34, 3, v1\nv_lshlrev_b32 v35, 20, v31")
    for jj in range(4):
        a(f"v_xor_b32 v32, {4*(jj%2)}, v33\nv_lshlrev_b32 v32, 4, v32\nv_lshl_add_u32 v32, v34, 10, v32\nv_add_u32 v{VXD+jj}, {jj*8192 - jj*1024}, v32")
    a("v_lshrrev_b32 v2, 1, v30\nv_xor_b32 v2, v2, v31\nv_and_b32 v3, 1, v30\nv_lshlrev_b32 v3, 4, v3\nv_lshl_add_u32 v3, v31, 13, v3")
    for j in range(4):
        a(f"v_xor_b32 v32, {(j>>1)<<2}, v2\nv_lshl_add_u32 v32, v32, 5, v3\nv_add_u32 v{VDA+j}, {j*32768 - j*1024}, v32")
    a(f"s_mul_i32 s{sM0X}, s{sWAVE}, 10240\ns_add_u32 s{sM0X}, s{sM0X}, {XB}\ns_mul_i32 s{sXOFF}, s{sWAVE}, {80*1024}")
    a(f"s_mov_b32 s10, 311296\ns_mov_b32 s11, 0x20000\ns_mov_b32 s15, 0x20000")
    a(f"s_mul_i32 s{sT0}, s{sB1}, 311296\ns_lshl_b32 s{sT1}, s{sH0}, 8\ns_sub_u32 s14, 0x400000, s{sT1}")
    a(f"s_waitcnt lgkmcnt(0)\ns_cmp_eq_u32 s{sBR}, 1")
    for r in range(8): a(f"s_cselect_b32 s{84+r}, s{40+r}, s{84+r}")
    a(f"s_cselect_b32 s{sWO}, s94, s92\ns_cselect_b32 s{sWO+1}, s95, s93")
    a(f"s_add_u32 s8, s84, s{sT0}\ns_addc_u32 s9, s85, 0\ns_add_u32 s12, s90, s{sT1}\ns_addc_u32 s13, s91, 0")
    if Opt.stamps: stamp_start(a, 40)
    if Opt.touch & 1:
        a("buffer_load_dword a254, off, s[8:11], 0\nbuffer_load_dword a254, v35, s[12:15], 0 offen")
    for l in fix_hazards(first_loads()): a(l)
    a(f"s_cmp_eq_u32 s{sWAVE}, 3\ns_cbranch_scc1 L_x8")
    for l in flat(x_dma(5, 0, 0, [8, 9]))[:-1]: a(l)
    a.label("L_x8")
    a(f"s_add_u32 s{sXOFF}, s{sXOFF}, 128")
    zs = [f"{MF32} v[{r}:{r+15}], {ZQ}, {ZQ}, 0" for r in range(240, 31, -16)] + [zero16(16 * k) for k in range(6)]
    sh = [f"v_accvgpr_write_b32 a{A_Z+r}, 0" for r in range(4)] + weave(late_setup(), zs, 4)
    for l in fix_hazards(sh): a(l)
    a(f"s_cmp_eq_u32 s{sWAVE}, 3\ns_cbranch_scc1 L_var4")
    variant(a, 5, "5")
    a.label("L_var4")
    variant(a, 4, "4")
    side_code = oproj(a)
    a.label("L_fin")
    if Opt.stamps:
        a("s_waitcnt vmcnt(0)\ns_barrier")
        pstamp(a, 14)
        stamp_end(a, 40, sWS, 32, 0, 2, 48)
        pdump(a, sWS, 15, 2)
    a.label("L_end")
    a("s_endpgm")
    side_code()
    return a.text()

HDR = open("cdna_kernels/" + NAME + ".s.ref").read().split("; Override launch")[0]

def build(fname):
    k = NAME + "_kernel"
    txt = HDR + f"; @launch grid=(256,1,1) block=(256,1,1) lds={LDS1}\n" + '.amdgcn_target "amdgcn-amd-amdhsa--gfx950"\n.text\n'
    txt += kernel_open(k)
    post = f"L_code_end:\n.set CODE_SIZE, L_code_end - {k} - 256\n"
    body = kernel().rstrip("\n").split("\n")
    if Opt.al:
        body, nn, ne = align.align(txt, body, post)
    txt += "\n".join(body) + "\n" + post
    txt += '.section .rodata,"a"\n' + kernel_desc(k, 512, 256)
    open(fname, "w").write(txt)

if __name__ == "__main__":
    out = sys.argv[1] if len(sys.argv) > 1 else "cdna_kernels/" + NAME + ".s"
    for kv in sys.argv[2:]:
        k, v = kv.split("=")
        cur = getattr(Opt, k)
        if isinstance(cur, bool): v = v == "1"
        elif isinstance(cur, int): v = int(v)
        else: v = (" " + v.replace("+", " ")) if v else ""
        setattr(Opt, k, v)
    build(out)
```

```python
import hazard
def insert_lgkm(body, loop=True):
    import re
    need = {}
    def run(state):
        out = state
        for idx, l in enumerate(body):
            p = hazard.parse(l)
            if p is None: continue
            if p["op"] == "s_waitcnt":
                m = re.search(r"lgkmcnt\((\d+)\)", l)
                if m:
                    k = int(m.group(1))
                    out = out[len(out) - k:] if k < len(out) else out
                    if k == 0: out = []
                continue
            touched = p["r"] | p["w"]
            last = -1
            for j, d in enumerate(out):
                if d & touched: last = j
            if idx in need:
                k = need[idx]
                if last >= 0:
                    k = min(k, len(out) - 1 - last)
                    need[idx] = k
                out = out[len(out) - k:] if 0 < k < len(out) else ([] if k == 0 else out)
            elif last >= 0:
                k = min(14, len(out) - 1 - last)
                need[idx] = k
                out = out[len(out) - k:] if k > 0 else []
            if p["kind"] == "ds":
                out = out + [set(p["w"])]
        return out
    st = run([])
    if loop:
        st = run(st)
        st = run(st)
    res = []
    for idx, l in enumerate(body):
        if idx in need: res.append(f"s_waitcnt lgkmcnt({need[idx]})")
        res.append(l)
    return res

def resolve_vm(segments):
    import re
    seq = []
    need = {}
    for si, (lines, niter, per) in enumerate(segments):
        for it in range(niter):
            for li, l in enumerate(lines):
                m = re.search(r"vmcnt\(\?([\w|]+):(-?\d+)\)", l)
                if m:
                    for kind in m.group(1).split("|"):
                        tag = (kind, int(m.group(2)) + it * per.get(kind, 0))
                        idx = [i for i, t in enumerate(seq) if t == tag]
                        if not idx: raise RuntimeError(f"tag {tag} never issued before wait: {l}")
                        n = len(seq) - 1 - idx[-1]
                        need[(si, li)] = min(need.get((si, li), 63), n)
                    continue
                s = l.strip()
                if s.startswith("buffer_") or s.startswith("global_"):
                    m = re.search(r"; tag=(\w+):(-?\d+)", l)
                    seq.append((m.group(1), int(m.group(2)) + it * per.get(m.group(1), 0)) if m else None)
    out = []
    for si, (lines, niter, per) in enumerate(segments):
        res = []
        for li, l in enumerate(lines):
            if (si, li) in need: l = re.sub(r"vmcnt\(\?[\w|]+:-?\d+\)", f"vmcnt({need[(si, li)]})", l)
            res.append(l)
        out.append(res)
    return out
```

```python
import sys, math, struct, re
sys.path.insert(0, "tools")
from asmlib import *
from sched import *
import hazard, waits, align

def f2u(x): return struct.unpack("<I", struct.pack("<f", x))[0]
SCALE = math.log2(math.e) / math.sqrt(128.0)

class Opt:
    stamps = False
    clk = False
    trace = False
    nt_kv = " nt"
    nt_x = " nt"
    st_o = " sc1"
    ld_o = " sc1"
    ld_wo = " sc1"
    st_out = ""
    delay = 4
    ldscost = 8
    poll_ks = 9
    bpos = 3
    al = True
    rot = 1
    code_pf = True
    thr = 32
    ldgap = 8
    sm = 2
    spos = 0
    ssch = " 12,2,2,2,2"
    sig_ks = 6
    se = False
    qord = 0
    och = 2
    bspan = 50
    bg = 134
    sord = 0
    fgap = 6
    nfl = 26
    pre_x = 2
    wgap = 56

def vq(b): return f"v[{b}:{b+3}]"
def aq(b): return f"a[{b}:{b+3}]"
MF = "v_mfma_f32_16x16x32_bf16"
MF32 = "v_mfma_f32_32x32x16_bf16"

def pstamp(a, k, early=False):
    if Opt.se and k == 1 and not early: k = 5
    elif Opt.se and 1 <= k <= 5 and not early: return
    if early and not Opt.se: return
    if Opt.stamps: a(f"{'s_memtime' if Opt.clk else 's_memrealtime'} s[{72+2*k}:{73+2*k}]")
def pdump(a, ws, n, rec):
    a("s_waitcnt lgkmcnt(0)")
    for k in range(16): a(f"v_mov_b32 v{32+k}, s{72+2*min(k, n-1)}")
    a(f"s_lshl_b32 s48, s{rec}, 6\ns_add_u32 s48, s48, {STAMP_OFF + 65536}\nv_mov_b32 v48, s48")
    a("v_cmp_eq_u32 vcc, 0, v0\ns_and_saveexec_b64 s[46:47], vcc")
    a(f"s_cbranch_execz L_pd")
    for k in range(4): a(f"global_store_dwordx4 v48, v[{32+4*k}:{35+4*k}], s[{ws}:{ws+1}] offset:{16*k}")
    a("s_waitcnt vmcnt(0)")
    a.label("L_pd")
    a("s_mov_b64 exec, s[46:47]")

def fix_hazards(lines, prefix=()):
    out = list(prefix)
    npre = len(out)
    for l in lines:
        while True:
            win = out[-26:] + [l]
            new = hazard.check(win)[len(hazard.check(win[:-1])):]
            if not new: break
            need = max(int(m.group(1)) - int(m.group(2)) for m in (re.search(r"need (\d+) have (\d+)", e) for e in new))
            out.append(f"s_nop {need-1}")
        out.append(l)
    return out[npre:]

def flat(items):
    r = []
    for (t, c) in items: r += t.split("\n")
    return r

def spread(fl, items, lo, hi, prio):
    prev = None
    n = len(items)
    for k, (txt, cost) in enumerate(items):
        p = lo + (k * (hi - lo + 1)) // n
        nx = max(p, lo + ((k + 1) * (hi - lo + 1)) // n - 1)
        f = F(txt, cost, p, nx, deps=[prev] if prev else [], prio=prio + k, depgap=1 if (hi - lo + 1) >= n else 0)
        fl.append(f); prev = f

def weave(main, extra, every, start=0):
    out = []; extra = list(extra)
    for k, l in enumerate(main):
        out.append(l)
        if k >= start and (k - start) % every == every - 1 and extra: out.append(extra.pop(0))
    return out + extra

VKA, VVA, VDA, VDB, VXD, VXA = 4, 8, 16, 20, 24, 28
VPK, VPV = 240, 244
VOD, VSR, VSW = 24, 25, 27
def VRC(nq): return [26, 28, 30, 20, 22] if nq == 5 else [26, 28, 30, 72]
VPA, VPD = 29, 31
S0, P0, NM0, QLO, QTOP = 32, 56, 76, 96, 176
A_O, A_K, A_V, A_L, A_ONES, A_Z = 0, 160, 192, 224, 244, 248
A_X, A_W = 96, 176
XB, XBUF = 65536, 40960
XW = 20480
FLAG = XB + 2 * XBUF
LDS1 = FLAG + 64
sWAVE = 3
sDOFF, sINC0, sINC1, sXOFF, sM0X, sCNT, sHEAD, sREDO, sLAST, sEV = 30, 31, 32, 33, 34, 35, 36, 37, 26, 27
sSC = 38
sT0, sT1, sOOFF, sTHR = 48, 49, 50, 51
sG1, sG2, sG3 = 52, 53, 54
sDBG, sOUT, sWS = 56, 58, 60
sBR, sB1, sH0, sB2, sQG, sN4 = 62, 63, 64, 65, 66, 67
sWO = 68
sHO, sHW = 70, 71
sRAW, sROT, sMH, sML = 0, 1, 44, 45
sSO, sSX, sWB = 68, 69, 46
PAD = 256
TS, WN = 131072 + PAD, 0x100000 + PAD
WOP = (2 * 8 * 19 + 2) * TS
FLW = WOP + 8 * WN + PAD
def SM(): return [((0, 1, 2, 0), 3, (7, 6, 6, 0)), ((0, 5, 10, 15), 1, (5, 5, 5, 4)), ((0, 1, 2, 18), 3, (6, 6, 6, 1))][Opt.sm]
def VWR(nq): return (2, 3) if nq == 5 else (252, 253)
def VWA(nq): return 20 if nq == 5 else 248

def O(i, dt): return aq(A_O + (i * 8 + dt) * 4)
def Q(i, s, base=QTOP): return vq(base + (i * 4 + s) * 4)
def Sreg(i, t): return S0 + (i % 3) * 8 + t * 4
def PT(i, slot=0): return P0 + 4 * i if i < 4 else 16 + 4 * (slot % 2)
VIX = 74
ZQ = aq(A_Z)

def acc_loc(eta, i, s):
    fi = i * 4 + s
    if eta == 0: return ("v", 32 + 8 * (8 + fi))
    if fi >= 12: return ("v", 32 + 8 * (fi - 12))
    return ("a", 8 * fi)
def acc(eta, i, nt):
    f, b = acc_loc(eta, i, nt // 2)
    b += (nt % 2) * 4
    return f"{f}[{b}:{b+3}]"

def doff_update():
    return [f"s_add_u32 s{sT1}, s{sRAW}, s{sROT}", f"s_and_b32 s{sT1}, s{sT1}, s{sML}", f"s_and_b32 s{sDOFF}, s{sRAW}, s{sMH}", f"s_or_b32 s{sDOFF}, s{sDOFF}, s{sT1}"]
def ring_dma(slot, inc, tag=0):
    res = []
    for g in range(4):
        srd = "s[12:15]" if g < 2 else "s[16:19]"
        vb = VDA if g < 2 else VDB
        for j in range(4):
            t = ""; c = 4
            so = f"s{sDOFF}" if g == 0 else f"s{sT1}"
            if j == 0:
                t = f"s_mov_b32 m0, {slot*16384 + g*4096}\n"
                t += f"s_add_u32 s{sT1}, s{sDOFF}, s{sG1 + g - 1}\n" if g else f"s_add_u32 s{sRAW}, s{sRAW}, {inc}\n"
                c = 8
            t += f"buffer_load_dwordx4 v{vb+j}, {srd}, {so} offen offset:{j*1024}{Opt.nt_kv} lds ; tag=R:{tag}"
            res.append((t, c))
    res.append(("\n".join(doff_update()), 8))
    return res

def x_dma(nq, buf, tag, js=None):
    res = []
    js = list(range(2 * nq)) if js is None else js
    for j in js:
        G, jj = j // 4, j % 4
        t = ""; c = 4
        if jj == 0 or j == js[0]:
            t = f"s_add_u32 m0, s{sM0X}, {buf*XBUF + G*4096}\ns_add_u32 s{sT0}, s{sXOFF}, {G*32768}\n"; c = 8
        t += f"buffer_load_dwordx4 v{VXD+jj}, s[8:11], s{sT0} offen offset:{jj*1024}{Opt.nt_x} lds ; tag=X:{tag}"
        if j == 2 * nq - 1:
            t += f"\ns_add_u32 s{sXOFF}, s{sXOFF}, 128"; c = 8
        res.append((t, c))
    return res

def wo_reads(nq):
    return [f"ds_read_b64_tr_b16 a[{A_V + f*4 + t*2}:{A_V + f*4 + t*2 + 1}], v{VWR(nq)[(f//2)%2]} offset:{(f//4)*4096 + t*2048 + (f%2)*8}" for f in range(8) for t in range(2)]
def wo_stores():
    return [f"buffer_store_dwordx4 {aq(A_V + f*4)}, v{VOD}, s[20:23], s{sHW if f < 4 else sHO} offen offset:{(f%4)*1024}{Opt.st_o}" for f in range(8)]

def w_reads(nq, slot, nt):
    r = []
    for kk in range(2):
        for h in range(2):
            b = A_W + (nt % 4) * 8 + kk * 4 + h * 2
            r.append(f"ds_read_b64_tr_b16 a[{b}:{b+1}], v{VWA(nq) + nt//2} offset:{slot*16384 + kk*8192 + h*1024 + (nt%2)*8}")
    return r
def x_reads(nq, xset, buf):
    r = []
    for i in range(nq):
        for kk in range(2):
            b = A_X + xset * 40 + (i * 2 + kk) * 4
            r.append(f"ds_read_b128 a[{b}:{b+3}], v{VXA+kk} offset:{buf*XBUF + i*2048}")
    return r
def k_reads(slot):
    r = []
    for t in range(2):
        for s in range(4):
            b = A_K + (t * 4 + s) * 4
            r.append(f"ds_read_b128 a[{b}:{b+3}], v{VKA+s} offset:{slot*16384 + t*4096}")
    return r

def qproj_unit(nq, u):
    slot, eta, xset = u % 4, u % 2, (u // 2) % 2
    G = 2 * nq
    mf = []
    for nt in range(8):
        for j in range(2 * nq):
                i, kk = (j // 2, j % 2) if Opt.qord == 0 else (j % nq, j // nq)
                if Opt.qord == 2 and kk: i = nq - 1 - i
                c = acc(eta, i, nt)
                mf.append(f"{MF} {c}, {aq(A_W + (nt%4)*8 + kk*4)}, {aq(A_X + xset*40 + (i*2+kk)*4)}, {c}")
    n = len(mf)
    fl = []
    for nt in range(8):
        n2 = nt + 2
        rs = w_reads(nq, slot, n2) if n2 < 8 else w_reads(nq, (slot + 1) % 4, n2 - 8)
        for k, r in enumerate(rs):
            fl.append(F(r, 4, nt * G + 1, nt * G + 4, prio=k))
    pre = {}
    if eta == 1:
        pre[3 * G] = [f"s_waitcnt vmcnt(?X:{u//2 + 1})"]
        for k, r in enumerate(x_reads(nq, xset ^ 1, xset ^ 1)):
            fl.append(F(r, 4, 3 * G + 2, 5 * G + 3, prio=100 + k))
    items = x_dma(nq, xset, u // 2 + 2, list(range(eta * nq, eta * nq + nq)))
    if nq == 4:
        pre[6 * G] = [f"s_waitcnt vmcnt(?R:{u+1}) lgkmcnt(0)", "s_barrier"]
        items += ring_dma((slot - 1) % 4, f"s{sINC0 + (1 - eta)}", u + 3)
        spread(fl, items, 0, n - 1, 200)
    else:
        pre[6 * G] = ["s_waitcnt vmcnt(?R:1) lgkmcnt(0)" if u == 0 else "s_waitcnt lgkmcnt(0)", "s_barrier"]
        spread(fl, items, 3, 5 * G, 200)
    out, over = schedule(mf, fl, 8, pre)
    return out

def attn_step(nq, slot, store):
    nslot = (slot + 1) % 4
    w3 = nq == 4
    mf = []
    for i in range(nq):
        for j in range(8):
                t, s = (j // 4, j % 4) if Opt.sord == 0 else (j % 2, j // 2)
                d = vq(Sreg(i, t))
                c = vq(NM0 + i * 4) if s == 0 else d
                mf.append(f"{MF} {d}, {aq(A_K + (t*4+s)*4)}, {Q(i,s)}, {c}")
    nA = len(mf)
    first_pv = []
    for i in range(nq):
        first_pv.append(len(mf))
        for dt in range(8):
            mf.append(f"{MF} {O(i,dt)}, {aq(A_V + dt*4)}, {vq(PT(i, slot))}, {O(i,dt)}")
        if i % 2 or (i == 4 and slot % 2):
            b = PT(i & 6)
            mf.append(f"v_smfmac_f32_16x16x64_bf16 {aq(A_L + (i//2)*4)}, {aq(A_ONES)}, v[{b}:{b+7}], v{VIX}")
    n = len(mf)
    fl = []
    so = slot * 16384
    for dt in range(8):
        for t in range(2):
            b = A_V + dt * 4 + t * 2
            fl.append(F(f"ds_read_b64_tr_b16 a[{b}:{b+1}], v{VVA+dt} offset:{so + 8192 + t*4096}", 4, 0, 12, prio=dt))
    for i in range(nq):
        dl = first_pv[i]
        for t in range(2):
            dlc = dl - 3
            if i + 3 < nq: dlc = min(dlc, 8 * (i + 3) + (4 if Opt.sord == 0 else 1) * t - 1)
            es = []
            for r in range(4):
                v = Sreg(i, t) + r
                e = F(f"v_exp_f32 v{v}, v{v}", 8, i * 8 + (t * 4 + 3 if Opt.sord == 0 else 6 + t) + Opt.delay, dlc - 1, prio=i * 8 + t * 4 + r)
                es.append(e); fl.append(e)
            for h in range(2):
                v = Sreg(i, t) + 2 * h
                fl.append(F(f"v_cvt_pk_bf16_f32 v{PT(i, slot)+t*2+h}, v{v}, v{v+1}", 4, 0, dlc, deps=es[2*h:2*h+2], prio=i * 8 + t * 4 + 2*h + 1))
    for k, r in enumerate(k_reads(nslot)):
        fl.append(F(r, Opt.ldscost if (nq == 5 and not (store and slot == 0)) else 4, nA, n - 10, prio=500 + k))
    pre = {0: ["s_waitcnt lgkmcnt(0)"]}
    vmw = "vmcnt(32) " if w3 else ""
    if w3 and store == 2:
        def lin(lds, off, cnt):
            return [((f"s_mov_b32 m0, {lds + j*1024}\ns_mov_b32 s{sT1}, {off + j*1024}\n" if j % 4 == 0 else "") +
                     f"buffer_load_dwordx4 v{VOD}, s[4:7], s{sT1} offen offset:{(j%4)*1024}{Opt.ld_wo} lds", 8 if j % 4 == 0 else 4) for j in range(cnt)]
        nx = 8 * Opt.pre_x
        if nx: spread(fl, lin(XB + slot * XW, slot * 65536 + 0x40000, nx), 0, nA - 2, 550)
        spread(fl, lin(slot * 16384, slot * 65536 + 16384, 16), nA, n - 1, 600)
        vmw = f"vmcnt({min(63, 32 + nx * (slot + 1))}) " if slot < 3 else ""
    elif w3: spread(fl, ring_dma(slot, "0x2000"), nA, n - 1, 600)
    pre[nA] = [f"s_waitcnt {vmw}lgkmcnt(0)", "s_barrier"]
    if store == 1:
        stride = SM()[1]
        if slot == 0:
            rs = [F(f"ds_read_b128 {vq(QLO + 4*q)}, v{VSR} offset:{q*1024}", 4, nA + 2, n - 8, prio=700 + q) for q in range(4)]
            fl += rs + [F(f"v_add_u32 v{VSR}, {stride*4096}, v{VSR}", 4, 0, n - 1, deps=rs, prio=800)]
        qs = [{0: [], 1: [0, 1], 2: [2, 3], 3: []}, {0: [], 1: [0, 1], 2: [2], 3: [3]}][Opt.spos][slot]
        for k, q in enumerate(qs):
            pos = 14 + k * (n // 2)
            t = f"buffer_store_dwordx4 {vq(QLO + 4*q)}, v{VOD}, s[20:23], s{sSO} offen offset:{q*1024}{Opt.st_o}"
            fl.append(F(t + (f"\ns_add_u32 s{sSO}, s{sSO}, {stride*TS}" if q == 3 else ""), 4 + 4 * (q == 3), pos, pos + 12, prio=700 + k))
    out, over = schedule(mf, fl, 8, pre)
    return out

def maxpass_mf(nq, qbase):
    return [f"{MF} {vq(PT(i))}, {aq(A_K + s*4)}, {Q(i, s, qbase)}, {vq(PT(i)) if s else 0}" for i in range(nq) for s in range(4)]
def max_finish(nq):
    L = []
    for sw in ("v_permlane32_swap_b32", "v_permlane16_swap_b32"):
        for i in range(nq): L.append(f"v_mov_b32 v{PT(i)+1}, v{PT(i)}")
        for i in range(nq): L.append(f"{sw} v{PT(i)}, v{PT(i)+1}")
        for i in range(nq): L.append(f"v_max_f32 v{PT(i)}, v{PT(i)}, v{PT(i)+1}")
    for i in range(nq):
        for r in range(4): L.append(f"v_xor_b32 v{NM0+i*4+r}, 0x80000000, v{PT(i)}")
    return L
def max_chain(nq):
    L = [f"v_max3_f32 v{PT(i)}, v{PT(i)}, v{PT(i)+1}, v{PT(i)+2}" for i in range(nq)]
    L += [f"v_max_f32 v{PT(i)}, v{PT(i)}, v{PT(i)+3}" for i in range(nq)]
    return L + max_finish(nq)
def zero16(b, z=ZQ): return f"{MF32} a[{b}:{b+15}], {z}, {z}, 0"
def zero_L(nq): return [zero16(A_L)]

def _qs(f, b, n): return [(f, b + 4 * k) for k in range(n)]
AQ = [_qs("v", QLO + 16, 8), _qs("v", QLO + 48, 8), _qs("a", 160, 8), _qs("v", 32, 8)]
BQ = [_qs("v", QLO, 4) + _qs("a", 192, 16), _qs("v", QTOP, 20)]
sPR = 92
def _q(t): return f"{t[0]}[{t[1]}:{t[1]+3}]"
def fa(st, nu): return _q(AQ[st][nu])
def fb(hb, st, i): return _q(BQ[hb][st * 5 + i])
VO2, VW2, VRW, VRR, VXR = 4, 9, 13, 16, 19
def ld_a(st, nu, tag):
    so = f"s{sHW}" if st == 0 else f"s{sG1 + st - 1}"
    return f"buffer_load_dwordx4 {fa(st, nu)}, v{VW2 + nu//2}, s[4:7], {so} offen offset:{(nu%2)*1024}{Opt.ld_wo} ; tag=A{st}{nu}:{tag}"
def ld_b(hb, st, i, tag):
    return f"buffer_load_dwordx4 {fb(hb, st, i)}, v{VO2 + i}, s[8:11], s{sHO} offen offset:{st*1024}{Opt.ld_o} ; tag=B{st}{i}:{tag}"
def op_wsoff():
    return [f"s_add_u32 s{sG1 + st - 1}, s{sHW}, {st*8192}" for st in range(1, 4)]
def osrc(d):
    return [f"s_lshl_b32 s{sT0}, s{sBR}, 3", f"s_add_u32 s{sT0}, s{sT0}, s{sB2}", f"s_mul_i32 s{sT0}, s{sT0}, 19", f"s_mul_i32 s{sT1}, s{sQG}, 5",
            f"s_add_u32 s{sT0}, s{sT0}, s{sT1}", f"s_mul_i32 s{d}, s{sT0}, {TS}"]
def op_srd():
    return osrc(sT0) + [f"s_add_u32 s8, s{sWS}, s{sT0}", f"s_addc_u32 s9, s{sWS+1}, 0", f"s_sub_u32 s10, 19, s{sT1}", f"s_mul_i32 s10, s10, {TS}"]
def out_off():
    return [f"s_mul_i32 s{sT0}, s{sB2}, 304", f"s_mul_i32 s{sT1}, s{sQG}, 80", f"s_add_u32 s{sT0}, s{sT0}, s{sT1}", f"s_lshl_b32 s{sT0}, s{sT0}, 11"]
def op_setup():
    L = []
    for i in range(5): L.append(f"v_add_u32 v{VO2+i}, {i*TS + PAD}, v{VOD}")
    for p in range(4):
        L += [f"s_and_b32 s{sT0}, s{sPR+p}, 0x1fff", f"v_add_u32 v{VW2+p}, s{sT0}, v{VOD}"]
    L += [f"s_lshl_b32 s{sHO}, s{sWAVE}, 13", f"s_lshl_b32 s{sHW}, s{sWAVE}, 16"]
    return L
def b_order():
    c = Opt.och
    return [(g * c + j % c, j // c, 40 * c * g + 1 + j * (40 * c * Opt.bspan // 100) // (5 * c)) for g in range(4 // c) for j in range(5 * c)]
def op_loads0(): return [ld_b(0, st, i, 0) for st, i, g in b_order()]
sOT = 30
def o_plan():
    when = [t - 1 for t, n in enumerate(int(x) for x in Opt.ssch.split(",")) for _ in range(n)]
    assert len(when) == 20
    bq = {st * 5 + i: g // 40 for st, i, g in b_order()}
    slots = sorted(range(20), key=lambda j: bq[j]); spare = [64, 68, 76, 80, 84, 88, 92]
    plan = []
    for t in when:
        ok = [j for j in slots if bq[j] > t]
        if ok: plan.append((QTOP + 4 * ok[0], t)); slots.remove(ok[0])
        else: plan.append((spare.pop(0), t))
    return plan
def st_o(k):
    return f"buffer_store_dwordx4 {vq(o_plan()[k][0])}, v{VOD}, s[20:23], s{sOT + k//4} offen offset:{(k%4)*1024}{Opt.st_o} ; tag=S:0"
E1 = {}
def op_advance():
    return [f"s_add_u32 s{sHW}, s{sHW}, 0x40000", f"s_cmp_ge_u32 s{sHW}, 0x100000", f"s_cselect_b32 s{sT0}, {0x100000 - 0x8000}, 0",
            f"s_sub_u32 s{sHW}, s{sHW}, s{sT0}", f"s_lshr_b32 s{sHO}, s{sHW}, 3"] + op_wsoff()

def own_word(kind):
    L = [f"s_lshl_b32 s{sT0}, s{sBR}, 3", f"s_add_u32 s{sT0}, s{sT0}, s{sB1}", f"s_lshl_b32 s{sT0}, s{sT0}, 7", f"s_lshl_b32 s{sT1}, s{sH0}, 1",
         f"s_add_u32 s{sT0}, s{sT0}, s{sT1}", f"s_add_u32 s{sT0}, s{sT0}, {FLW + (64 if kind == 2 else 0)}"]
    L += [f"v_lshl_add_u32 v1, v{VOD}, 2, s{sT0}", f"v_mov_b32 v2, {16 if kind else 0}", f"s_mov_b64 exec, {1 if kind else 3}"]
    return L + [f"global_store_dword v1, v2, s[{sWS}:{sWS+1}] sc0 sc1", "s_mov_b64 exec, -1"]
def signal(a, kind):
    if kind:
        for l in own_word(kind): a(l)
        return
    a(f"s_lshl_b32 s{sT0}, s{sBR}, 3\ns_add_u32 s{sT0}, s{sT0}, s{sB1}\ns_lshl_b32 s{sT0}, s{sT0}, 2")
    a(f"v_mov_b32 v1, s{sT0}\nv_mov_b32 v2, 1\ns_mov_b64 exec, 1")
    a(f"global_atomic_add v1, v2, s[{sDBG}:{sDBG+1}] sc1\ns_mov_b64 exec, -1")
def poll_issue(a, kind):
    if kind == 0:
        a(f"s_lshl_b32 s{sT0}, s{sBR}, 5\nv_and_b32 v{VPA}, 7, v0\nv_lshl_add_u32 v{VPA}, v{VPA}, 2, s{sT0}")
    else:
        a(f"s_lshl_b32 s{sT0}, s{sBR}, 3\ns_add_u32 s{sT0}, s{sT0}, s{sB2}\ns_lshl_b32 s{sT0}, s{sT0}, 7\ns_add_u32 s{sT0}, s{sT0}, {FLW + (64 if kind == 2 else 0)}")
        a(f"v_and_b32 v{VPA}, 15, v0\nv_lshl_add_u32 v{VPA}, v{VPA}, 2, s{sT0}")
    b = sWS if kind else sDBG
    a(f"global_load_dword v{VPD}, v{VPA}, s[{b}:{b+1}] sc0 sc1")
def poll_wait(a, kind, lbl, done, first_wait="vmcnt(0)"):
    b = sWS if kind else sDBG
    a(f"s_mov_b32 s{sT1}, 0x20000\ns_waitcnt {first_wait}")
    a.label(lbl)
    a(f"v_cmp_gt_u32 vcc, 16, v{VPD}\ns_sub_u32 s{sT1}, s{sT1}, 1\ns_cmp_eq_u32 s{sT1}, 0\ns_cbranch_scc1 {done}")
    a(f"s_nop 2\ns_cbranch_vccz {done}")
    a(f"global_load_dword v{VPD}, v{VPA}, s[{b}:{b+1}] sc0 sc1\ns_sleep 4\ns_waitcnt vmcnt(0)\ns_branch {lbl}")

def oproj(a):
    a.label("L_op")
    pstamp(a, 9)
    n3 = sum(l.startswith("buffer_") for l in E1[4])
    pro = [f"s_lshl_b32 s{sT0}, s{sWAVE}, 14"] + [f"v_add_u32 v{VRW+p}, s{sT0}, v{VW2+p}" for p in range(4)] + [f"s_waitcnt vmcnt({n3})", "s_barrier"]
    if Opt.pre_x: pro = [f"s_mul_i32 s{sT1}, s{sWAVE}, {XW}", f"s_add_u32 s{sT1}, s{sT1}, {XB}"] + [f"v_add_u32 v{VXR+p}, s{sT1}, v{VW2+p}" for p in range(4)] + pro
    pro += [f"ds_read_b128 {fa(st, nu)}, v{VRW + nu//2} offset:{(st-2)*8192 + (nu%2)*1024}" for nu in range(8) for st in (2, 3)]
    pro += op_advance() + [f"s_mov_b32 s{sCNT}, 6"]
    def order(c, iouter=False):
        if iouter: return [(st, 2 * p + e, i) for p in range(4) for i in range(5) for e in range(2) for st in range(4)]
        return [(g * c + j, nu, i) for g in range(4 // c) for nu in range(8) for i in range(5) for j in range(c)]
    def mfs(od, hb, tag):
        mf = [f"{MF} {aq((i*8+nu)*4)}, {fa(st, nu)}, {fb(hb, st, i)}, {0 if tag == 0 and st == 0 else aq((i*8+nu)*4)}" for st, nu, i in od]
        seen = set(f"A{st}{nu}" for st in range(4) for nu in range(8) if tag == 0 or (tag == 1 and st < Opt.pre_x))
        pre = {}
        run = 4 if od[0][2] == od[3][2] else 10
        for k in range(0, 160, run):
            new = [t for st, nu, i in od[k:k + run] for t in (f"A{st}{nu}", f"B{st}{i}") if t not in seen]
            seen.update(new)
            if new: pre[k] = [f"s_waitcnt vmcnt(?{'|'.join(dict.fromkeys(new))}:{tag})"]
        return mf, pre
    def half(hb, tag, peel=False):
        od = order(Opt.och)
        mf, pre = mfs(od, hb, tag)
        fl = []
        for st, i, g in b_order(): fl.append(F(ld_b(hb ^ 1, st, i, tag + 1), 4, g, g + 3, prio=g))
        for q in range(4):
            ks = [k for k in range(20) if o_plan()[k][1] == tag * 4 + q] if peel else []
            for j, k in enumerate(ks): fl.append(F(st_o(k), 4, 40 * q + 6 + 30 * j // len(ks), min(40 * q + 39, 40 * q + 10 + 30 * j // len(ks)), prio=200))
            pre[40 * q] = [f"@HOOK{hb}{q}@:"] + pre.get(40 * q, [])
        for st in range(4):
            for nu in range(8):
                t = ld_a(st, nu, tag + 1)
                if tag == 0 and st < Opt.pre_x: t = f"ds_read_b128 {fa(st, nu)}, v{VXR + nu//2} offset:{st*8192 + (nu%2)*1024}"
                g = max(k for k, o in enumerate(od) if o[:2] == (st, nu)) + 1 + (st % Opt.och) * (2 if nu < 7 else 0)
                fl.append(F(t, 4, min(159, g), min(159, g + 3), prio=100 + nu))
        out, over = schedule(mf, fl, 4, pre)
        return out + op_advance() + ([] if peel else [f"s_sub_u32 s{sCNT}, s{sCNT}, 1"])
    od = order(4, True)
    mf, tpre = mfs(od, 1, 7)
    fl = []
    RQ = [b for f, b in AQ[0][:6] + AQ[1][:6] + BQ[0][:4] + AQ[0][6:] + AQ[1][6:] + BQ[1][:10]]
    AC = [48, 64, 72, 80, 88]
    for g, (st, nu, i) in enumerate(od):
        if st < 3: continue
        b = (i * 8 + nu) * 4
        if nu < 6: fl.append(F(f"ds_write_b128 v{VRW + nu//2}, a[{b}:{b+3}] offset:{(i*2 + nu%2)*1024}", 8, max(g + 6, 12), max(g + 8, 16)))
        elif g + 6 < 159:
            for r in range(4): fl.append(F(f"v_accvgpr_read_b32 v{AC[i] + (nu%2)*4 + r}, a{b+r}", 4, g + 5, 159, prio=50))
    misc = []
    for p in range(1, 4):
        misc += [f"s_add_u32 s{sT0}, s{sWAVE}, {p}", f"s_and_b32 s{sT0}, s{sT0}, 3", f"s_mul_i32 s{sT0}, s{sT0}, 30720",
                 f"s_add_u32 s{sT0}, s{sT0}, {(p-1)*10240}", f"v_add_u32 v{VRW+p-1}, s{sT0}, v{VOD}"]
    misc += [f"s_mul_i32 s{sT0}, s{sWAVE}, 30720", f"v_add_u32 v{VRR}, s{sT0}, v{VOD}",
             "v_and_b32 v3, 15, v0", "v_and_b32 v1, 48, v0",
             *out_off(), f"s_lshl_b32 s{sT1}, s{sBR}, 10", f"s_add_u32 s{sT0}, s{sT0}, s{sT1}", f"s_lshl_b32 s{sT1}, s{sN4}, 8",
             f"s_add_u32 s{sT0}, s{sT0}, s{sT1}", f"s_lshl_b32 s{sT1}, s{sWAVE}, 6", f"s_add_u32 s{sT0}, s{sT0}, s{sT1}",
             "v_lshl_add_u32 v2, v3, 11, v1", f"v_add_u32 v2, s{sT0}, v2",
             f"s_mov_b32 s16, s{sOUT}", f"s_mov_b32 s17, s{sOUT+1}", f"s_mov_b32 s18, {8*304*1024*2}"]
    spread(fl, [(m, 4) for m in misc], 0, 2 * len(misc), 10)
    BG = Opt.bg
    rds = []
    for i in range(5):
        for p in range(3):
            for e in range(2):
                b = RQ[i * 6 + p * 2 + e]
                rds.append(f"ds_read_b128 v[{b}:{b+3}], v{VRR} offset:{p*10240 + (i*2+e)*1024}")
    ne = min(16, 160 - BG)
    for k, r in enumerate(rds[:ne]): fl.append(F(r, 4, BG + k, BG + k, prio=k))
    tpre[BG] = ["s_waitcnt lgkmcnt(0)", "s_barrier"]
    tail, over = schedule(mf, fl, 8, tpre)
    assert max(k for k, l in enumerate(tail) if "ds_write" in l) < tail.index("s_barrier")
    done = set(tail)
    tail += rds[ne:]
    for i in range(5):
        for e in range(2):
            for r in range(4):
                l = f"v_accvgpr_read_b32 v{AC[i] + e*4 + r}, a{(i*8+6+e)*4+r}"
                if l not in done: tail.append(l)
    OF = 32
    for i in range(5):
        if i == 4: tail.append("@LAST@:")
        if i != 1: tail.append(f"s_waitcnt lgkmcnt({min(14, 6 * (4 - i))})")
        for p in range(3):
            for e in range(2):
                for r in range(0, 4, 2):
                    d = AC[i] + e * 4 + r; b = RQ[i * 6 + p * 2 + e] + r
                    tail.append(f"v_pk_add_f32 v[{d}:{d+1}], v[{d}:{d+1}], v[{b}:{b+1}]")
        b = AC[i]; d = OF + i * 4
        tail.append(f"s_mov_b32 s{sT0}, {i*32768}")
        for r in range(4): tail.append(f"v_cvt_pk_bf16_f32 v{d+r}, v{b+2*r}, v{b+2*r+1}")
        tail.append(f"buffer_store_dwordx4 v[{d}:{d+3}], v2, s[16:19], s{sT0} offen{Opt.st_out}")
    tail = waits.insert_lgkm(tail, loop=False)
    per = {f"{t}{st}{j}": 2 for t in "AB" for st in range(4) for j in range(8)}
    peel = waits.insert_lgkm(pro + ["@PEEL@:"] + half(0, 0, True) + half(1, 1, True), loop=False)
    peel = peel[peel.index("@PEEL@:") + 1:]
    body = half(0, 2) + ["@MID@:"] + half(1, 3)
    last = half(0, 6)
    SW = "s_waitcnt vmcnt(?S:0)"
    sk = Opt.sig_ks
    if sk < 8: peel.insert(peel.index(f"@HOOK{sk//4}{sk%4}@:"), SW)
    cut = body[:body.index(f"@HOOK0{sk % 4}@:")] + [SW]
    res = []
    for nq in (4, 5):
        r = waits.resolve_vm([(E1[nq], 1, {}), (pro, 1, {}), (peel, 1, {}), (body, 2, per), (last, 1, {}), (tail, 1, {})])[1:]
        res.append(r + [waits.resolve_vm([(E1[nq], 1, {}), (pro, 1, {}), (peel, 1, {}), (cut, 1, {})])[3][-1:]])
    def cnt(l): return int(re.search(r"vmcnt\((\d+)", l).group(1))
    pro, peel, body, last, tail, swait = [[l1 if (l1 == l2 or cnt(l1) <= cnt(l2)) else l2 for l1, l2 in zip(x, y)] for x, y in zip(*res)]
    for l1, l2 in zip(body, last):
        if "vmcnt" in l1: assert cnt(l1) <= cnt(l2)
    def sig(ret):
        pstamp(a, 10)
        a(f"v_mov_b32 v1, {FLAG + 8}\nv_mov_b32 v2, 1\ns_mov_b64 exec, 1\nds_add_rtn_u32 v3, v1, v2\ns_mov_b64 exec, -1\ns_waitcnt lgkmcnt(0)")
        a(f"v_readfirstlane_b32 s{sT0}, v3\ns_nop 3\ns_cmp_lg_u32 s{sT0}, 3\ns_cbranch_scc1 {ret}")
        signal(a, 2)
    for l in fix_hazards(pro): a(l)
    for e in hazard.check(pro + peel + body + body, "op")[:10]: print(e)
    a("; noalign")
    for l in peel:
        if l == f"@HOOK{sk//4}{sk%4}@:":
            sig("L_or_sig"); a.label("L_or_sig")
        elif not l.startswith("@"): a(l)
    a.label("L_opl")
    ks = Opt.poll_ks
    assert 8 <= ks < 12
    npw = sum(l.startswith("buffer_") for l in body[body.index(f"@HOOK0{ks % 4}@:"):body.index("@HOOK10@:")])
    for l in body:
        if l == "@MID@:":
            a(f"s_cmp_eq_u32 s{sCNT}, 1\ns_cbranch_scc1 L_opt"); continue
        m = re.match(r"@HOOK(\d)(\d)@:", l)
        if not m: a(l); continue
        hb, st = int(m.group(1)), int(m.group(2))
        if (hb, st) == ((ks // 4) % 2, ks % 4):
            a(f"s_cmp_eq_u32 s{sCNT}, {8 - ks // 4}\ns_cbranch_scc1 L_oe_pi"); a.label("L_or_pi")
        if (hb, st) == (0, sk - 8):
            a(f"s_cmp_eq_u32 s{sCNT}, 6\ns_cbranch_scc1 L_oe_sig"); a.label("L_or_sig")
        if (hb, st) == (1, 0):
            a(f"s_cmp_eq_u32 s{sCNT}, 5\ns_cbranch_scc1 L_oe_pw"); a.label("L_or_pw")
    a("s_branch L_opl")
    a.label("L_opt")
    pstamp(a, 13)
    tl = fix_hazards(tail, last[-26:])
    k = max(j for j, l in enumerate(tl) if l.startswith("v_mfma"))
    for l in tl[:k + 1]: a(l)
    a("; align")
    for l in tl[k + 1:]:
        if l == "@LAST@:": a(f"s_cmp_eq_u32 s{sQG}, 3\ns_cbranch_scc1 L_fin")
        else: a(l)
    def side_code():
        a.label("L_oe_pi")
        poll_issue(a, 2)
        a("s_branch L_or_pi")
        if sk >= 8:
            a.label("L_oe_sig")
            a(swait[0])
            sig("L_or_sig")
            a("s_branch L_or_sig")
        a.label("L_oe_pw")
        pstamp(a, 11); pstamp(a, 12)
        poll_wait(a, 2, "L_pw2", "L_or_pw", f"vmcnt({npw})")
    return side_code

def kv_switch():
    return ["s_mov_b32 s12, s24", "s_mov_b32 s13, s25", "s_mov_b32 s14, 0x80000", "s_mov_b32 s16, s28", "s_mov_b32 s17, s29", "s_mov_b32 s18, 0x80000",
            f"s_mov_b32 s{sRAW}, 0", f"s_mov_b32 s{sDOFF}, s{sROT}", f"s_mov_b32 s{sMH}, 0xfffc0000", f"s_mov_b32 s{sML}, 0x3e000",
            f"s_movk_i32 s{sINC0}, 0x2000", f"s_movk_i32 s{sINC1}, 0x2000", f"s_movk_i32 s{sG1}, 0x1000", f"s_mov_b32 s{sG2}, 0", f"s_movk_i32 s{sG3}, 0x1000"]

TRACE = ["s_mov_b32 m0, s47", "s_add_u32 s47, s47, 1", "v_writelane_b32 v73, s98, m0", "v_writelane_b32 v75, s100, m0",
         "s_memrealtime s[98:99]", "s_memtime s[100:101]"]
def variant(a, nq, tag):
    w3 = nq == 4
    RC = VRC(nq)
    pro = ["v_lshrrev_b32 v2, 2, v30", "v_and_b32 v3, 1, v31", "v_lshl_add_u32 v3, v3, 2, v2", "v_bfe_u32 v1, v30, 1, 1", "v_xor_b32 v3, v3, v1",
           "v_lshl_add_u32 v2, v31, 3, v2", "v_lshlrev_b32 v2, 8, v2", "v_and_b32 v1, 1, v30", "v_lshl_add_u32 v2, v1, 4, v2"]
    for s in range(4): pro += [f"v_xor_b32 v1, {2*s}, v3", f"v_lshl_add_u32 v{VWA(nq)+s}, v1, 5, v2"]
    pro += ["v_bfe_u32 v1, v0, 2, 4", "v_lshrrev_b32 v2, 1, v1", "v_and_b32 v3, 3, v0", "v_xor_b32 v2, v2, v3", "v_lshlrev_b32 v2, 4, v2", "v_lshl_add_u32 v2, v1, 7, v2",
            f"v_add_u32 v{VWR(nq)[0]}, s{sM0X}, v2", f"v_xor_b32 v{VWR(nq)[1]}, 64, v{VWR(nq)[0]}"]
    if w3:
        pro += ["v_xor_b32 v1, v30, v31"]
        for j in range(4): pro += [f"v_xor_b32 v2, {4*j}, v1", "v_lshlrev_b32 v2, 4, v2", f"v_lshl_add_u32 v{VPK+j}, v31, 8, v2", f"v_mov_b32 v{VDB+j}, v{VDA+j}"]
        pro += ["v_lshrrev_b32 v2, 1, v30", "v_xor_b32 v2, v2, v31", "v_and_b32 v3, 1, v30", "v_lshlrev_b32 v3, 4, v3"]
        for j in range(4): pro += [f"v_xor_b32 v1, {4*(j%2)}, v2", "v_lshl_add_u32 v1, v1, 5, v3", f"v_lshl_add_u32 v{VPV+j}, v31, 8, v1"]
        pro += [f"v_mov_b32 v1, {FLAG}", "ds_write_b64 v1, v[32:33]", "ds_write_b64 v1, v[32:33] offset:8"]
    pro += ["s_waitcnt vmcnt(?X:0) lgkmcnt(0)", "s_barrier"]
    pro += x_reads(nq, 0, 0) + w_reads(nq, 0, 0) + w_reads(nq, 0, 1) + "\n".join(first_loads()[Opt.nfl:]).split("\n")
    pro += [f"s_mov_b32 s{sCNT}, 4", "s_waitcnt lgkmcnt(0)"]
    body = []
    for u in range(4):
        if u == 1: body.append("@SWITCH@:")
        if u == 2: body += [f"s_cmp_eq_u32 s{sCNT}, 1", "s_cselect_b32 s10, 0, s10"]
        body += qproj_unit(nq, u)
    body = waits.insert_lgkm(body)
    _, pro, body = waits.resolve_vm([("\n".join(first_loads()[:Opt.nfl]).split("\n"), 1, {}), (pro, 1, {}), (body, 4, {"R": 4 if w3 else 0, "X": 2})])
    for l in fix_hazards(pro):
        if "vmcnt" in l: pstamp(a, 4, True)
        a(l)
    pstamp(a, 1)
    for e in hazard.check(body + body, f"q{tag}")[:10]: print(e)
    a.label(f"L_q{tag}")
    a("; noalign")
    a(f"s_cmp_eq_u32 s{sCNT}, 1\ns_cselect_b32 s8, s4, s8\ns_cselect_b32 s9, s5, s9\ns_cselect_b32 s10, s6, s10\ns_cselect_b32 s{sXOFF}, s{sHO}, s{sXOFF}")
    for l in body:
        if l == "@SWITCH@:":
            if w3: a(f"s_cmp_eq_u32 s{sCNT}, 1\ns_cbranch_scc1 L_qs{tag}"); a.label(f"L_qn{tag}")
        else: a(l)
    a(f"s_sub_u32 s{sCNT}, s{sCNT}, 1\ns_cmp_lg_u32 s{sCNT}, 0\ns_cbranch_scc1 L_q{tag}")
    a("; align")
    pstamp(a, 2)
    def conv(sb, d):
        L = [f"v_pk_mul_f32 v[{sb+r}:{sb+r+1}], v[{sb+r}:{sb+r+1}], s[{sSC}:{sSC+1}]" for r in range(0, 8, 2)]
        return L + [f"v_cvt_pk_bf16_f32 v{d+r}, v{sb+2*r}, v{sb+2*r+1}" for r in range(3, -1, -1)]
    cv = ["s_waitcnt lgkmcnt(0)"] + k_reads(0) + [f"s_add_u32 s{sHO}, s{sHW}, 8192"] + wo_reads(nq)[:6]
    side = wo_reads(nq)[6:] + (flat(ring_dma(3, "0x2000")) if w3 else [])
    side2 = ["v_and_b32 v1, 63, v0", f"v_lshlrev_b32 v{VOD}, 4, v1", f"s_mul_i32 s{sT0}, s{sWAVE}, 20480", f"s_add_u32 s{sT0}, s{sT0}, {XB}",
             f"v_add_u32 v{VSW}, s{sT0}, v{VOD}"]
    t0s, stride, cnts = SM()
    if w3: side2 += [f"v_add_u32 v{VSR}, {XB + t0s[3]*4096}, v{VOD}"]
    else: side2 += [f"s_mul_i32 s{sT0}, s{sWAVE}, {t0s[1]*4096}", f"s_add_u32 s{sT0}, s{sT0}, {XB}", f"v_add_u32 v{VSR}, s{sT0}, v{VOD}"]
    side2 += [f"s_add_u32 s4, s{sWS}, s{sWB}", f"s_addc_u32 s5, s{sWS+1}, 0", "s_mov_b32 s6, 0x100000"] + op_srd()
    side2 += ["v_lshrrev_b32 v1, 4, v0", "v_xnor_b32 v1, v1, v0", "v_bfe_i32 v1, v1, 1, 1", "v_and_b32 v1, 0x3f803f80, v1"] + [f"v_accvgpr_write_b32 a{A_ONES+r}, v1" for r in range(4)]
    side2 += [f"s_mov_b32 s{sCNT}, 8"]
    c1 = []
    for k in range(27, -1, -1):
        fi = k - 8 if k >= 8 else k + 12
        if fi // 4 < nq: c1 += conv(32 + 8 * k, 144 + 4 * k)
    zs = [zero16(b) for b in range(96, 32 * nq, 16)] + zero_L(nq)
    cv += weave(weave(c1, side + side2, 2), zs, 24, 40)
    if w3: cv += own_word(0)[:-3] + ["\n".join(own_word(0)[-3:])]
    cv += [f"v_bfe_i32 v{VIX}, v0, 0, 1", f"v_and_b32 v{VIX}, 0xaaaaaaaa, v{VIX}", f"v_or_b32 v{VIX}, 0x44444444, v{VIX}"]
    c2 = []
    for fi in range(12):
        tb = 32 + 8 * (fi % 3)
        c2 += [f"v_accvgpr_read_b32 v{tb+r}, a{8*fi+r}" for r in range(8)]
        if fi % 2: c2.append(zero16(8 * (fi - 1)))
        c2 += conv(tb, QLO + 4 * fi)
    mp = maxpass_mf(nq, QTOP)
    cv += ["s_waitcnt lgkmcnt(0)"] + weave(weave(c2[:4 * len(mp)], mp, 4) + c2[4 * len(mp):], max_chain(nq), 2, 5 * len(mp) + 8)
    k0 = max(k for k, l in enumerate(cv) if f"v_lshlrev_b32 v{VOD}," in l or "buffer_load" in l) + 2
    cv = cv[:k0] + ["s_waitcnt lgkmcnt(0)"] + weave(cv[k0:], wo_stores(), min(Opt.wgap, (len(cv) - k0 - 30) // 8))
    cv = "\n".join(cv).split("\n")
    if Opt.trace and not w3: cv += ["s_mov_b32 s47, 0", "v_mov_b32 v73, 0", "v_mov_b32 v75, 0"]
    for l in fix_hazards(cv, body[-26:]): a(l)
    pstamp(a, 3)
    a(f"s_branch L_loop{tag}")
    if w3:
        a.label(f"L_qs{tag}")
        for l in kv_switch(): a(l)
        for j in range(4): a(f"v_mov_b32 v{VDA+j}, v{VPK+j}\nv_mov_b32 v{VDB+j}, v{VPV+j}")
        a(f"s_branch L_qn{tag}")
    def og_pre(k):
        i, s = k // 4, k % 4
        tb = 32 + 8 * (k % 3)
        g = [f"v_accvgpr_read_b32 v{tb+r}, a{A_O + (i*8+2*s)*4 + r}" for r in range(8)]
        rc = RC[i]
        return g + [f"v_pk_mul_f32 v[{tb+r}:{tb+r+1}], v[{tb+r}:{tb+r+1}], v[{rc}:{rc+1}] op_sel_hi:[1,0]" for r in range(0, 8, 2)]
    def og_post(k, d):
        tb = 32 + 8 * (k % 3)
        return [f"v_cvt_pk_bf16_f32 v{d+r}, v{tb+2*r}, v{tb+2*r+1}" for r in range(4)]
    def og_rest(z, stage=False):
        L = []
        for k in range(4 * nq):
            if k >= 3: L += og_pre(k)
            if z and k % 2 and k >= 3: L.append(zero16(8 * (k - 1), z))
            if z and k == 3: L.append(zero16(0, z))
            L += og_post(k, QLO + 4 * (k % 4) if stage else o_plan()[k][0])
            if stage: L.append(f"ds_write_b128 v{VSW}, {vq(QLO + 4*(k%4))} offset:{k*1024}")
            else:
                ne = min(4 * nq, int(Opt.ssch.split(",")[0]))
                L += [st_o(j) for j in range(ne) if j * 4 * nq // ne == k]
        return L
    def steps(store):
        body = []
        for st in range(4):
            if Opt.trace and not w3: body += TRACE
            if not store and not w3:
                if st == 2: body.append("s_waitcnt vmcnt(0)")
                if st == 3: body.append("@EV@:")
            body += attn_step(nq, st, store)
        for e in hazard.check(body + body, f"a{tag}")[:10]: print(e)
        return body
    a.label(f"L_t1{tag}")
    mv = [f"v_mov_b64 v[{QTOP+r}:{QTOP+r+1}], v[{QLO+r}:{QLO+r+1}]" for r in range(0, nq * 16, 2)]
    sc = [f"s_mov_b32 s{sHEAD}, 1", f"s_mov_b32 s{sLAST}, 1", f"s_mov_b32 s{sREDO}, 0", f"s_mov_b32 s{sCNT}, 8"]
    EV1 = 8 - max(cnts[:3])
    if not w3: sc += [f"s_cmp_eq_u32 s{sWAVE}, 0\ns_cselect_b32 s{sEV}, {EV1}, -1"]
    sc += [f"v_add_u32 v1, 8192, v{VOD}"]
    sc += [f"buffer_load_dwordx4 {fa(st, nu)}, v{1 if st else VOD}, s[4:7], s{sPR + nu//2} offen offset:{(nu%2)*1024}{Opt.ld_wo}" for st in range(2) for nu in range(8)]
    t1 = weave(mv, maxpass_mf(nq, QLO), 2) + zero_L(nq) + weave(weave(og_rest(ZQ, True), max_chain(nq), 4, 8), sc, 12)
    t1 = "\n".join(t1).split("\n")
    for l in fix_hazards(t1): a(l)
    pstamp(a, 5); pstamp(a, 6)
    a("; noalign")
    if not w3 or cnts[3]:
        a.label(f"L_loopS{tag}")
        bodyS = steps(1)
        for e in hazard.check(t1[-26:] + bodyS, f"t1{tag}")[:10]: print(e)
        for l in bodyS: a(l)
        a(f"s_sub_u32 s{sCNT}, s{sCNT}, 1\ns_cmp_lg_u32 s{sCNT}, s{sSX}\ns_cbranch_scc1 L_loopS{tag}")
    a.label(f"L_loop{tag}")
    body = steps(0)
    for e in hazard.check(cv[-26:] + body, f"t0{tag}")[:10] + hazard.check(t1[-26:] + body, f"t1{tag}")[:10]: print(e)
    for l in body:
        if l == "@EV@:":
            a(f"s_cmp_eq_u32 s{sCNT}, s{sEV}\ns_cbranch_scc1 L_ev{tag}"); a.label(f"L_evr{tag}")
        else: a(l)
    if w3:
        a(f"s_sub_u32 s{sCNT}, s{sCNT}, 1\ns_cmp_lg_u32 s{sCNT}, s{sLAST}\ns_cbranch_scc1 L_loop{tag}\ns_cmp_eq_u32 s{sLAST}, 0\ns_cbranch_scc1 L_ep{tag}")
        bodyL = steps(2)
        for e in hazard.check(body[-26:] + bodyL, "bl")[:10]: print(e)
        for l in bodyL: a(l)
        a("s_nop 4")
        a.label(f"L_ep{tag}")
    else: a(f"s_sub_u32 s{sCNT}, s{sCNT}, 1\ns_cmp_lg_u32 s{sCNT}, 0\ns_cbranch_scc1 L_loop{tag}")
    a("; align")
    if Opt.stamps:
        a(f"s_cmp_eq_u32 s{sHEAD}, 1\ns_cbranch_scc1 L_ps{tag}")
        pstamp(a, 4)
        a.label(f"L_ps{tag}")
        pstamp(a, 7)
    ep = [f"s_lshl_b32 s{sT0}, s{sHEAD}, 2", f"s_add_u32 s{sT0}, s{sT0}, {FLAG}", f"v_mov_b32 v1, s{sT0}", "v_mov_b32 v2, 1"]
    ep += [f"v_accvgpr_read_b32 v{32+r}, a{A_L+r}" for r in range(8 if w3 else 12)]
    ep += [f"v_add_f32 v{RC[i]}, v{32+2*i}, v{33+2*i}" for i in range(nq)]
    ep += [f"v_add_f32 v3, v{RC[0]}, v{RC[1]}", f"v_add_f32 v32, v{RC[2]}, v{RC[3]}"]
    if not w3: ep += ["v_add_f32 v42, v42, v43", f"v_add_f32 v{RC[4]}, v{RC[4]}, v42", f"v_add_f32 v3, v3, v{RC[4]}"]
    ep += ["v_add_f32 v3, v3, v32", f"v_cmp_ngt_f32 vcc, s{sTHR}, v3"]
    ep += [f"v_rcp_f32 v{RC[i]}, v{RC[i]}" for i in range(nq)]
    ep = fix_hazards(ep, body[-26:])
    if w3:
        for e in hazard.check(bodyL[-26:] + ["s_nop 4"] + ep, "ble")[:10]: print(e)
    for l in ep: a(l)
    a(f"s_cbranch_vccnz L_ovf{tag}")
    a.label(f"L_nof{tag}")
    if not w3:
        a(f"s_cmp_eq_u32 s{sEV}, 0\ns_cbranch_scc1 L_evw"); a.label("L_evwr")
    a("s_waitcnt lgkmcnt(0)\ns_barrier\nds_read_b32 v3, v1")
    ep = og_pre(0) + og_pre(1) + og_pre(2) + ["s_waitcnt lgkmcnt(0)", f"v_readfirstlane_b32 s{sT0}, v3"]
    for l in fix_hazards(ep): a(l)
    a(f"s_nop 3\ns_andn2_b32 s{sT0}, s{sT0}, s{sREDO}\ns_cmp_lg_u32 s{sT0}, 0\ns_cbranch_scc1 L_redo{tag}")
    a(f"s_cmp_eq_u32 s{sHEAD}, 0\ns_cbranch_scc1 L_t1{tag}")
    e1 = op_setup() + [f"s_add_u32 s{sOT+i}, s{sOOFF}, {i*TS + 4096}" if i < nq else f"s_mov_b32 s{sOT+i}, {FLW}" for i in range(5)]
    e1 += weave(og_rest(None), op_loads0(), Opt.ldgap if not w3 else Opt.ldgap * 4 // 5)
    E1[nq] = list(e1)
    if Opt.trace and not w3:
        e1 += [f"s_lshl_b32 s{sT0}, s2, 9", f"s_add_u32 s{sT0}, s{sT0}, {STAMP_OFF + 131072}", "v_lshlrev_b32 v1, 2, v0", f"v_add_u32 v1, s{sT0}, v1",
               "v_cmp_gt_u32 vcc, 64, v0", "s_nop 4", "s_mov_b64 exec, vcc", "s_cbranch_execz L_tr",
               f"global_store_dword v1, v73, s[{sWS}:{sWS+1}]", f"global_store_dword v1, v75, s[{sWS}:{sWS+1}] offset:256", "L_tr:", "s_mov_b64 exec, -1"]
    for l in fix_hazards(e1): a(l)
    pstamp(a, 8)
    a("s_branch L_op")
    a.label(f"L_ovf{tag}")
    a(f"ds_write_b32 v1, v2\ns_branch L_nof{tag}")
    if not w3:
        a.label(f"L_ev{tag}")
        a(f"s_cmp_eq_u32 s{sHEAD}, 1\ns_cbranch_scc1 L_evh")
        a(f"s_cmp_eq_u32 s{sEV}, 2\ns_cbranch_scc1 L_ev2\ns_cmp_eq_u32 s{sEV}, 1\ns_cbranch_scc1 L_ev1")
        signal(a, 0)
        a(f"s_mov_b32 s{sEV}, 2\ns_branch L_evr{tag}")
        a.label("L_ev2")
        poll_issue(a, 0)
        a(f"s_mov_b32 s{sEV}, 1\ns_branch L_evr{tag}")
        a.label("L_ev1")
        a(f"s_mov_b32 s{sEV}, -1")
        poll_wait(a, 0, "L_pw0", f"L_evr{tag}")
        a.label("L_evh")
        if EV1 != 1: a(f"s_cmp_eq_u32 s{sEV}, 1\ns_cbranch_scc1 L_evp")
        signal(a, 1)
        if EV1 != 1: a(f"s_mov_b32 s{sEV}, 1\ns_branch L_evr{tag}")
        a.label("L_evp")
        poll_issue(a, 1)
        a(f"s_mov_b32 s{sEV}, 0\ns_branch L_evr{tag}")
        a.label("L_evw")
        a(f"s_mov_b32 s{sEV}, -1")
        poll_wait(a, 1, "L_pw1", "L_evwr")
    a.label(f"L_redo{tag}")
    a(f"s_mov_b32 s{sREDO}, 1\ns_waitcnt vmcnt(0) lgkmcnt(0)\ns_barrier")
    for l in kv_switch(): a(l)
    a(f"s_lshl_b32 s{sRAW}, s{sHEAD}, 18")
    rp = doff_update()
    if w3:
        for sl in range(4): rp += flat(ring_dma(sl, "0x2000")) + ["s_waitcnt vmcnt(16)"]
    for l in fix_hazards(rp): a(l)
    a("v_and_b32 v1, 15, v0\nv_lshlrev_b32 v1, 8, v1\nv_and_b32 v2, 48, v0\nv_add_u32 v1, v1, v2")
    a(f"s_lshl_b32 s{sT0}, s{sHEAD}, 18\ns_mov_b32 s{sCNT}, 64")
    for i in range(nq): a(f"v_mov_b32 v{NM0+i}, 0xff800000")
    a.label(f"L_rl{tag}")
    rb = [f"buffer_load_dwordx4 a[{A_K+4*s}:{A_K+4*s+3}], v1, s[12:15], s{sT0} offen offset:{s*64}" for s in range(4)]
    rb += ["s_waitcnt vmcnt(0)"] + maxpass_mf(nq, QTOP) + ["s_nop 7"]
    for i in range(nq):
        b = PT(i)
        rb += [f"v_max3_f32 v{NM0+i}, v{NM0+i}, v{b}, v{b+1}", f"v_max3_f32 v{NM0+i}, v{NM0+i}, v{b+2}, v{b+3}"]
    rb.append(f"s_add_u32 s{sT0}, s{sT0}, 0x1000")
    for l in fix_hazards(rb): a(l)
    a(f"s_sub_u32 s{sCNT}, s{sCNT}, 1\ns_cmp_lg_u32 s{sCNT}, 0\ns_cbranch_scc1 L_rl{tag}")
    rb = [f"v_mov_b32 v{PT(i)}, v{NM0+i}" for i in range(nq)] + max_finish(nq) + [zero16(b) for b in range(0, 32 * nq, 16)] + zero_L(nq)
    rb += ["s_waitcnt vmcnt(0)", "s_barrier"] + k_reads(0) + [f"s_mov_b32 s{sCNT}, 8", "s_nop 7"]
    for l in fix_hazards(rb): a(l)
    a(f"s_branch L_loop{tag}")

def first_loads():
    def w(item, off):
        return [(f"s_add_u32 m0, s99, {item*16384}\ns_add_u32 s98, s100, {off}\n" if j == 0 else "") +
                f"buffer_load_dwordx4 v{VDA+j}, s[12:15], s98 offen offset:{j*1024}{Opt.nt_kv} lds ; tag=R:{item}" for j in range(4)]
    def x(b): return [t.replace(f"s{sT0}", "s98") for t, c in x_dma(5, b, b)]
    return w(0, 0) + x(0) + w(1, 256) + w(2, 0x80000) + x(1)

def late_setup():
    L = []
    for s in range(4):
        L += [f"v_or_b32 v2, {4*s}, v31", "v_xor_b32 v2, v2, v30", "v_lshlrev_b32 v2, 4, v2", f"v_lshl_add_u32 v{VKA+s}, v30, 8, v2"]
    L += ["v_lshrrev_b32 v2, 2, v30", "v_lshl_add_u32 v2, v31, 2, v2", "v_and_b32 v3, 7, v2", "v_lshlrev_b32 v2, 8, v2", "v_and_b32 v1, 3, v30", "v_lshl_add_u32 v2, v1, 3, v2"]
    for dt in range(8): L += [f"v_xor_b32 v1, {dt}, v3", f"v_lshl_add_u32 v{VVA+dt}, v1, 5, v2"]
    L += ["v_lshrrev_b32 v3, 1, v30", "v_xor_b32 v3, v3, v31"]
    for kk in range(2):
        L += [f"v_xor_b32 v2, {4*kk}, v3", "v_lshlrev_b32 v2, 4, v2", "v_lshl_add_u32 v2, v30, 7, v2", f"v_add_u32 v{VXA+kk}, s{sM0X}, v2"]
    L += [f"s_lshl_b32 s{sT0}, s{sB1}, 5", f"s_add_u32 s{sT0}, s{sT0}, s{sH0}", f"s_lshl_b32 s{sT0}, s{sT0}, 18",
          f"s_add_u32 s24, s86, s{sT0}", "s_addc_u32 s25, s87, 0", f"s_add_u32 s28, s88, s{sT0}", "s_addc_u32 s29, s89, 0",
          f"s_mov_b32 s20, s{sWS}", f"s_mov_b32 s21, s{sWS+1}", f"s_mov_b32 s22, {FLW}", "s_mov_b32 s23, 0x20000",
          f"s_lshl_b32 s{sT0}, s{sBR}, 3", f"s_add_u32 s{sT0}, s{sT0}, s{sB1}", f"s_mul_i32 s{sT0}, s{sT0}, {19*TS}",
          f"s_mul_i32 s{sOOFF}, s{sWAVE}, {5*TS}", f"s_add_u32 s{sOOFF}, s{sOOFF}, s{sT0}", f"s_add_u32 s{sOOFF}, s{sOOFF}, {PAD}", f"s_lshl_b32 s{sT0}, s{sH0}, 12", f"s_add_u32 s{sOOFF}, s{sOOFF}, s{sT0}",
          f"s_mov_b32 s{sSC}, {f2u(SCALE):#x}", f"s_mov_b32 s{sSC+1}, {f2u(SCALE):#x}", f"s_mov_b32 s{sTHR}, {f2u(2.0**Opt.thr):#x}", "s_mov_b32 s7, 0x20000",
          f"s_and_b32 s{sB2}, s2, 3", f"s_lshl_b32 s{sB2}, s{sB2}, 1", f"s_lshr_b32 s{sT0}, s2, 7", f"s_add_u32 s{sB2}, s{sB2}, s{sT0}",
          f"s_bfe_u32 s{sQG}, s2, 0x20005", f"s_bfe_u32 s{sN4}, s2, 0x20003",
          f"s_movk_i32 s{sINC0}, 256", f"s_mov_b32 s{sINC1}, {524288-256}", f"s_mov_b32 s{sG1}, 0x20000", f"s_mov_b32 s{sG2}, 0x40000", f"s_mov_b32 s{sG3}, 0x60000",
          "s_mov_b32 s16, s12", "s_mov_b32 s17, s13", "s_mov_b32 s18, s14", "s_mov_b32 s19, 0x20000",
          f"s_mov_b32 s{sRAW}, 0x80100", f"s_mov_b32 s{sDOFF}, 0x80100", f"s_mov_b32 s{sMH}, -1", f"s_mov_b32 s{sML}, 0"]
    L += [f"s_lshl_b32 s{sT0}, s{sB1}, 4", f"s_lshr_b32 s{sT1}, s{sH0}, 1", f"s_add_u32 s{sT1}, s{sT0}, s{sT1}", f"s_and_b32 s{sT0}, s{sT1}, 3",
          f"s_mul_i32 s{sHW}, s{sT0}, {WN}", f"s_lshl_b32 s{sHO}, s{sT0}, 8", f"s_lshr_b32 s{sT1}, s{sT1}, 2", f"s_lshl_b32 s{sT1}, s{sT1}, 1", f"s_and_b32 s{sT0}, s{sWAVE}, 1",
          f"s_add_u32 s{sT1}, s{sT1}, s{sT0}", f"s_lshl_b32 s{sT0}, s{sT1}, 14", f"s_add_u32 s{sHW}, s{sHW}, s{sT0}", f"s_lshl_b32 s{sT1}, s{sT1}, 16",
          f"s_add_u32 s{sHO}, s{sHO}, s{sT1}", f"s_add_u32 s6, s{sT1}, 0x10000", f"s_mov_b32 s4, s{sWO}", f"s_mov_b32 s5, s{sWO+1}",
          f"s_lshr_b32 s{sT0}, s{sWAVE}, 1", f"s_lshl_b32 s{sT1}, s{sT0}, 7", f"s_add_u32 s{sHO}, s{sHO}, s{sT1}", f"s_lshl_b32 s{sT1}, s{sT0}, 12", f"s_add_u32 s{sHW}, s{sHW}, s{sT1}",
          f"s_mul_i32 s{sWB}, s{sBR}, {4*WN}", f"s_add_u32 s{sWB}, s{sWB}, {WOP + PAD}", f"s_add_u32 s{sHW}, s{sHW}, s{sWB}",
          f"s_mul_i32 s{sT0}, s{sN4}, {WN}", f"s_add_u32 s{sWB}, s{sWB}, s{sT0}"]
    t0s, stride, cnts = SM()
    L += [f"s_mul_i32 s{sT0}, s{sWAVE}, {(5 - t0s[1])*TS}", f"s_sub_u32 s{sSO}, s{sOOFF}, s{sT0}", f"s_add_u32 s{sT0}, s{sOOFF}, {(t0s[3] - 15)*TS}",
          f"s_cmp_eq_u32 s{sWAVE}, 3", f"s_cselect_b32 s{sSO}, s{sT0}, s{sSO}", f"s_cselect_b32 s{sSX}, {8 - cnts[3]}, {8 - cnts[1]}",
          f"s_cmp_eq_u32 s{sWAVE}, 0", f"s_cselect_b32 s{sSX}, {8 - cnts[0]}, s{sSX}", f"s_cselect_b32 s{sEV}, 4, -1",
          f"s_mov_b32 s{sHEAD}, 0", f"s_mov_b32 s{sREDO}, 0", f"s_mov_b32 s{sLAST}, 0", f"s_lshl_b32 s{sT1}, s{sWAVE}, 16"]
    for p in range(4): L += [f"s_add_u32 s{sT0}, s{sWAVE}, {p+1}", f"s_and_b32 s{sT0}, s{sT0}, 3", f"s_lshl_b32 s{sT0}, s{sT0}, 11", f"s_add_u32 s{sPR+p}, s{sT0}, s{sT1}"]
    if Opt.rot: L += [f"s_lshr_b32 s{sROT}, s2, 5", f"s_xor_b32 s{sROT}, s{sROT}, s2", f"s_and_b32 s{sROT}, s{sROT}, 31", f"s_lshl_b32 s{sROT}, s{sROT}, 13"]
    else: L += [f"s_mov_b32 s{sROT}, 0"]
    return L

def kernel():
    a = Asm()
    a("s_cmp_ge_u32 s2, 256\ns_cbranch_scc1 L_end")
    a("s_load_dwordx8 s[84:91], s[0:1], 0\ns_load_dwordx2 s[92:93], s[0:1], 32\ns_load_dwordx8 s[40:47], s[0:1], 40\ns_load_dwordx2 s[94:95], s[0:1], 72")
    a(f"s_load_dwordx2 s[{sOUT}:{sOUT+1}], s[0:1], 80\ns_load_dwordx2 s[{sDBG}:{sDBG+1}], s[0:1], 88\ns_load_dwordx2 s[{sWS}:{sWS+1}], s[0:1], 96")
    pstamp(a, 0)
    a(f"v_lshrrev_b32 v2, 6, v0\nv_and_b32 v1, 63, v0\nv_readfirstlane_b32 s{sWAVE}, v2")
    if Opt.code_pf:
        a("s_getpc_b64 s[96:97]\ns_bfe_u32 s48, s2, 0x20003\ns_lshl_b32 s48, s48, 15\nv_lshlrev_b32 v3, 7, v0\nv_add_u32 v3, s48, v3")
        a("v_min_u32 v3, CODE_SIZE, v3\nglobal_load_dword a255, v3, s[96:97]")
    a(f"s_bfe_u32 s{sBR}, s2, 0x10002\ns_lshr_b32 s{sB1}, s2, 5\ns_and_b32 s{sH0}, s2, 3\ns_lshl_b32 s{sH0}, s{sH0}, 3")
    a(f"s_bfe_u32 s{sT0}, s2, 0x20003\ns_lshl_b32 s{sT0}, s{sT0}, 1\ns_add_u32 s{sH0}, s{sH0}, s{sT0}")
    a("v_and_b32 v30, 15, v1\nv_lshrrev_b32 v31, 4, v1")
    a("v_and_b32 v33, 7, v1\nv_xor_b32 v33, v33, v31\nv_lshrrev_b32 v34, 3, v1")
    for jj in range(4):
        a(f"v_xor_b32 v32, {4*(jj%2)}, v33\nv_lshlrev_b32 v32, 4, v32\nv_lshl_add_u32 v32, v34, 10, v32\nv_add_u32 v{VXD+jj}, {jj*8192 - jj*1024}, v32")
    a("v_lshrrev_b32 v2, 1, v30\nv_xor_b32 v2, v2, v31\nv_and_b32 v3, 1, v30\nv_lshlrev_b32 v3, 4, v3\nv_lshl_add_u32 v3, v31, 13, v3")
    for j in range(4):
        a(f"v_xor_b32 v32, {(j>>1)<<2}, v2\nv_lshl_add_u32 v32, v32, 5, v3\nv_add_u32 v{VDA+j}, {j*32768 - j*1024}, v32")
    a(f"s_mul_i32 s{sM0X}, s{sWAVE}, 10240\ns_add_u32 s{sM0X}, s{sM0X}, {XB}\ns_mul_i32 s{sXOFF}, s{sWAVE}, {80*1024}")
    a(f"s_mov_b32 s10, 311296\ns_mov_b32 s11, 0x20000\ns_mov_b32 s15, 0x20000\ns_lshl_b32 s99, s{sWAVE}, 12\ns_lshl_b32 s100, s{sWAVE}, 17")
    a(f"s_mul_i32 s{sT0}, s{sB1}, 311296\ns_lshl_b32 s{sT1}, s{sH0}, 8\ns_sub_u32 s14, 0x400000, s{sT1}")
    a(f"s_waitcnt lgkmcnt(0)\ns_cmp_eq_u32 s{sBR}, 1")
    pstamp(a, 1, True)
    for r in range(8): a(f"s_cselect_b32 s{84+r}, s{40+r}, s{84+r}")
    a(f"s_cselect_b32 s{sWO}, s94, s92\ns_cselect_b32 s{sWO+1}, s95, s93")
    a(f"s_add_u32 s8, s84, s{sT0}\ns_addc_u32 s9, s85, 0\ns_add_u32 s12, s90, s{sT1}\ns_addc_u32 s13, s91, 0")
    if Opt.stamps: stamp_start(a, 40)
    zs = [f"{MF32} v[{r}:{r+15}], {ZQ}, {ZQ}, 0" for r in range(240, 31, -16)] + [zero16(16 * k) for k in range(6)]
    ls = []
    for l in late_setup():
        if l.startswith(("s_addc", "s_cselect")): ls[-1] += "\n" + l
        else: ls.append(l)
    fl = first_loads()[:Opt.nfl]
    sh = fl[:2] + weave([f"v_accvgpr_write_b32 a{A_Z+r}, 0" for r in range(4)] + weave(ls, zs, 4), fl[2:], Opt.fgap)
    for l in fix_hazards("\n".join(sh).split("\n")): a(l)
    pstamp(a, 3, True)
    a(f"s_cmp_eq_u32 s{sWAVE}, 3\ns_cbranch_scc1 L_var4")
    variant(a, 5, "5")
    a.label("L_var4")
    variant(a, 4, "4")
    side_code = oproj(a)
    a.label("L_fin")
    if Opt.stamps:
        a("s_waitcnt vmcnt(0)\ns_barrier")
        pstamp(a, 14)
        stamp_end(a, 40, sWS, 32, 0, 2, 48)
        pdump(a, sWS, 15, 2)
    a.label("L_end")
    a("s_endpgm")
    side_code()
    return a.text()

HDR = open("cdna_kernels/" + NAME + ".s.ref").read().split("; Override launch")[0]

def build(fname):
    k = NAME + "_kernel"
    txt = HDR + f"; @launch grid=(256,1,1) block=(256,1,1) lds={LDS1}\n" + '.amdgcn_target "amdgcn-amd-amdhsa--gfx950"\n.text\n'
    txt += kernel_open(k)
    post = f"L_code_end:\n.set CODE_SIZE, L_code_end - {k} - 256\n"
    body = kernel().rstrip("\n").split("\n")
    if Opt.al:
        body, nn, ne = align.align(txt, body, post)
    txt += "\n".join(body) + "\n" + post
    txt += '.section .rodata,"a"\n' + kernel_desc(k, 512, 256)
    open(fname, "w").write(txt)

if __name__ == "__main__":
    out = sys.argv[1] if len(sys.argv) > 1 else "cdna_kernels/" + NAME + ".s"
    for kv in sys.argv[2:]:
        k, v = kv.split("=")
        cur = getattr(Opt, k)
        if isinstance(cur, bool): v = v == "1"
        elif isinstance(cur, int): v = int(v)
        else: v = (" " + v.replace("+", " ")) if v else ""
        setattr(Opt, k, v)
    build(out)
```

```python
import sys, math, struct, re
sys.path.insert(0, "tools")
from asmlib import *
from sched import *
import hazard, waits, align

def f2u(x): return struct.unpack("<I", struct.pack("<f", x))[0]
SCALE = math.log2(math.e) / math.sqrt(128.0)

class Opt:
    stamps = False
    clk = False
    trace = False
    nt_kv = " nt"
    nt_x = " nt"
    st_o = " sc1"
    ld_o = " sc1"
    ld_wo = " sc1"
    st_out = ""
    delay = 4
    ldscost = 8
    al = True
    rot = 1
    code_pf = True
    thr = 32
    ldgap = 8
    sm = 2
    spos = 0
    se = False
    dbg = False
    st = False
    st_x = " sc1"
    nox = False
    wsb = 0
    qord = 0
    ne = 14
    sig = 160
    plead = 100
    lgap = 3
    dt = 3
    b1 = 110
    b2 = 40
    b3 = 12
    pl = 30
    arate = 20
    sord = 0
    fgap = 6
    nfl = 26
    pre_x = 2

def vq(b): return f"v[{b}:{b+3}]"
def aq(b): return f"a[{b}:{b+3}]"
MF = "v_mfma_f32_16x16x32_bf16"
MF32 = "v_mfma_f32_32x32x16_bf16"

def pstamp(a, k, early=False, tail=False):
    if 9 <= k <= 13 and tail != Opt.st: return
    if Opt.se and k == 1 and not early: k = 5
    elif Opt.se and 1 <= k <= 5 and not early: return
    if early and not Opt.se: return
    if Opt.stamps: a(f"{'s_memtime' if Opt.clk else 's_memrealtime'} s[{72+2*k}:{73+2*k}]")
def pdump(a, ws, n, rec):
    a("s_waitcnt lgkmcnt(0)")
    for k in range(16): a(f"v_mov_b32 v{32+k}, s{72+2*min(k, n-1)}")
    a(f"s_lshl_b32 s48, s{rec}, 6\ns_add_u32 s48, s48, {STAMP_OFF + 65536}\nv_mov_b32 v48, s48")
    a("v_cmp_eq_u32 vcc, 0, v0\ns_and_saveexec_b64 s[46:47], vcc")
    a(f"s_cbranch_execz L_pd")
    for k in range(4): a(f"global_store_dwordx4 v48, v[{32+4*k}:{35+4*k}], s[{ws}:{ws+1}] offset:{16*k}")
    a("s_waitcnt vmcnt(0)")
    a.label("L_pd")
    a("s_mov_b64 exec, s[46:47]")

def fix_hazards(lines, prefix=()):
    out = list(prefix)
    npre = len(out)
    for l in lines:
        while True:
            win = out[-26:] + [l]
            new = hazard.check(win)[len(hazard.check(win[:-1])):]
            if not new: break
            need = max(int(m.group(1)) - int(m.group(2)) for m in (re.search(r"need (\d+) have (\d+)", e) for e in new))
            out.append(f"s_nop {need-1}")
        out.append(l)
    return out[npre:]

def flat(items):
    r = []
    for (t, c) in items: r += t.split("\n")
    return r

def spread(fl, items, lo, hi, prio):
    prev = None
    n = len(items)
    for k, (txt, cost) in enumerate(items):
        p = lo + (k * (hi - lo + 1)) // n
        nx = max(p, lo + ((k + 1) * (hi - lo + 1)) // n - 1)
        f = F(txt, cost, p, nx, deps=[prev] if prev else [], prio=prio + k, depgap=1 if (hi - lo + 1) >= n else 0)
        fl.append(f); prev = f

def weave(main, extra, every, start=0):
    out = []; extra = list(extra)
    for k, l in enumerate(main):
        out.append(l)
        if k >= start and (k - start) % every == every - 1 and extra: out.append(extra.pop(0))
    return out + extra

VKA, VVA, VDA, VDB, VXD, VXA = 4, 8, 16, 20, 24, 28
VPK, VPV = 240, 244
VOD, VSR, VSW = 24, 25, 27
def VRC(nq): return [26, 28, 30, 20, 22] if nq == 5 else [26, 28, 30, 72]
VPA, VPD = 29, 31
S0, P0, NM0, QLO, QTOP = 32, 56, 76, 96, 176
A_O, A_K, A_V, A_L, A_ONES, A_Z = 0, 160, 192, 224, 244, 248
A_X, A_W = 96, 176
XB, XBUF = 65536, 40960
XW = 20480
FLAG = XB + 2 * XBUF
LDS1 = 163840
sWAVE = 3
sDOFF, sINC0, sINC1, sXOFF, sM0X, sCNT, sHEAD, sREDO, sLAST, sEV = 30, 31, 32, 33, 34, 35, 36, 37, 26, 27
sSC = 38
sT0, sT1, sOOFF, sTHR = 48, 49, 50, 51
sG1, sG2, sG3 = 52, 53, 54
sDBG, sOUT, sWS = 56, 58, 60
sBR, sB1, sH0, sB2, sQG, sN4 = 62, 63, 64, 65, 66, 67
sWO = 68
sHO, sHW = 70, 71
sRAW, sROT, sMH, sML = 0, 1, 44, 45
sSO, sSX, sWB = 68, 69, 46
PAD = 256
TS, WN = 131072 + PAD, 0x100000 + PAD
WOP = (2 * 8 * 19 + 2) * TS
XCH = WOP + 8 * WN + PAD
FLW = XCH + 256 * 20480
def SM(): return [((0, 1, 2, 0), 3, (7, 6, 6, 0)), ((0, 5, 10, 15), 1, (5, 5, 5, 4)), ((0, 1, 2, 18), 3, (6, 6, 6, 1))][Opt.sm]
def VWR(nq): return (2, 3) if nq == 5 else (252, 253)
def VWA(nq): return 20 if nq == 5 else 248

def O(i, dt): return aq(A_O + (i * 8 + dt) * 4)
def Q(i, s, base=QTOP): return vq(base + (i * 4 + s) * 4)
def Sreg(i, t): return S0 + (i % 3) * 8 + t * 4
def PT(i, slot=0): return P0 + 4 * i if i < 4 else 16 + 4 * (slot % 2)
VIX = 74
def VKB(nq): return 72 if nq == 5 else 92
ZQ = aq(A_Z)

def acc_loc(eta, i, s):
    fi = i * 4 + s
    if eta == 0: return ("v", 32 + 8 * (8 + fi))
    if fi >= 12: return ("v", 32 + 8 * (fi - 12))
    return ("a", 8 * fi)
def acc(eta, i, nt):
    f, b = acc_loc(eta, i, nt // 2)
    b += (nt % 2) * 4
    return f"{f}[{b}:{b+3}]"

def doff_update():
    return [f"s_add_u32 s{sT1}, s{sRAW}, s{sROT}", f"s_and_b32 s{sT1}, s{sT1}, s{sML}", f"s_and_b32 s{sDOFF}, s{sRAW}, s{sMH}", f"s_or_b32 s{sDOFF}, s{sDOFF}, s{sT1}"]
def ring_dma(slot, inc, tag=0):
    res = []
    for g in range(4):
        srd = "s[12:15]" if g < 2 else "s[16:19]"
        vb = VDA if g < 2 else VDB
        for j in range(4):
            t = ""; c = 4
            so = f"s{sDOFF}" if g == 0 else f"s{sT1}"
            if j == 0:
                t = f"s_mov_b32 m0, {slot*16384 + g*4096}\n"
                t += f"s_add_u32 s{sT1}, s{sDOFF}, s{sG1 + g - 1}\n" if g else f"s_add_u32 s{sRAW}, s{sRAW}, {inc}\n"
                c = 8
            t += f"buffer_load_dwordx4 v{vb+j}, {srd}, {so} offen offset:{j*1024}{Opt.nt_kv} lds ; tag=R:{tag}"
            res.append((t, c))
    res.append(("\n".join(doff_update()), 8))
    return res

def x_dma(nq, buf, tag, js=None):
    res = []
    js = list(range(2 * nq)) if js is None else js
    for j in js:
        G, jj = j // 4, j % 4
        t = ""; c = 4
        if jj == 0 or j == js[0]:
            t = f"s_add_u32 m0, s{sM0X}, {buf*XBUF + G*4096}\ns_add_u32 s{sT0}, s{sXOFF}, {G*32768}\n"; c = 8
        t += f"buffer_load_dwordx4 v{VXD+jj}, s[8:11], s{sT0} offen offset:{jj*1024}{Opt.nt_x} lds ; tag=X:{tag}"
        if j == 2 * nq - 1:
            t += f"\ns_add_u32 s{sXOFF}, s{sXOFF}, 128"; c = 8
        res.append((t, c))
    return res

def wo_reads(nq):
    return [f"ds_read_b64_tr_b16 a[{A_V + f*4 + t*2}:{A_V + f*4 + t*2 + 1}], v{VWR(nq)[(f//2)%2]} offset:{(f//4)*4096 + t*2048 + (f%2)*8}" for f in range(8) for t in range(2)]
def wo_stores():
    return [f"buffer_store_dwordx4 {aq(A_V + f*4)}, v{VOD}, s[20:23], s{sHW if f < 4 else sHO} offen offset:{(f%4)*1024}{Opt.st_o}" for f in range(8)]

def w_reads(nq, slot, nt):
    r = []
    for kk in range(2):
        for h in range(2):
            b = A_W + (nt % 4) * 8 + kk * 4 + h * 2
            r.append(f"ds_read_b64_tr_b16 a[{b}:{b+1}], v{VWA(nq) + nt//2} offset:{slot*16384 + kk*8192 + h*1024 + (nt%2)*8}")
    return r
def x_reads(nq, xset, buf):
    r = []
    for i in range(nq):
        for kk in range(2):
            b = A_X + xset * 40 + (i * 2 + kk) * 4
            r.append(f"ds_read_b128 a[{b}:{b+3}], v{VXA+kk} offset:{buf*XBUF + i*2048}")
    return r
def k_reads(slot):
    r = []
    for t in range(2):
        for s in range(4):
            b = A_K + (t * 4 + s) * 4
            r.append(f"ds_read_b128 a[{b}:{b+3}], v{VKA+s} offset:{slot*16384 + t*4096}")
    return r

def qproj_unit(nq, u):
    slot, eta, xset = u % 4, u % 2, (u // 2) % 2
    G = 2 * nq
    mf = []
    for nt in range(8):
        for j in range(2 * nq):
                i, kk = (j // 2, j % 2) if Opt.qord == 0 else (j % nq, j // nq)
                if Opt.qord == 2 and kk: i = nq - 1 - i
                c = acc(eta, i, nt)
                mf.append(f"{MF} {c}, {aq(A_W + (nt%4)*8 + kk*4)}, {aq(A_X + xset*40 + (i*2+kk)*4)}, {c}")
    n = len(mf)
    fl = []
    for nt in range(8):
        n2 = nt + 2
        rs = w_reads(nq, slot, n2) if n2 < 8 else w_reads(nq, (slot + 1) % 4, n2 - 8)
        for k, r in enumerate(rs):
            fl.append(F(r, 4, nt * G + 1, nt * G + 4, prio=k))
    pre = {}
    if eta == 1:
        pre[3 * G] = [f"s_waitcnt vmcnt(?X:{u//2 + 1})"]
        for k, r in enumerate(x_reads(nq, xset ^ 1, xset ^ 1)):
            fl.append(F(r, 4, 3 * G + 2, 5 * G + 3, prio=100 + k))
    items = x_dma(nq, xset, u // 2 + 2, list(range(eta * nq, eta * nq + nq)))
    if nq == 4:
        pre[6 * G] = [f"s_waitcnt vmcnt(?R:{u+1}) lgkmcnt(0)", "s_barrier"]
        items += ring_dma((slot - 1) % 4, f"s{sINC0 + (1 - eta)}", u + 3)
        spread(fl, items, 0, n - 1, 200)
    else:
        pre[6 * G] = ["s_waitcnt vmcnt(?R:1) lgkmcnt(0)" if u == 0 else "s_waitcnt lgkmcnt(0)", "s_barrier"]
        spread(fl, items, 3, 5 * G, 200)
    out, over = schedule(mf, fl, 8, pre)
    return out

def attn_step(nq, slot, store):
    nslot = (slot + 1) % 4
    w3 = nq == 4
    mf = []
    for i in range(nq):
        for j in range(8):
                t, s = (j // 4, j % 4) if Opt.sord == 0 else (j % 2, j // 2)
                d = vq(Sreg(i, t))
                c = vq(NM0 + i * 4) if s == 0 else d
                mf.append(f"{MF} {d}, {aq(A_K + (t*4+s)*4)}, {Q(i,s)}, {c}")
    nA = len(mf)
    first_pv = []
    for i in range(nq):
        first_pv.append(len(mf))
        for dt in range(8):
            mf.append(f"{MF} {O(i,dt)}, {aq(A_V + dt*4)}, {vq(PT(i, slot))}, {O(i,dt)}")
        if i % 2 or (i == 4 and slot % 2):
            b = PT(i & 6)
            mf.append(f"v_smfmac_f32_16x16x64_bf16 {aq(A_L + (i//2)*4)}, {aq(A_ONES)}, v[{b}:{b+7}], v{VIX}")
    n = len(mf)
    fl = []
    so = slot * 16384
    for dt in range(8):
        for t in range(2):
            b = A_V + dt * 4 + t * 2
            fl.append(F(f"ds_read_b64_tr_b16 a[{b}:{b+1}], v{VVA+dt} offset:{so + 8192 + t*4096}", 4, 0, 12, prio=dt))
    for i in range(nq):
        dl = first_pv[i]
        for t in range(2):
            dlc = dl - 3
            if i + 3 < nq: dlc = min(dlc, 8 * (i + 3) + (4 if Opt.sord == 0 else 1) * t - 1)
            es = []
            for r in range(4):
                v = Sreg(i, t) + r
                e = F(f"v_exp_f32 v{v}, v{v}", 8, i * 8 + (t * 4 + 3 if Opt.sord == 0 else 6 + t) + Opt.delay, dlc - 1, prio=i * 8 + t * 4 + r)
                es.append(e); fl.append(e)
            for h in range(2):
                v = Sreg(i, t) + 2 * h
                fl.append(F(f"v_cvt_pk_bf16_f32 v{PT(i, slot)+t*2+h}, v{v}, v{v+1}", 4, 0, dlc, deps=es[2*h:2*h+2], prio=i * 8 + t * 4 + 2*h + 1))
    for k, r in enumerate(k_reads(nslot)):
        fl.append(F(r, Opt.ldscost if (nq == 5 and not (store and slot == 0)) else 4, nA, n - 10, prio=500 + k))
    pre = {0: ["s_waitcnt lgkmcnt(0)"]}
    vmw = "vmcnt(32) " if w3 else ""
    if w3 and store == 2:
        def lin(lds, off, cnt):
            return [((f"s_mov_b32 m0, {lds + j*1024}\ns_mov_b32 s{sT1}, {off + j*1024}\n" if j % 4 == 0 else "") +
                     f"buffer_load_dwordx4 v{VOD}, s[4:7], s{sT1} offen offset:{(j%4)*1024}{Opt.ld_wo} lds", 8 if j % 4 == 0 else 4) for j in range(cnt)]
        nx = 8 * Opt.pre_x
        if nx: spread(fl, lin(XB + slot * XW, slot * 65536 + 0x40000, nx), 0, nA - 2, 550)
        spread(fl, lin(slot * 16384, slot * 65536 + 16384, 16), nA, n - 1, 600)
        vmw = f"vmcnt({min(63, 32 + nx * (slot + 1))}) " if slot < 3 else ""
    elif w3: spread(fl, ring_dma(slot, "0x2000"), nA, n - 1, 600)
    pre[nA] = [f"s_waitcnt {vmw}lgkmcnt(0)", "s_barrier"]
    if store == 1:
        stride = SM()[1]
        if slot == 0:
            rs = [F(f"ds_read_b128 {vq(QLO + 4*q)}, v{VSR} offset:{q*1024}", 4, nA + 2, n - 8, prio=700 + q) for q in range(4)]
            fl += rs + [F(f"v_add_u32 v{VSR}, {stride*4096}, v{VSR}", 4, 0, n - 1, deps=rs, prio=800)]
        qs = [{0: [], 1: [0, 1], 2: [2, 3], 3: []}, {0: [], 1: [0, 1], 2: [2], 3: [3]}][Opt.spos][slot]
        for k, q in enumerate(qs):
            pos = 14 + k * (n // 2)
            t = f"buffer_store_dwordx4 {vq(QLO + 4*q)}, v{VOD}, s[20:23], s{sSO} offen offset:{q*1024}{Opt.st_o}"
            fl.append(F(t + (f"\ns_add_u32 s{sSO}, s{sSO}, {stride*TS}" if q == 3 else ""), 4 + 4 * (q == 3), pos, pos + 12, prio=700 + k))
    out, over = schedule(mf, fl, 8, pre)
    return out

def maxpass_mf(nq, qbase):
    return [f"{MF} {vq(PT(i))}, {aq(A_K + s*4)}, {Q(i, s, qbase)}, {vq(PT(i)) if s else 0}" for i in range(nq) for s in range(4)]
def max_finish(nq):
    L = []
    for sw in ("v_permlane32_swap_b32", "v_permlane16_swap_b32"):
        for i in range(nq): L.append(f"v_mov_b32 v{PT(i)+1}, v{PT(i)}")
        for i in range(nq): L.append(f"{sw} v{PT(i)}, v{PT(i)+1}")
        for i in range(nq): L.append(f"v_max_f32 v{PT(i)}, v{PT(i)}, v{PT(i)+1}")
    for i in range(nq):
        for r in range(4): L.append(f"v_xor_b32 v{NM0+i*4+r}, 0x80000000, v{PT(i)}")
    return L
def k4_reads(nq, f, b): return [f"ds_read_b128 {f}[{b+4*s}:{b+4*s+3}], v{VKB(nq)} offset:{s*64}" for s in range(4)]
def k4_mf(nq, f, b):
    return [f"{MF} {vq(NM0 + 4*i)}, {f}[{b+4*s}:{b+4*s+3}], {Q(i, s)}, {vq(NM0 + 4*i) if s else 0}" for i in range(nq) for s in range(4)]
def k4_max(nq):
    n = [NM0 + 4 * i for i in range(nq)]
    L = [f"v_max3_f32 v{b}, v{b}, v{b+1}, v{b+2}" for b in n] + [f"v_max_f32 v{b}, v{b}, v{b+3}" for b in n]
    return L + [f"v_pk_mul_f32 v[{b+r}:{b+r+1}], v[{b}:{b+1}], -1.0 op_sel_hi:[0,0]" for r in (2, 0) for b in n]
def shadow(plain, mfs):
    out = []; plain = list(plain)
    for m in mfs:
        out.append(m)
        c = 24 if "32x32" in m else 8
        while c > 0 and plain:
            out.append(plain.pop(0)); c -= 4 if out[-1].startswith(("v_", "s_")) else 16
    return out + plain
def share(items, n, k):
    return items[k * len(items) // n:(k + 1) * len(items) // n]
def zero16(b, z=ZQ): return f"{MF32} a[{b}:{b+15}], {z}, {z}, 0"
def zero_L(nq): return [zero16(A_L)]

sPR = 92
sOS, sOO = sHO, sSO
HOFF = [0, 0x40000, 0x8000, 0x48000]
def _q(t): return f"{t[0]}[{t[1]}:{t[1]+3}]"
def ACC(i, nu): return ("v", 32 + (i * 2 + nu - 6) * 4) if nu >= 6 else ("a", (i * 6 + nu) * 4)
def fa(k, nu): return vq(QLO + 16 + (k * 8 + nu) * 4)
def fb(k, i): return vq(QTOP + (k * 10 + i) * 4)
VO2, VW2, VRW, VRR, VXR = 4, 9, 13, 17, 19
def ld_a(d, k, nu, so): return f"buffer_load_dwordx4 {d}, v{VW2 + nu//2}, s[4:7], s{so} offen offset:{(nu%2)*1024}{Opt.ld_wo} ; tag=A{nu}:{k}"
def ld_b(d, k, i, so): return f"buffer_load_dwordx4 {d}, v{VO2 + i%5}, s[8:11], s{so} offen offset:{(k%4)*1024}{Opt.ld_o} ; tag=B{i}:{k}"
def op_setup():
    L = [f"v_add_u32 v{VO2+i}, {i*TS + PAD}, v{VOD}" for i in range(5)]
    L += [f"s_lshl_b32 s{sT0}, s{sWAVE}, 13", f"s_and_b32 s{sT1}, s{sQG}, 1", f"s_lshl_b32 s{sT1}, s{sT1}, 16", f"s_add_u32 s{sT0}, s{sT0}, s{sT1}",
          f"s_mul_i32 s{sOO}, s{sQG}, {5*TS}", f"s_add_u32 s{sOO}, s{sOO}, s{sT0}", f"s_xor_b32 s{sOS}, s{sQG}, 1", f"s_mul_i32 s{sOS}, s{sOS}, {5*TS}",
          f"s_add_u32 s{sOS}, s{sOS}, s{sT0}", f"s_lshl_b32 s{sHW}, s{sWAVE}, 16"]
    return L
def op_loads0(): return [ld_b(fb(k, i), k, i, sOS if i < 5 else sOO) for k in range(2) for i in range(10)]
def xch_off(d, wg):
    return [f"s_mul_i32 s{d}, s{wg}, 20480", f"s_mul_i32 s{d+1}, s{sWAVE}, 5120", f"s_add_u32 s{d}, s{d}, s{d+1}", f"s_add_u32 s{d}, s{d}, {XCH}", f"s_add_u32 s{d+1}, s{d}, 4096"]
sOT = 30
OQ = [64, 68] + list(range(76, 112, 4))
def o_reg(k):
    late = 20 - Opt.ne
    assert late <= len(OQ) - 3
    return OQ[k - Opt.ne] if k >= Opt.ne else OQ[late + k % (len(OQ) - late)]
def st_o(k):
    return f"buffer_store_dwordx4 {vq(o_reg(k))}, v{VOD}, s[20:23], s{sOT + k//4} offen offset:{(k%4)*1024}{Opt.st_o} ; tag=S:0"
E1 = {}

def own_word(kind):
    L = [f"s_lshl_b32 s{sT0}, s{sBR}, 3", f"s_add_u32 s{sT0}, s{sT0}, s{sB1}", f"s_lshl_b32 s{sT0}, s{sT0}, 7", f"s_lshl_b32 s{sT1}, s{sH0}, 1",
         f"s_add_u32 s{sT0}, s{sT0}, s{sT1}", f"s_add_u32 s{sT0}, s{sT0}, {FLW + (64 if kind == 2 else 0)}"]
    L += [f"v_lshl_add_u32 v1, v{VOD}, 2, s{sT0}", f"v_mov_b32 v2, {16 if kind else 0}", f"s_mov_b64 exec, {1 if kind else 3}"]
    return L + [f"global_store_dword v1, v2, s[{sWS}:{sWS+1}] sc0 sc1", "s_mov_b64 exec, -1"]
def signal(a, kind):
    if kind:
        for l in own_word(kind): a(l)
        return
    a(f"s_lshl_b32 s{sT0}, s{sBR}, 3\ns_add_u32 s{sT0}, s{sT0}, s{sB1}\ns_lshl_b32 s{sT0}, s{sT0}, 2")
    a(f"v_mov_b32 v1, s{sT0}\nv_mov_b32 v2, 1\ns_mov_b64 exec, 1")
    a(f"global_atomic_add v1, v2, s[{sDBG}:{sDBG+1}]{' offset:128' if Opt.dbg else ''} sc1\ns_mov_b64 exec, -1")
def poll_issue(a, kind):
    if kind == 0:
        a(f"s_lshl_b32 s{sT0}, s{sBR}, 5\ns_add_u32 s{sT0}, s{sT0}, {128 if Opt.dbg else 0}\nv_and_b32 v{VPA}, 7, v0\nv_lshl_add_u32 v{VPA}, v{VPA}, 2, s{sT0}")
    else:
        a(f"s_lshl_b32 s{sT0}, s{sBR}, 3\ns_add_u32 s{sT0}, s{sT0}, s{sB2}\ns_lshl_b32 s{sT0}, s{sT0}, 7\ns_add_u32 s{sT0}, s{sT0}, {FLW + (64 if kind == 2 else 0)}")
        a(f"v_and_b32 v{VPA}, 15, v0\nv_lshl_add_u32 v{VPA}, v{VPA}, 2, s{sT0}")
    b = sWS if kind else sDBG
    a(f"global_load_dword v{VPD}, v{VPA}, s[{b}:{b+1}] sc0 sc1")
def poll_wait(a, kind, lbl, done, first_wait="vmcnt(0)"):
    b = sWS if kind else sDBG
    a(f"s_mov_b32 s{sT1}, 0x20000\ns_waitcnt {first_wait}")
    a.label(lbl)
    a(f"v_cmp_gt_u32 vcc, 16, v{VPD}\ns_sub_u32 s{sT1}, s{sT1}, 1\ns_cmp_eq_u32 s{sT1}, 0\ns_cbranch_scc1 {done}")
    a(f"s_nop 2\ns_cbranch_vccz {done}")
    a(f"global_load_dword v{VPD}, v{VPA}, s[{b}:{b+1}] sc0 sc1\ns_sleep 4\ns_waitcnt vmcnt(0)\ns_branch {lbl}")

def oproj(a):
    a.label("L_op")
    pstamp(a, 9)
    n3 = sum(l.startswith("buffer_") for l in E1[4])
    pro = [f"s_lshl_b32 s{sG1}, s{sWAVE}, 14", f"s_mul_i32 s{sT1}, s{sWAVE}, {XW}", f"s_add_u32 s{sT1}, s{sT1}, {XB}"]
    for p in range(4):
        pro += [f"s_and_b32 s{sT0}, s{sPR+p}, 0x1fff", f"v_add_u32 v{VW2+p}, s{sT0}, v{VOD}", f"v_add_u32 v{VRW+p}, s{sG1}, v{VW2+p}", f"v_add_u32 v{VXR+p}, s{sT1}, v{VW2+p}"]
    pro += [f"s_waitcnt vmcnt({n3})", "s_barrier"]
    D = Opt.dt; K0 = 16 - D; T0 = 80 * K0; TH = 40 * D; N = 1280
    od = [(k, nu, i) for k in range(K0) for nu in range(8) for i in range(10)]
    od += [(k, 2 * p + e, i) for h in range(2) for p in range(4) for i in range(5 * h, 5 * h + 5) for e in range(2) for k in range(K0, 16)]
    first = {}; last = {}
    for g, (k, nu, i) in enumerate(od):
        for f in (("A", k, nu), ("B", k, i)):
            first.setdefault(f, g); last[f] = g
    done = {(i, nu): g for g, (k, nu, i) in enumerate(od)}
    B1, B2, B3 = T0 + Opt.b1 * D // 3, T0 + TH + Opt.b2, N - Opt.b3
    fl = []; pre = {}
    pool = [(-1, ("a", 240 + 4 * j)) for j in range(4)]
    t = 0
    for (i, nu), g in sorted(done.items(), key=lambda x: x[1]):
        if nu >= 6: continue
        t = max(g + 8, t + 3.25, B2 if (i >= 5 and nu >= 2) else 0)
        ad = VRW + 3 if (i >= 5 and nu < 2) else VRW + nu // 2
        lim = (B1 if i < 5 else B3) - 1
        assert t <= lim + 4, (t, lim)
        fl.append(F(f"ds_write_b128 v{ad}, {_q(ACC(i, nu))} offset:{((i%5)*2 + nu%2)*1024}", 8, min(int(t), lim), min(int(t) + 1, lim), prio=1))
        pool.append((int(t) + 5, ACC(i, nu)))
    reg = {("A", k, nu): ("v", QLO + 16 + (k * 8 + nu) * 4) for k in range(2) for nu in range(8)}
    reg.update({("B", k, i): ("v", QTOP + (k * 10 + i) * 4) for k in range(2) for i in range(10)})
    for f in reg: pool.append((last[f] + 1, reg[f]))
    SQ = []
    tg = tl = -9; prevg = prevl = None
    cache = {}; tmps = [52, 53, 54, 44, 45, 69]
    pw = None
    for f in sorted((f for f in first if f not in reg), key=lambda f: first[f]):
        kind, k, j = f
        keep = kind == "B" and k >= K0 and j < 5
        cand = sorted(x for x in pool if not keep or x[1][0] == "v")
        ag = [x for x in cand if x[1][0] == "a" and x[0] + 70 <= first[f]]
        x = ag[0] if (ag and first[f] >= T0) else cand[0]
        pool.remove(x); reg[f] = x[1]
        if keep: SQ.append((last[f] + 1, x[1][1]))
        else: pool.append((last[f] + 1, x[1]))
        if kind == "A" and k < 4 + Opt.pre_x:
            tl = max(x[0], tl + 2, 0)
            ad = VRW if k < 4 else VXR
            c = F(f"ds_read_b128 {_q(x[1])}, v{ad + j//2} offset:{(k%2)*8192 + (j%2)*1024}", 4, tl, tl + 3, deps=[prevl] if prevl else [], prio=5, depgap=0)
            prevl = c
        else:
            tg = max(x[0], tg + Opt.lgap, 0)
            key = (sHW, HOFF[k // 4] + (k % 4) * 8192) if kind == "A" else (sOS if j < 5 else sOO, HOFF[k // 4] >> 3)
            txt = ""
            if key[1] == 0: so = key[0]
            else:
                if key not in cache:
                    r = tmps[0]
                    cache = {a_: b_ for a_, b_ in cache.items() if b_ != r}; cache[key] = r
                    txt = f"s_add_u32 s{r}, s{key[0]}, {key[1]}\n"
                so = cache[key]; tmps.remove(so); tmps.append(so)
            if kind == "B" and k >= 8 and pw is None:
                pw = tg; txt = "s_waitcnt vmcnt(?P:0)\n@PW@:\n" + txt
            txt += (ld_a if kind == "A" else ld_b)(_q(x[1]), k, j, so)
            c = F(txt, 8, tg, tg + 2, deps=[prevg] if prevg else [], prio=3)
            prevg = c
        assert c.hi + 8 < first[f], (f, c.hi, first[f])
        fl.append(c)
    dist = sorted(first[f] - c.lo for f, c in zip(sorted((f for f in first if f[1] >= 2), key=lambda f: first[f]), fl[60:]) if "buffer" in c.text)
    if Opt.stamps: print("prefetch distance min/med", dist[:8], dist[len(dist) // 2], "poll wait at", pw)
    mf = [f"{MF} {_q(ACC(i, nu))}, {_q(reg['A', k, nu])}, {_q(reg['B', k, i])}, {_q(ACC(i, nu)) if k else 0}" for k, nu, i in od]
    seen = set()
    for g in range(0, N, 5):
        new = {}
        for k, nu, i in od[g:g + 5]:
            for f in (("A", k, nu), ("B", k, i)):
                if f not in seen and not (f[0] == "A" and k < 4 + Opt.pre_x): new.setdefault(k, []).append(f"{f[0]}{f[2]}")
                seen.add(f)
        if new: pre[g] = [f"s_waitcnt vmcnt(?{'|'.join(v)}:{k})" for k, v in new.items()]
    for j in range(Opt.ne, 20):
        g = 3 + (j - Opt.ne) * 50 // (20 - Opt.ne)
        fl.append(F(st_o(j), 8, g, g + 3, prio=2))
    pre.setdefault(Opt.sig, []).extend(["s_waitcnt vmcnt(?S:0)", "@SIG@:"])
    pi = Asm(); poll_issue(pi, 2)
    pi = [l.strip() for l in pi.lines]; pi[-1] += " ; tag=P:0"
    assert Opt.sig + 2 < pw - Opt.plead
    spread(fl, [(l, 4) for l in pi], pw - Opt.plead, pw - Opt.plead + 2 * len(pi), 20)
    pre.setdefault(640, []).append("s_barrier")
    pre.setdefault(T0, []).append("@TAIL@:")
    misc = []
    for p in range(3):
        misc += [f"s_add_u32 s{sT0}, s{sWAVE}, {p+1}", f"s_and_b32 s{sT0}, s{sT0}, 3", f"s_mul_i32 s{sT1}, s{sT0}, 30720", f"s_add_u32 s{sT1}, s{sT1}, {p*10240}", f"v_add_u32 v{VRW+p}, s{sT1}, v{VOD}"]
        if p == 0: misc += [f"s_mul_i32 s{sT1}, s{sT0}, 10240", f"s_add_u32 s{sT1}, s{sT1}, 122880", f"v_add_u32 v{VRW+3}, s{sT1}, v{VOD}"]
    misc += [f"s_mul_i32 s{sT0}, s{sWAVE}, 30720", f"v_add_u32 v{VRR}, s{sT0}, v{VOD}",
             f"s_mul_i32 s{sT0}, s{sWAVE}, 10240", f"s_add_u32 s{sT0}, s{sT0}, 122880", f"v_add_u32 v{VRR+1}, s{sT0}, v{VOD}",
             "v_and_b32 v3, 15, v0", "v_and_b32 v1, 48, v0",
             f"s_mul_i32 s{sT0}, s{sB2}, 304", f"s_mul_i32 s{sT1}, s{sQG}, 80", f"s_add_u32 s{sT0}, s{sT0}, s{sT1}", f"s_lshl_b32 s{sT0}, s{sT0}, 11",
             f"s_lshl_b32 s{sT1}, s{sBR}, 10", f"s_add_u32 s{sT0}, s{sT0}, s{sT1}", f"s_lshl_b32 s{sT1}, s{sN4}, 8",
             f"s_add_u32 s{sT0}, s{sT0}, s{sT1}", f"s_lshl_b32 s{sT1}, s{sWAVE}, 6", f"s_add_u32 s{sT0}, s{sT0}, s{sT1}",
             "v_lshl_add_u32 v2, v3, 11, v1", f"v_add_u32 v2, s{sT0}, v2",
             f"s_mov_b32 s16, s{sOUT}", f"s_mov_b32 s17, s{sOUT+1}", f"s_mov_b32 s18, {8*304*1024*2}"]
    misc += xch_off(30, 2) + ["s_xor_b32 s34, s2, 32"] + xch_off(32, 34)
    spread(fl, [(m, 4) for m in misc], 700, 700 + 4 * len(misc), 30)
    for b in (B1, B2, B3): pre.setdefault(b, []).extend(["s_waitcnt lgkmcnt(0)", "s_barrier"])
    SQ.sort()
    user = {}; adds = {}
    prev = None; tr = ta = 0
    for j, (p, i, e) in enumerate([(p, i, e) for ps in ((1, 2), (0,)) for i in range(5) for p in ps for e in range(2)]):
        fr, q = SQ[j % len(SQ)]
        tr = max(B1, fr, tr + 1, user[q].hi if q in user else 0)
        assert p == 0 or tr < B2, (tr, B2)
        r = F(f"ds_read_b128 {vq(q)}, v{VRR} offset:{p*10240 + (i*2+e)*1024}", 4, max(B1, fr), tr, deps=[x for x in (user.get(q), prev) if x], prio=10 + j, depgap=0)
        prev = r
        b = ACC(i, 6 + e)[1]
        dep = r
        ta = max(tr + 8, done[i, 6 + e] + 6, ta + Opt.arate / 10)
        for h in range(2):
            ad = F("\n".join(f"v_add_f32 v{b+c}, v{b+c}, v{q+c}" for c in (2 * h, 2 * h + 1)), 8, done[i, 6 + e] + 6, int(ta) + h, deps=[dep], prio=10 + j, depgap=8 if h == 0 else 0)
            fl.append(ad); dep = ad
        user[q] = dep; adds.setdefault(i, []).append(dep)
        fl.append(r)
        if p == 0 and e == 1:
            b = ACC(i, 6)[1]
            dep = adds[i]
            for h in range(2):
                c = F("\n".join(f"v_cvt_pk_bf16_f32 v{b+r}, v{b+2*r}, v{b+2*r+1}" for r in (2 * h, 2 * h + 1)), 8, 0, int(ta) + 2 + h, deps=dep, prio=8, depgap=1)
                fl.append(c); dep = [c]
            fl.append(F(f"buffer_store_dwordx4 {vq(b)}, v{VOD}, s[20:23], s{30 + i//4} offen offset:{(i%4)*1024}{Opt.st_x}", 8, 0, int(ta) + 4, deps=dep, prio=8))
            ta += 3
    if Opt.stamps: print("B1 B2 B3", B1, B2, B3, "last partner store by", int(ta) + 1)
    PQ = [q for fr, q in SQ[:5]]
    pld = [f"buffer_load_dwordx4 {vq(PQ[i])}, v{VOD}, s[20:23], s{32 + i//4} offen offset:{(i%4)*1024} sc0 sc1" for i in range(5)]
    for i in range(5): fl.append(F(pld[i], 8, N - Opt.pl + 2 * i, N - 1, deps=[user[PQ[i]]], prio=9))
    RQ = [q for fr, q in SQ[5:]]
    ne = min(len(RQ), Opt.b3)
    RQ += [b for b in range(QLO + 16, 256, 4) if b not in RQ and b not in PQ]
    rds = [f"ds_read_b128 {vq(RQ[i*6 + p*2 + e])}, v{VRR + (p == 0)} offset:{p*10240 + (i*2+e)*1024}" for i in range(5) for p in range(3) for e in range(2)]
    for k, r in enumerate(rds[:ne]): fl.append(F(r, 4, B3 + k, B3 + k, prio=0))
    body, over = schedule(mf, fl, 8, pre)
    tail = rds[ne:]
    for i in range(5):
        if i != 1: tail.append(f"s_waitcnt lgkmcnt({min(14, 6 * (4 - i))})")
        for p in range(3):
            for e in range(2):
                for r in range(0, 4, 2):
                    d = ACC(5 + i, 6 + e)[1] + r; b = RQ[i * 6 + p * 2 + e] + r
                    tail.append(f"v_pk_add_f32 v[{d}:{d+1}], v[{d}:{d+1}], v[{b}:{b+1}]")
    chk = ["s_waitcnt vmcnt(0)"] + [f"v_max3_u32 v{32+i}, v{q}, v{q+1}, v{q+2}" for i, q in enumerate(PQ)] + [f"v_max_u32 v{32+i}, v{32+i}, v{q+3}" for i, q in enumerate(PQ)]
    chk += ["v_max3_u32 v32, v32, v33, v34", "v_max3_u32 v32, v32, v35, v36", "v_cmp_eq_u32 vcc, -1, v32"]
    tail += ["@XC@:"] + chk + [f"s_mov_b32 s{sT0}, 0", "@XB@:"]
    for i in range(5):
        if i == 4: tail.append("@LAST@:")
        b = ACC(5 + i, 6)[1]; q = PQ[i]
        for r in range(4): tail += [f"v_lshlrev_b32 v{40+2*r}, 16, v{q+r}", f"v_and_b32 v{41+2*r}, 0xffff0000, v{q+r}"]
        for r in range(0, 8, 2): tail.append(f"v_pk_add_f32 v[{b+r}:{b+r+1}], v[{b+r}:{b+r+1}], v[{40+r}:{41+r}]")
        if i: tail.append(f"s_mov_b32 s{sT0}, {i*32768}")
        for r in range(4): tail.append(f"v_cvt_pk_bf16_f32 v{b+r}, v{b+2*r}, v{b+2*r+1}")
        tail.append(f"buffer_store_dwordx4 {vq(b)}, v2, s[16:19], s{sT0} offen{Opt.st_out}")
    body = waits.insert_lgkm(body + ["@END@:"] + tail, loop=False)
    res = [waits.resolve_vm([(E1[nq], 1, {}), (body, 1, {})])[1] for nq in (4, 5)]
    def cnt(l): return int(re.search(r"vmcnt\((\d+)", l).group(1))
    body = [l1 if (l1 == l2 or cnt(l1) <= cnt(l2)) else l2 for l1, l2 in zip(*res)]
    out = []; room = 99
    for l in body:
        if l.startswith(("buffer_", "global_")): room += 1
        elif re.fullmatch(r"s_waitcnt vmcnt\(\d+\)", l):
            if cnt(l) >= room and cnt(l): continue
            if re.fullmatch(r"s_waitcnt vmcnt\(\d+\)", out[-1] if out else ""): out.pop()
            room = cnt(l)
        out.append(l)
    k = out.index("@END@:")
    body, tail = out[:k], fix_hazards(out[k + 1:], out[k - 26:k])
    for l in fix_hazards(pro): a(l)
    for e in hazard.check(pro + body, "op")[:10]: print(e)
    a("; noalign")
    nbar = 0
    for l in body:
        if l == "@SIG@:":
            pstamp(a, 10)
            a(f"v_mov_b32 v1, {FLAG + 8}\nv_mov_b32 v2, 1\ns_mov_b64 exec, 1\nds_add_rtn_u32 v3, v1, v2\ns_mov_b64 exec, -1\ns_waitcnt lgkmcnt(0)")
            a(f"v_readfirstlane_b32 s{sT0}, v3\ns_nop 1\ns_cmp_eq_u32 s{sT0}, 3\ns_cbranch_scc1 L_sig"); a.label("L_sigr")
        elif l == "@PW@:":
            pstamp(a, 11)
            a(f"v_cmp_gt_u32 vcc, 16, v{VPD}\ns_nop 1\ns_nop 1\ns_cbranch_vccnz L_pw"); a.label("L_pwr")
            pstamp(a, 12)
        elif l == "@TAIL@:": pstamp(a, 13); pstamp(a, 9, tail=True)
        else:
            a(l)
            if l == "s_barrier":
                nbar += 1
                if nbar == 2: pstamp(a, 10, tail=True)
    pstamp(a, 11, tail=True)
    a("; align")
    a(f"s_mov_b32 s{sT1}, 0x20000")
    for l in tail:
        if l == "@LAST@:": a(f"s_cmp_eq_u32 s{sQG}, 3\ns_cbranch_scc1 L_fin")
        elif l == "@XC@:": pstamp(a, 12, tail=True); a.label("L_xc")
        elif l == "@XB@:":
            a("s_nop 1\ns_nop 0\ns_cbranch_vccnz L_xw"); a.label("L_xr")
            pstamp(a, 13, tail=True)
        else: a(l)
    def side_code():
        a.label("L_sig")
        signal(a, 2)
        a("s_branch L_sigr")
        a.label("L_pw")
        poll_wait(a, 2, "L_pw2", "L_pwr")
        a.label("L_xw")
        a(f"s_sub_u32 s{sT1}, s{sT1}, 1\ns_cmp_eq_u32 s{sT1}, 0\ns_cbranch_scc1 L_xr\ns_sleep 2")
        for l in pld: a(l)
        a("s_branch L_xc")
    return side_code

def kv_switch():
    return ["s_mov_b32 s12, s24", "s_mov_b32 s13, s25", "s_mov_b32 s14, 0x80000", "s_mov_b32 s16, s28", "s_mov_b32 s17, s29", "s_mov_b32 s18, 0x80000",
            f"s_mov_b32 s{sRAW}, 0", f"s_mov_b32 s{sDOFF}, s{sROT}", f"s_mov_b32 s{sMH}, 0xfffc0000", f"s_mov_b32 s{sML}, 0x3e000",
            f"s_movk_i32 s{sINC0}, 0x2000", f"s_movk_i32 s{sINC1}, 0x2000", f"s_movk_i32 s{sG1}, 0x1000", f"s_mov_b32 s{sG2}, 0", f"s_movk_i32 s{sG3}, 0x1000"]

TRACE = ["s_mov_b32 m0, s47", "s_add_u32 s47, s47, 1", "v_writelane_b32 v73, s98, m0", "v_writelane_b32 v75, s100, m0",
         "s_memrealtime s[98:99]", "s_memtime s[100:101]"]
def variant(a, nq, tag):
    w3 = nq == 4
    RC = VRC(nq)
    pro = ["v_lshrrev_b32 v2, 2, v30", "v_and_b32 v3, 1, v31", "v_lshl_add_u32 v3, v3, 2, v2", "v_bfe_u32 v1, v30, 1, 1", "v_xor_b32 v3, v3, v1",
           "v_lshl_add_u32 v2, v31, 3, v2", "v_lshlrev_b32 v2, 8, v2", "v_and_b32 v1, 1, v30", "v_lshl_add_u32 v2, v1, 4, v2"]
    for s in range(4): pro += [f"v_xor_b32 v1, {2*s}, v3", f"v_lshl_add_u32 v{VWA(nq)+s}, v1, 5, v2"]
    pro += ["v_bfe_u32 v1, v0, 2, 4", "v_lshrrev_b32 v2, 1, v1", "v_and_b32 v3, 3, v0", "v_xor_b32 v2, v2, v3", "v_lshlrev_b32 v2, 4, v2", "v_lshl_add_u32 v2, v1, 7, v2",
            f"v_add_u32 v{VWR(nq)[0]}, s{sM0X}, v2", f"v_xor_b32 v{VWR(nq)[1]}, 64, v{VWR(nq)[0]}"]
    if w3:
        pro += ["v_xor_b32 v1, v30, v31"]
        for j in range(4): pro += [f"v_xor_b32 v2, {4*j}, v1", "v_lshlrev_b32 v2, 4, v2", f"v_lshl_add_u32 v{VPK+j}, v31, 8, v2", f"v_mov_b32 v{VDB+j}, v{VDA+j}"]
        pro += ["v_lshrrev_b32 v2, 1, v30", "v_xor_b32 v2, v2, v31", "v_and_b32 v3, 1, v30", "v_lshlrev_b32 v3, 4, v3"]
        for j in range(4): pro += [f"v_xor_b32 v1, {4*(j%2)}, v2", "v_lshl_add_u32 v1, v1, 5, v3", f"v_lshl_add_u32 v{VPV+j}, v31, 8, v1"]
        pro += [f"v_mov_b32 v1, {FLAG}", "ds_write_b64 v1, v[32:33]", "ds_write_b64 v1, v[32:33] offset:8"]
    pro += ["s_waitcnt vmcnt(?X:0) lgkmcnt(0)", "s_barrier"]
    pro += x_reads(nq, 0, 0) + w_reads(nq, 0, 0) + w_reads(nq, 0, 1) + "\n".join(first_loads()[Opt.nfl:]).split("\n")
    pro += xch_off(98, 2) + [f"s_mov_b32 s{sCNT}, 4", "s_waitcnt lgkmcnt(0)"]
    body = []
    for u in range(4):
        if u == 1: body.append("@SWITCH@:")
        if u == 2: body += [f"s_cmp_eq_u32 s{sCNT}, 1", "s_cselect_b32 s10, 0, s10"]
        body += qproj_unit(nq, u)
    body = waits.insert_lgkm(body)
    _, pro, body = waits.resolve_vm([("\n".join(first_loads()[:Opt.nfl]).split("\n"), 1, {}), (pro, 1, {}), (body, 4, {"R": 4 if w3 else 0, "X": 2})])
    for l in fix_hazards(pro):
        if "vmcnt" in l: pstamp(a, 4, True)
        a(l)
    pstamp(a, 1)
    for e in hazard.check(body + body, f"q{tag}")[:10]: print(e)
    a.label(f"L_q{tag}")
    a("; noalign")
    a(f"s_cmp_eq_u32 s{sCNT}, 1\ns_cselect_b32 s8, s4, s8\ns_cselect_b32 s9, s5, s9\ns_cselect_b32 s10, s6, s10\ns_cselect_b32 s{sXOFF}, s{sHO}, s{sXOFF}")
    for l in body:
        if l == "@SWITCH@:":
            if w3: a(f"s_cmp_eq_u32 s{sCNT}, 1\ns_cbranch_scc1 L_qs{tag}"); a.label(f"L_qn{tag}")
        else: a(l)
    a(f"s_sub_u32 s{sCNT}, s{sCNT}, 1\ns_cmp_lg_u32 s{sCNT}, 0\ns_cbranch_scc1 L_q{tag}")
    a("; align")
    pstamp(a, 2)
    def scale(sb): return [f"v_pk_mul_f32 v[{sb+r}:{sb+r+1}], v[{sb+r}:{sb+r+1}], s[{sSC}:{sSC+1}]" for r in range(0, 8, 2)]
    def pack(sb, d): return [f"v_cvt_pk_bf16_f32 v{d+r}, v{sb+2*r}, v{sb+2*r+1}" for r in range(3, -1, -1)]
    cv = ["v_and_b32 v1, 63, v0", f"v_lshlrev_b32 v{VOD}, 4, v1", f"s_add_u32 s{sHO}, s{sHW}, 8192", "s_waitcnt lgkmcnt(0)"] + wo_reads(nq)[:8]
    side = wo_reads(nq)[8:] + ([t for t, c in ring_dma(3, "0x2000")] if w3 else []) + k_reads(0)
    t0s, stride, cnts = SM()
    side += [f"v_add_u32 v{VSW}, s96, v{VOD}\nv_add_u32 v{VSR}, s97, v{VOD}", f"s_add_u32 s4, s{sWS}, s{sWB}\ns_addc_u32 s5, s{sWS+1}, 0\ns_mov_b32 s6, 0x80000",
             f"s_add_u32 s8, s{sWS}, s55\ns_addc_u32 s9, s{sWS+1}, 0\ns_mov_b32 s10, {19*TS}\ns_mov_b32 s{sCNT}, 8"]
    if w3: side += ["\n".join(own_word(0))]
    ks = [k for k in range(27, -1, -1) if (k - 8 if k >= 8 else k + 12) // 4 < nq]
    nb = len(ks) // 4
    zs = [zero16(b) for b in range(96, 32 * nq, 16)]
    ws = wo_stores()
    xs = [f"buffer_store_dwordx4 a[252:255], v{VOD}, s[20:23], s{98 + i//4} offen offset:{(i%4)*1024}{Opt.st_x}" for i in range(5)]
    for j in range(nb):
        for k in ks[4*j:4*j+4]: cv += scale(32 + 8 * k)
        pl = sum((pack(32 + 8 * k, 144 + 4 * k) for k in ks[4*j:4*j+4]), [])
        cv += shadow(weave(pl, share(side, nb, j), 2) + ([ws.pop(0)] if j >= nb - 3 else []) + ([] if Opt.nox else share(xs, nb, j)), zs[j-1:j] if j else [])
    cv += ["v_and_b32 v1, 3, v0", "v_xor_b32 v2, v31, v1", "v_lshlrev_b32 v2, 4, v2", f"v_lshl_add_u32 v{VKB(nq)}, v1, 8, v2"] + k4_reads(nq, "v", 48)
    cv += [f"v_bfe_i32 v{VIX}, v0, 0, 1", f"v_and_b32 v{VIX}, 0xaaaaaaaa, v{VIX}", f"v_or_b32 v{VIX}, 0x44444444, v{VIX}"]
    def rd(j): return [f"v_accvgpr_read_b32 v{32+r}, a{16*j+r}" for r in range(16)] if j < 6 else k4_max(nq)
    cv += rd(0)
    mp = k4_mf(nq, "v", 48)
    for j in range(6):
        cv += scale(32) + scale(40) + (["s_waitcnt lgkmcnt(0)"] if j == 0 else [])
        cv += shadow(ws[j:j+1] + pack(32, QLO + 8 * j) + pack(40, QLO + 8 * j + 4) + rd(j + 1), mp[4*j:4*j+4] + [zero16(16 * j)] if j < 5 else [zero16(16 * j)])
    cv = waits.insert_lgkm("\n".join(cv).split("\n"), loop=False)
    cv = "\n".join(cv).split("\n")
    if Opt.trace and not w3: cv += ["s_mov_b32 s47, 0", "v_mov_b32 v73, 0", "v_mov_b32 v75, 0"]
    for l in fix_hazards(cv, body[-26:]): a(l)
    pstamp(a, 3)
    a(f"s_branch L_loop{tag}")
    if w3:
        a.label(f"L_qs{tag}")
        for l in kv_switch(): a(l)
        for j in range(4): a(f"v_mov_b32 v{VDA+j}, v{VPK+j}\nv_mov_b32 v{VDB+j}, v{VPV+j}")
        a(f"s_branch L_qn{tag}")
    def og_rd(j): return [f"v_accvgpr_read_b32 v{32 + 16*(j%2) + r}, a{A_O + 16*j + r}" for r in range(16)] if j < 2 * nq else []
    def og_mul(j):
        tb = 32 + 16 * (j % 2); rc = RC[j // 2]
        return [f"v_pk_mul_f32 v[{tb+r}:{tb+r+1}], v[{tb+r}:{tb+r+1}], v[{rc}:{rc+1}] op_sel_hi:[1,0]" for r in range(0, 16, 2)]
    def og_cvt(k, d):
        tb = 32 + 8 * (k % 4)
        return [f"v_cvt_pk_bf16_f32 v{d+r}, v{tb+2*r}, v{tb+2*r+1}" for r in range(4)]
    def steps(store):
        body = []
        for st in range(4):
            if Opt.trace and not w3: body += TRACE
            if not store and not w3:
                if st == 2: body.append("s_waitcnt vmcnt(0)")
                if st == 3: body.append("@EV@:")
            body += attn_step(nq, st, store)
        for e in hazard.check(body + body, f"a{tag}")[:10]: print(e)
        return body
    a.label(f"L_t1{tag}")
    mv = [f"v_mov_b64 v[{QTOP+r}:{QTOP+r+1}], v[{QLO+r}:{QLO+r+1}]" for r in range(0, nq * 16, 2)]
    sc = [f"s_mov_b32 s{sHEAD}, 1", f"s_mov_b32 s{sLAST}, 1", f"s_mov_b32 s{sREDO}, 0", f"s_mov_b32 s{sCNT}, 8"]
    EV1 = 8 - max(cnts[:3])
    if not w3: sc += [f"s_cmp_eq_u32 s{sWAVE}, 0\ns_cselect_b32 s{sEV}, {EV1}, -1"]
    sc += [f"v_add_u32 v1, 8192, v{VOD}"]
    pre = [f"buffer_load_dwordx4 {fa(st, nu)}, v{1 if st else VOD}, s[4:7], s{sPR + nu//2} offen offset:{(nu%2)*1024}{Opt.ld_wo}" for st in range(2) for nu in range(8)]
    def wr(k): return [f"ds_write_b128 v{VSW}, {vq(QLO + 4*(k%4))} offset:{k*1024}"] if k >= 0 else []
    t1 = k4_reads(nq, "a", A_V) + shadow(mv + sc + ["s_waitcnt lgkmcnt(0)"], zero_L(nq) + [zero16(0), zero16(16)])
    mp = k4_mf(nq, "a", A_V)
    n = 2 * nq
    for j in range(n):
        if j: t1 += og_mul(j)
        ld = share(pre, n - 1, j) if j < n - 1 else []
        pl = wr(2*j - 2) + og_cvt(2*j, QLO + 8*(j%2)) + wr(2*j - 1) + og_cvt(2*j + 1, QLO + 8*(j%2) + 4) + ld[:1] + og_rd(j + 1)[:8 if j else 0] + ld[1:] + og_rd(j + 1)[8:16 if j else 0]
        if j == n - 1: pl += k4_max(nq)[:n] + wr(2*j) + wr(2*j + 1) + k4_max(nq)[n:]
        t1 += shadow(pl, ([zero16(16 * j)] if j > 1 else []) + (share(mp, n - 2, j) if j < n - 2 else []))
    t1 = waits.insert_lgkm("\n".join(t1).split("\n"), loop=False)
    t1 = "\n".join(t1).split("\n")
    for l in fix_hazards(t1): a(l)
    pstamp(a, 5); pstamp(a, 6)
    a("; noalign")
    if not w3 or cnts[3]:
        a.label(f"L_loopS{tag}")
        bodyS = steps(1)
        for e in hazard.check(t1[-26:] + bodyS, f"t1{tag}")[:10]: print(e)
        for l in bodyS: a(l)
        a(f"s_sub_u32 s{sCNT}, s{sCNT}, 1\ns_cmp_lg_u32 s{sCNT}, s{sSX}\ns_cbranch_scc1 L_loopS{tag}")
    a.label(f"L_loop{tag}")
    body = steps(0)
    for e in hazard.check(cv[-26:] + body, f"t0{tag}")[:10] + hazard.check(t1[-26:] + body, f"t1{tag}")[:10]: print(e)
    for l in body:
        if l == "@EV@:":
            a(f"s_cmp_eq_u32 s{sCNT}, s{sEV}\ns_cbranch_scc1 L_ev{tag}"); a.label(f"L_evr{tag}")
        else: a(l)
    if w3:
        a(f"s_sub_u32 s{sCNT}, s{sCNT}, 1\ns_cmp_lg_u32 s{sCNT}, s{sLAST}\ns_cbranch_scc1 L_loop{tag}\ns_cmp_eq_u32 s{sLAST}, 0\ns_cbranch_scc1 L_ep{tag}")
        bodyL = steps(2)
        for e in hazard.check(body[-26:] + bodyL, "bl")[:10]: print(e)
        for l in bodyL: a(l)
        a("s_nop 1")
        a.label(f"L_ep{tag}")
    else: a(f"s_sub_u32 s{sCNT}, s{sCNT}, 1\ns_cmp_lg_u32 s{sCNT}, 0\ns_cbranch_scc1 L_loop{tag}")
    a("; align")
    if Opt.stamps:
        a(f"s_cmp_eq_u32 s{sHEAD}, 1\ns_cbranch_scc1 L_ps{tag}")
        pstamp(a, 4)
        a.label(f"L_ps{tag}")
        pstamp(a, 7)
    ep = [f"s_lshl_b32 s{sT0}, s{sHEAD}, 2", f"s_add_u32 s{sT0}, s{sT0}, {FLAG}", f"v_mov_b32 v1, s{sT0}", "v_mov_b32 v2, 1"]
    ep += [f"v_accvgpr_read_b32 v{32+r}, a{A_L+r}" for r in range(8 if w3 else 12)]
    ep += [f"v_add_f32 v{RC[i]}, v{32+2*i}, v{33+2*i}" for i in range(nq)]
    ep += [f"v_add_f32 v3, v{RC[0]}, v{RC[1]}", f"v_add_f32 v32, v{RC[2]}, v{RC[3]}"]
    if not w3: ep += ["v_add_f32 v42, v42, v43", f"v_add_f32 v{RC[4]}, v{RC[4]}, v42", f"v_add_f32 v3, v3, v{RC[4]}"]
    ep += ["v_add_f32 v3, v3, v32", f"v_cmp_ngt_f32 vcc, s{sTHR}, v3"]
    ep += [f"v_rcp_f32 v{RC[i]}, v{RC[i]}" for i in range(nq)]
    ep = fix_hazards(ep, body[-26:])
    if w3:
        for e in hazard.check(bodyL[-26:] + ["s_nop 1"] + ep, "ble")[:10]: print(e)
    for l in ep: a(l)
    a(f"s_cbranch_vccnz L_ovf{tag}")
    a.label(f"L_nof{tag}")
    if not w3:
        a(f"s_cmp_eq_u32 s{sEV}, 0\ns_cbranch_scc1 L_evw"); a.label("L_evwr")
    a("s_waitcnt lgkmcnt(0)\ns_barrier\nds_read_b32 v3, v1")
    ep = og_rd(0) + og_mul(0) + og_rd(1)[:12] + ["s_waitcnt lgkmcnt(0)", f"v_readfirstlane_b32 s{sT0}, v3"] + og_rd(1)[12:]
    for l in fix_hazards(ep): a(l)
    a(f"s_andn2_b32 s{sT0}, s{sT0}, s{sREDO}\ns_cmp_lg_u32 s{sT0}, 0\ns_cbranch_scc1 L_redo{tag}")
    a(f"s_cmp_eq_u32 s{sHEAD}, 0\ns_cbranch_scc1 L_t1{tag}")
    e1 = op_setup() + [f"s_add_u32 s{sOT+i}, s{sOOFF}, {i*TS + 4096}" if i < nq else f"s_mov_b32 s{sOT+i}, {FLW}" for i in range(5)]
    rest = []
    ne = min(4 * nq, Opt.ne)
    for k in range(4 * nq):
        if k % 2 == 0 and k: rest += (og_rd(k // 2) if k > 2 else []) + og_mul(k // 2)
        rest += og_cvt(k, o_reg(k)) + ([st_o(k)] if k < ne else [])
    e1 += weave(rest, op_loads0(), Opt.ldgap if not w3 else Opt.ldgap * 4 // 5)
    E1[nq] = list(e1)
    if Opt.trace and not w3:
        e1 += [f"s_lshl_b32 s{sT0}, s2, 9", f"s_add_u32 s{sT0}, s{sT0}, {STAMP_OFF + 131072}", "v_lshlrev_b32 v1, 2, v0", f"v_add_u32 v1, s{sT0}, v1",
               "v_cmp_gt_u32 vcc, 64, v0", "s_nop 4", "s_mov_b64 exec, vcc", "s_cbranch_execz L_tr",
               f"global_store_dword v1, v73, s[{sWS}:{sWS+1}]", f"global_store_dword v1, v75, s[{sWS}:{sWS+1}] offset:256", "L_tr:", "s_mov_b64 exec, -1"]
    for l in fix_hazards(e1): a(l)
    pstamp(a, 8)
    a("s_branch L_op")
    a.label(f"L_ovf{tag}")
    a(f"ds_write_b32 v1, v2\ns_branch L_nof{tag}")
    if not w3:
        a.label(f"L_ev{tag}")
        a(f"s_cmp_eq_u32 s{sHEAD}, 1\ns_cbranch_scc1 L_evh")
        a(f"s_cmp_eq_u32 s{sEV}, 2\ns_cbranch_scc1 L_ev2\ns_cmp_eq_u32 s{sEV}, 1\ns_cbranch_scc1 L_ev1")
        signal(a, 0)
        a(f"s_mov_b32 s{sEV}, 2\ns_branch L_evr{tag}")
        a.label("L_ev2")
        poll_issue(a, 0)
        a(f"s_mov_b32 s{sEV}, 1\ns_branch L_evr{tag}")
        a.label("L_ev1")
        a(f"s_mov_b32 s{sEV}, -1")
        poll_wait(a, 0, "L_pw0", f"L_evr{tag}")
        a.label("L_evh")
        if EV1 != 1: a(f"s_cmp_eq_u32 s{sEV}, 1\ns_cbranch_scc1 L_evp")
        signal(a, 1)
        if EV1 != 1: a(f"s_mov_b32 s{sEV}, 1\ns_branch L_evr{tag}")
        a.label("L_evp")
        poll_issue(a, 1)
        a(f"s_mov_b32 s{sEV}, 0\ns_branch L_evr{tag}")
        a.label("L_evw")
        a(f"s_mov_b32 s{sEV}, -1")
        poll_wait(a, 1, "L_pw1", "L_evwr")
    a.label(f"L_redo{tag}")
    a(f"s_mov_b32 s{sREDO}, 1\ns_waitcnt vmcnt(0) lgkmcnt(0)\ns_barrier")
    for l in kv_switch(): a(l)
    a(f"s_lshl_b32 s{sRAW}, s{sHEAD}, 18")
    rp = doff_update()
    if w3:
        for sl in range(4): rp += flat(ring_dma(sl, "0x2000")) + ["s_waitcnt vmcnt(16)"]
    for l in fix_hazards(rp): a(l)
    a("v_and_b32 v1, 15, v0\nv_lshlrev_b32 v1, 8, v1\nv_and_b32 v2, 48, v0\nv_add_u32 v1, v1, v2")
    a(f"s_lshl_b32 s{sT0}, s{sHEAD}, 18\ns_mov_b32 s{sCNT}, 64")
    for i in range(nq): a(f"v_mov_b32 v{NM0+i}, 0xff800000")
    a.label(f"L_rl{tag}")
    rb = [f"buffer_load_dwordx4 a[{A_K+4*s}:{A_K+4*s+3}], v1, s[12:15], s{sT0} offen offset:{s*64}" for s in range(4)]
    rb += ["s_waitcnt vmcnt(0)"] + maxpass_mf(nq, QTOP) + ["s_nop 7"]
    for i in range(nq):
        b = PT(i)
        rb += [f"v_max3_f32 v{NM0+i}, v{NM0+i}, v{b}, v{b+1}", f"v_max3_f32 v{NM0+i}, v{NM0+i}, v{b+2}, v{b+3}"]
    rb.append(f"s_add_u32 s{sT0}, s{sT0}, 0x1000")
    for l in fix_hazards(rb): a(l)
    a(f"s_sub_u32 s{sCNT}, s{sCNT}, 1\ns_cmp_lg_u32 s{sCNT}, 0\ns_cbranch_scc1 L_rl{tag}")
    rb = [f"v_mov_b32 v{PT(i)}, v{NM0+i}" for i in range(nq)] + max_finish(nq) + [zero16(b) for b in range(0, 32 * nq, 16)] + zero_L(nq)
    rb += ["s_waitcnt vmcnt(0)", "s_barrier"] + k_reads(0) + [f"s_mov_b32 s{sCNT}, 8", "s_nop 7"]
    for l in fix_hazards(rb): a(l)
    a(f"s_branch L_loop{tag}")

def first_loads():
    def w(item, off):
        return [(f"s_add_u32 m0, s99, {item*16384}\ns_add_u32 s98, s100, {off}\n" if j == 0 else "") +
                f"buffer_load_dwordx4 v{VDA+j}, s[12:15], s98 offen offset:{j*1024}{Opt.nt_kv} lds ; tag=R:{item}" for j in range(4)]
    def x(b): return [t.replace(f"s{sT0}", "s98") for t, c in x_dma(5, b, b)]
    return w(0, 0) + x(0) + w(1, 256) + w(2, 0x80000) + x(1)

def late_setup():
    L = [f"s_add_u32 s{sWS}, s{sWS}, {Opt.wsb << 20}", f"s_addc_u32 s{sWS+1}, s{sWS+1}, 0"] if Opt.wsb else []
    assert (Opt.wsb << 20) + FLW + 4096 <= WS_BYTES and not (Opt.wsb and Opt.stamps and not Opt.dbg)
    for s in range(4):
        L += [f"v_or_b32 v2, {4*s}, v31", "v_xor_b32 v2, v2, v30", "v_lshlrev_b32 v2, 4, v2", f"v_lshl_add_u32 v{VKA+s}, v30, 8, v2"]
    L += ["v_lshrrev_b32 v2, 2, v30", "v_lshl_add_u32 v2, v31, 2, v2", "v_and_b32 v3, 7, v2", "v_lshlrev_b32 v2, 8, v2", "v_and_b32 v1, 3, v30", "v_lshl_add_u32 v2, v1, 3, v2"]
    for dt in range(8): L += [f"v_xor_b32 v1, {dt}, v3", f"v_lshl_add_u32 v{VVA+dt}, v1, 5, v2"]
    L += ["v_lshrrev_b32 v1, 4, v0", "v_xnor_b32 v1, v1, v0", "v_bfe_i32 v1, v1, 1, 1", "v_and_b32 v1, 0x3f803f80, v1"] + [f"v_accvgpr_write_b32 a{A_ONES+r}, v1" for r in range(4)]
    L += ["v_lshrrev_b32 v3, 1, v30", "v_xor_b32 v3, v3, v31"]
    for kk in range(2):
        L += [f"v_xor_b32 v2, {4*kk}, v3", "v_lshlrev_b32 v2, 4, v2", "v_lshl_add_u32 v2, v30, 7, v2", f"v_add_u32 v{VXA+kk}, s{sM0X}, v2"]
    L += [f"s_lshl_b32 s{sT0}, s{sB1}, 5", f"s_add_u32 s{sT0}, s{sT0}, s{sH0}", f"s_lshl_b32 s{sT0}, s{sT0}, 18",
          f"s_add_u32 s24, s86, s{sT0}", "s_addc_u32 s25, s87, 0", f"s_add_u32 s28, s88, s{sT0}", "s_addc_u32 s29, s89, 0",
          f"s_mov_b32 s20, s{sWS}", f"s_mov_b32 s21, s{sWS+1}", f"s_mov_b32 s22, {FLW}", "s_mov_b32 s23, 0x20000",
          f"s_lshl_b32 s{sT0}, s{sBR}, 3", f"s_add_u32 s{sT0}, s{sT0}, s{sB1}", f"s_mul_i32 s{sT0}, s{sT0}, {19*TS}",
          f"s_mul_i32 s{sOOFF}, s{sWAVE}, {5*TS}", f"s_add_u32 s{sOOFF}, s{sOOFF}, s{sT0}", f"s_add_u32 s{sOOFF}, s{sOOFF}, {PAD}", f"s_lshl_b32 s{sT0}, s{sH0}, 12", f"s_add_u32 s{sOOFF}, s{sOOFF}, s{sT0}",
          f"s_mov_b32 s{sSC}, {f2u(SCALE):#x}", f"s_mov_b32 s{sSC+1}, {f2u(SCALE):#x}", f"s_mov_b32 s{sTHR}, {f2u(2.0**Opt.thr):#x}", "s_mov_b32 s7, 0x20000",
          f"s_and_b32 s{sB2}, s2, 3", f"s_lshl_b32 s{sB2}, s{sB2}, 1", f"s_lshr_b32 s{sT0}, s2, 7", f"s_add_u32 s{sB2}, s{sB2}, s{sT0}",
          f"s_bfe_u32 s{sQG}, s2, 0x20005", f"s_bfe_u32 s{sN4}, s2, 0x20003",
          f"s_movk_i32 s{sINC0}, 256", f"s_mov_b32 s{sINC1}, {524288-256}", f"s_mov_b32 s{sG1}, 0x20000", f"s_mov_b32 s{sG2}, 0x40000", f"s_mov_b32 s{sG3}, 0x60000",
          "s_mov_b32 s16, s12", "s_mov_b32 s17, s13", "s_mov_b32 s18, s14", "s_mov_b32 s19, 0x20000",
          f"s_mov_b32 s{sRAW}, 0x80100", f"s_mov_b32 s{sDOFF}, 0x80100", f"s_mov_b32 s{sMH}, -1", f"s_mov_b32 s{sML}, 0"]
    L += [f"s_lshl_b32 s{sT0}, s{sB1}, 4", f"s_lshr_b32 s{sT1}, s{sH0}, 1", f"s_add_u32 s{sT1}, s{sT0}, s{sT1}", f"s_and_b32 s{sT0}, s{sT1}, 3",
          f"s_mul_i32 s{sHW}, s{sT0}, {WN}", f"s_lshl_b32 s{sHO}, s{sT0}, 8", f"s_lshr_b32 s{sT1}, s{sT1}, 2", f"s_lshl_b32 s{sT1}, s{sT1}, 1", f"s_and_b32 s{sT0}, s{sWAVE}, 1",
          f"s_add_u32 s{sT1}, s{sT1}, s{sT0}", f"s_lshl_b32 s{sT0}, s{sT1}, 14", f"s_add_u32 s{sHW}, s{sHW}, s{sT0}", f"s_lshl_b32 s{sT1}, s{sT1}, 16",
          f"s_add_u32 s{sHO}, s{sHO}, s{sT1}", f"s_add_u32 s6, s{sT1}, 0x10000", f"s_mov_b32 s4, s{sWO}", f"s_mov_b32 s5, s{sWO+1}",
          f"s_lshr_b32 s{sT0}, s{sWAVE}, 1", f"s_lshl_b32 s{sT1}, s{sT0}, 7", f"s_add_u32 s{sHO}, s{sHO}, s{sT1}", f"s_lshl_b32 s{sT1}, s{sT0}, 12", f"s_add_u32 s{sHW}, s{sHW}, s{sT1}",
          f"s_mul_i32 s{sWB}, s{sBR}, {4*WN}", f"s_add_u32 s{sWB}, s{sWB}, {WOP + PAD}", f"s_add_u32 s{sHW}, s{sHW}, s{sWB}",
          f"s_mul_i32 s{sT0}, s{sN4}, {WN}", f"s_add_u32 s{sWB}, s{sWB}, s{sT0}", f"s_and_b32 s{sT0}, s{sQG}, 1", f"s_lshl_b32 s{sT0}, s{sT0}, 19", f"s_add_u32 s{sWB}, s{sWB}, s{sT0}"]
    t0s, stride, cnts = SM()
    L += [f"s_mul_i32 s{sT0}, s{sWAVE}, {(5 - t0s[1])*TS}", f"s_sub_u32 s{sSO}, s{sOOFF}, s{sT0}", f"s_add_u32 s{sT0}, s{sOOFF}, {(t0s[3] - 15)*TS}",
          f"s_mul_i32 s96, s{sWAVE}, {XW}", f"s_add_u32 s96, s96, {XB}", f"s_mul_i32 s97, s{sWAVE}, {t0s[1]*4096}", f"s_add_u32 s97, s97, {XB}",
          f"s_cmp_eq_u32 s{sWAVE}, 3", f"s_cselect_b32 s97, {XB + t0s[3]*4096}, s97", f"s_cselect_b32 s{sSO}, s{sT0}, s{sSO}", f"s_cselect_b32 s{sSX}, {8 - cnts[3]}, {8 - cnts[1]}",
          f"s_cmp_eq_u32 s{sWAVE}, 0", f"s_cselect_b32 s{sSX}, {8 - cnts[0]}, s{sSX}", f"s_cselect_b32 s{sEV}, 4, -1",
          f"s_mov_b32 s{sHEAD}, 0", f"s_mov_b32 s{sREDO}, 0", f"s_mov_b32 s{sLAST}, 0", f"s_lshl_b32 s{sT1}, s{sWAVE}, 16"]
    L += [f"s_lshl_b32 s55, s{sBR}, 3", f"s_add_u32 s55, s55, s{sB2}", f"s_mul_i32 s55, s55, {19*TS}"] + [f"v_accvgpr_write_b32 a{252+r}, -1" for r in range(4)]
    for p in range(4): L += [f"s_add_u32 s{sT0}, s{sWAVE}, {p+1}", f"s_and_b32 s{sT0}, s{sT0}, 3", f"s_lshl_b32 s{sT0}, s{sT0}, 11", f"s_add_u32 s{sPR+p}, s{sT0}, s{sT1}"]
    if Opt.rot: L += [f"s_lshr_b32 s{sROT}, s2, 5", f"s_xor_b32 s{sROT}, s{sROT}, s2", f"s_and_b32 s{sROT}, s{sROT}, 31", f"s_lshl_b32 s{sROT}, s{sROT}, 13"]
    else: L += [f"s_mov_b32 s{sROT}, 0"]
    return L

def kernel():
    a = Asm()
    a("s_cmp_ge_u32 s2, 256\ns_cbranch_scc1 L_end")
    a("s_load_dwordx8 s[84:91], s[0:1], 0\ns_load_dwordx2 s[92:93], s[0:1], 32\ns_load_dwordx8 s[40:47], s[0:1], 40\ns_load_dwordx2 s[94:95], s[0:1], 72")
    a(f"s_load_dwordx2 s[{sOUT}:{sOUT+1}], s[0:1], 80\ns_load_dwordx2 s[{sDBG}:{sDBG+1}], s[0:1], 88\ns_load_dwordx2 s[{sWS}:{sWS+1}], s[0:1], 96")
    pstamp(a, 0)
    a(f"v_lshrrev_b32 v2, 6, v0\nv_and_b32 v1, 63, v0\nv_readfirstlane_b32 s{sWAVE}, v2")
    if Opt.code_pf:
        a("s_getpc_b64 s[96:97]\ns_bfe_u32 s48, s2, 0x20003\ns_lshl_b32 s48, s48, 15\nv_lshlrev_b32 v3, 7, v0\nv_add_u32 v3, s48, v3")
        a("v_min_u32 v3, CODE_SIZE, v3\nglobal_load_dword a240, v3, s[96:97]")
    a(f"s_bfe_u32 s{sBR}, s2, 0x10002\ns_lshr_b32 s{sB1}, s2, 5\ns_and_b32 s{sH0}, s2, 3\ns_lshl_b32 s{sH0}, s{sH0}, 3")
    a(f"s_bfe_u32 s{sT0}, s2, 0x20003\ns_lshl_b32 s{sT0}, s{sT0}, 1\ns_add_u32 s{sH0}, s{sH0}, s{sT0}")
    a("v_and_b32 v30, 15, v1\nv_lshrrev_b32 v31, 4, v1")
    a("v_and_b32 v33, 7, v1\nv_xor_b32 v33, v33, v31\nv_lshrrev_b32 v34, 3, v1")
    for jj in range(4):
        a(f"v_xor_b32 v32, {4*(jj%2)}, v33\nv_lshlrev_b32 v32, 4, v32\nv_lshl_add_u32 v32, v34, 10, v32\nv_add_u32 v{VXD+jj}, {jj*8192 - jj*1024}, v32")
    a("v_lshrrev_b32 v2, 1, v30\nv_xor_b32 v2, v2, v31\nv_and_b32 v3, 1, v30\nv_lshlrev_b32 v3, 4, v3\nv_lshl_add_u32 v3, v31, 13, v3")
    for j in range(4):
        a(f"v_xor_b32 v32, {(j>>1)<<2}, v2\nv_lshl_add_u32 v32, v32, 5, v3\nv_add_u32 v{VDA+j}, {j*32768 - j*1024}, v32")
    a(f"s_mul_i32 s{sM0X}, s{sWAVE}, 10240\ns_add_u32 s{sM0X}, s{sM0X}, {XB}\ns_mul_i32 s{sXOFF}, s{sWAVE}, {80*1024}")
    a(f"s_mov_b32 s10, 311296\ns_mov_b32 s11, 0x20000\ns_mov_b32 s15, 0x20000\ns_lshl_b32 s99, s{sWAVE}, 12\ns_lshl_b32 s100, s{sWAVE}, 17")
    a(f"s_mul_i32 s{sT0}, s{sB1}, 311296\ns_lshl_b32 s{sT1}, s{sH0}, 8\ns_sub_u32 s14, 0x400000, s{sT1}")
    a(f"s_waitcnt lgkmcnt(0)\ns_cmp_eq_u32 s{sBR}, 1")
    pstamp(a, 1, True)
    for r in range(8): a(f"s_cselect_b32 s{84+r}, s{40+r}, s{84+r}")
    a(f"s_cselect_b32 s{sWO}, s94, s92\ns_cselect_b32 s{sWO+1}, s95, s93")
    a(f"s_add_u32 s8, s84, s{sT0}\ns_addc_u32 s9, s85, 0\ns_add_u32 s12, s90, s{sT1}\ns_addc_u32 s13, s91, 0")
    if Opt.stamps: stamp_start(a, 40)
    zs = [f"{MF32} v[{r}:{r+15}], {ZQ}, {ZQ}, 0" for r in range(240, 31, -16)] + [zero16(16 * k) for k in range(6)] + zero_L(5)
    ls = []
    for l in late_setup():
        if l.startswith(("s_addc", "s_cselect")): ls[-1] += "\n" + l
        else: ls.append(l)
    fl = first_loads()[:Opt.nfl]
    sh = fl[:2] + weave([f"v_accvgpr_write_b32 a{A_Z+r}, 0" for r in range(4)] + weave(ls, zs, 4), fl[2:], Opt.fgap)
    for l in fix_hazards("\n".join(sh).split("\n")): a(l)
    pstamp(a, 3, True)
    a(f"s_cmp_eq_u32 s{sWAVE}, 3\ns_cbranch_scc1 L_var4")
    variant(a, 5, "5")
    a.label("L_var4")
    variant(a, 4, "4")
    side_code = oproj(a)
    a.label("L_fin")
    if Opt.stamps:
        a("s_waitcnt vmcnt(0)\ns_barrier")
        pstamp(a, 14)
        if Opt.dbg:
            a("s_memrealtime s[44:45]\ns_waitcnt lgkmcnt(0)\ns_sub_u32 s44, s44, s40\nv_mov_b32 v1, 0\ns_cmp_lg_u32 s3, 0\ns_cbranch_scc1 L_end\ns_mov_b64 exec, 1")
            for j, (k0, k1) in enumerate([(0, 1), (1, 3), (3, 4), (6, 7), (7, 8), (8, 14), (0, 14)]):
                a(f"s_sub_u32 s48, s{72+2*k1}, s{72+2*k0}\nv_mov_b32 v2, s48\nglobal_atomic_add v1, v2, s[{sDBG}:{sDBG+1}] offset:{4*j} sc1\nglobal_atomic_umax v1, v2, s[{sDBG}:{sDBG+1}] offset:{32+4*j} sc1\ns_nop 1")
            a(f"v_mov_b32 v2, s44\nglobal_atomic_add v1, v2, s[{sDBG}:{sDBG+1}] offset:28 sc1\nglobal_atomic_umax v1, v2, s[{sDBG}:{sDBG+1}] offset:60 sc1\ns_endpgm")
        stamp_end(a, 40, sWS, 32, 0, 2, 48)
        pdump(a, sWS, 15, 2)
    a.label("L_end")
    a("s_endpgm")
    side_code()
    return a.text()

HDR = open("cdna_kernels/" + NAME + ".s.ref").read().split("; Override launch")[0]

def build(fname):
    k = NAME + "_kernel"
    txt = HDR + f"; @launch grid=(256,1,1) block=(256,1,1) lds={LDS1}\n" + '.amdgcn_target "amdgcn-amd-amdhsa--gfx950"\n.text\n'
    txt += kernel_open(k)
    post = f"L_code_end:\n.set CODE_SIZE, L_code_end - {k} - 256\n"
    body = kernel().rstrip("\n").split("\n")
    if Opt.al:
        body, nn, ne = align.align(txt, body, post)
    txt += "\n".join(body) + "\n" + post
    txt += '.section .rodata,"a"\n' + kernel_desc(k, 512, 256)
    open(fname, "w").write(txt)

if __name__ == "__main__":
    out = sys.argv[1] if len(sys.argv) > 1 else "cdna_kernels/" + NAME + ".s"
    for kv in sys.argv[2:]:
        k, v = kv.split("=")
        cur = getattr(Opt, k)
        if isinstance(cur, bool): v = v == "1"
        elif isinstance(cur, int): v = int(v)
        else: v = (" " + v.replace("+", " ")) if v else ""
        setattr(Opt, k, v)
    build(out)
```

```python
import sys, math, struct, re
sys.path.insert(0, "tools")
from asmlib import *
from sched import *
import hazard, waits, align

def f2u(x): return struct.unpack("<I", struct.pack("<f", x))[0]
SCALE = math.log2(math.e) / math.sqrt(128.0)

class Opt:
    stamps = False
    clk = False
    trace = False
    nt_kv = " nt"
    nt_x = " nt"
    st_o = " sc1"
    ld_o = " sc1"
    ld_wo = " sc1"
    st_out = ""
    delay = 4
    ldscost = 8
    al = True
    rot = 1
    code_pf = True
    thr = 32
    ldgap = 8
    sm = 1
    spos = 0
    se = False
    dbg = False
    st = False
    ev0 = 4
    ev1 = 2
    lag = 1
    wsb = 0
    qord = 0
    ne = 12
    sig = 150
    plead = 100
    lgap = 3
    dt = 3
    b1 = 10
    b3 = 12
    xf = 70
    xp = 105
    xl = 150
    hold = 2
    sord = 0
    fgap = 6
    nfl = 26
    pre_x = 0

def vq(b): return f"v[{b}:{b+3}]"
def aq(b): return f"a[{b}:{b+3}]"
MF = "v_mfma_f32_16x16x32_bf16"
MF32 = "v_mfma_f32_32x32x16_bf16"

def pstamp(a, k, early=False, tail=False):
    if 9 <= k <= 13 and tail != Opt.st: return
    if Opt.se and k == 1 and not early: k = 5
    elif Opt.se and 1 <= k <= 5 and not early: return
    if early and not Opt.se: return
    if Opt.stamps: a(f"{'s_memtime' if Opt.clk else 's_memrealtime'} s[{72+2*k}:{73+2*k}]")
def pdump(a, ws, n, rec):
    a("s_waitcnt lgkmcnt(0)")
    for k in range(16): a(f"v_mov_b32 v{32+k}, s{72+2*min(k, n-1)}")
    a(f"s_lshl_b32 s48, s{rec}, 6\ns_add_u32 s48, s48, {STAMP_OFF + 65536}\nv_mov_b32 v48, s48")
    a("v_cmp_eq_u32 vcc, 0, v0\ns_and_saveexec_b64 s[46:47], vcc")
    a(f"s_cbranch_execz L_pd")
    for k in range(4): a(f"global_store_dwordx4 v48, v[{32+4*k}:{35+4*k}], s[{ws}:{ws+1}] offset:{16*k}")
    a("s_waitcnt vmcnt(0)")
    a.label("L_pd")
    a("s_mov_b64 exec, s[46:47]")

def fix_hazards(lines, prefix=()):
    out = list(prefix)
    npre = len(out)
    for l in lines:
        while True:
            win = out[-26:] + [l]
            new = hazard.check(win)[len(hazard.check(win[:-1])):]
            if not new: break
            need = max(int(m.group(1)) - int(m.group(2)) for m in (re.search(r"need (\d+) have (\d+)", e) for e in new))
            out.append(f"s_nop {need-1}")
        out.append(l)
    return out[npre:]

def flat(items):
    r = []
    for (t, c) in items: r += t.split("\n")
    return r

def spread(fl, items, lo, hi, prio):
    prev = None
    n = len(items)
    for k, (txt, cost) in enumerate(items):
        p = lo + (k * (hi - lo + 1)) // n
        nx = max(p, lo + ((k + 1) * (hi - lo + 1)) // n - 1)
        f = F(txt, cost, p, nx, deps=[prev] if prev else [], prio=prio + k, depgap=1 if (hi - lo + 1) >= n else 0)
        fl.append(f); prev = f

def weave(main, extra, every, start=0):
    out = []; extra = list(extra)
    for k, l in enumerate(main):
        out.append(l)
        if k >= start and (k - start) % every == every - 1 and extra: out.append(extra.pop(0))
    return out + extra

def share(items, n, k):
    return items[k * len(items) // n:(k + 1) * len(items) // n]

VKA, VVA, VDA, VDB, VXD, VXA = 4, 8, 16, 20, 24, 28
VPK, VPV = 240, 244
VOD, VSR, VSW = 24, 25, 27
def VRC(nq): return [26, 28, 30, 20, 22] if nq == 5 else [26, 28, 30, 72]
VPA, VPD = 29, 31
S0, P0, NM0, QLO, QTOP = 32, 56, 76, 96, 176
A_O, A_K, A_V, A_L, A_ONES, A_Z = 0, 160, 192, 224, 244, 248
A_X, A_W = 96, 176
XB, XBUF = 65536, 40960
XW = 20480
FLAG = XB + 2 * XBUF
LDS1 = FLAG + 64
sWAVE = 3
sDOFF, sINC0, sINC1, sXOFF, sM0X, sCNT, sHEAD, sREDO, sLAST, sEV = 30, 31, 32, 33, 34, 35, 36, 37, 26, 27
sSC = 38
sT0, sT1, sOOFF, sTHR = 48, 49, 50, 51
sG1, sG2, sG3 = 52, 53, 54
sDBG, sOUT, sWS = 56, 58, 60
sBR, sB1, sH0, sB2, sQG, sN4 = 62, 63, 64, 65, 66, 67
sWO = 68
sHO, sHW = 70, 71
sRAW, sROT, sMH, sML = 0, 1, 44, 45
sSO, sSX, sWB = 68, 69, 46
PAD = 256
TS, WN = 131072 + PAD, 0x100000 + PAD
WOP = (2 * 8 * 19 + 2) * TS
XCH = WOP + 8 * WN + PAD
FLW = XCH + 256 * 20480
FLX = FLW + 4096
def SM(): return [((0, 1, 2, 0), 3, (7, 6, 6, 0)), ((0, 5, 10, 15), 1, (5, 5, 5, 4)), ((0, 1, 2, 18), 3, (6, 6, 6, 1))][Opt.sm]
def VWR(nq): return (2, 3) if nq == 5 else (252, 253)
def VWA(nq): return 20 if nq == 5 else 248

def O(i, dt): return aq(A_O + (i * 8 + dt) * 4)
def Q(i, s, base=QTOP): return vq(base + (i * 4 + s) * 4)
def Sreg(i, t): return S0 + (i % 3) * 8 + t * 4
def PT(i, slot=0): return P0 + 4 * i if i < 4 else 16 + 4 * (slot % 2)
VIX = 74
def VKB(nq): return 72 if nq == 5 else 92
ZQ = aq(A_Z)

def acc_loc(eta, i, s):
    fi = i * 4 + s
    if eta == 0: return ("v", 32 + 8 * (8 + fi))
    if fi >= 12: return ("v", 32 + 8 * (fi - 12))
    return ("a", 8 * fi)
def acc(eta, i, nt):
    f, b = acc_loc(eta, i, nt // 2)
    b += (nt % 2) * 4
    return f"{f}[{b}:{b+3}]"

def doff_update():
    return [f"s_add_u32 s{sT1}, s{sRAW}, s{sROT}", f"s_and_b32 s{sT1}, s{sT1}, s{sML}", f"s_and_b32 s{sDOFF}, s{sRAW}, s{sMH}", f"s_or_b32 s{sDOFF}, s{sDOFF}, s{sT1}"]
def ring_dma(slot, inc, tag=0):
    res = []
    for g in range(4):
        srd = "s[12:15]" if g < 2 else "s[16:19]"
        vb = VDA if g < 2 else VDB
        for j in range(4):
            t = ""; c = 4
            so = f"s{sDOFF}" if g == 0 else f"s{sT1}"
            if j == 0:
                t = f"s_mov_b32 m0, {slot*16384 + g*4096}\n"
                t += f"s_add_u32 s{sT1}, s{sDOFF}, s{sG1 + g - 1}\n" if g else f"s_add_u32 s{sRAW}, s{sRAW}, {inc}\n"
                c = 8
            t += f"buffer_load_dwordx4 v{vb+j}, {srd}, {so} offen offset:{j*1024}{Opt.nt_kv} lds ; tag=R:{tag}"
            res.append((t, c))
    res.append(("\n".join(doff_update()), 8))
    return res

def x_dma(nq, buf, tag, js=None):
    res = []
    js = list(range(2 * nq)) if js is None else js
    for j in js:
        G, jj = j // 4, j % 4
        t = ""; c = 4
        if jj == 0 or j == js[0]:
            t = f"s_add_u32 m0, s{sM0X}, {buf*XBUF + G*4096}\ns_add_u32 s{sT0}, s{sXOFF}, {G*32768}\n"; c = 8
        t += f"buffer_load_dwordx4 v{VXD+jj}, s[8:11], s{sT0} offen offset:{jj*1024}{Opt.nt_x} lds ; tag=X:{tag}"
        if j == 2 * nq - 1:
            t += f"\ns_add_u32 s{sXOFF}, s{sXOFF}, 128"; c = 8
        res.append((t, c))
    return res

def wo_reads(nq):
    return [f"ds_read_b64_tr_b16 a[{A_V + f*4 + t*2}:{A_V + f*4 + t*2 + 1}], v{VWR(nq)[(f//2)%2]} offset:{(f//4)*4096 + t*2048 + (f%2)*8}" for f in range(8) for t in range(2)]
def wo_stores():
    return [f"buffer_store_dwordx4 {aq(A_V + f*4)}, v{VOD}, s[20:23], s{sHW if f < 4 else sHO} offen offset:{(f%4)*1024}{Opt.st_o}" for f in range(8)]

def w_reads(nq, slot, nt):
    r = []
    for kk in range(2):
        for h in range(2):
            b = A_W + (nt % 4) * 8 + kk * 4 + h * 2
            r.append(f"ds_read_b64_tr_b16 a[{b}:{b+1}], v{VWA(nq) + nt//2} offset:{slot*16384 + kk*8192 + h*1024 + (nt%2)*8}")
    return r
def x_reads(nq, xset, buf):
    r = []
    for i in range(nq):
        for kk in range(2):
            b = A_X + xset * 40 + (i * 2 + kk) * 4
            r.append(f"ds_read_b128 a[{b}:{b+3}], v{VXA+kk} offset:{buf*XBUF + i*2048}")
    return r
def k_reads(slot):
    r = []
    for t in range(2):
        for s in range(4):
            b = A_K + (t * 4 + s) * 4
            r.append(f"ds_read_b128 a[{b}:{b+3}], v{VKA+s} offset:{slot*16384 + t*4096}")
    return r

def qproj_unit(nq, u):
    slot, eta, xset = u % 4, u % 2, (u // 2) % 2
    G = 2 * nq
    mf = []
    for nt in range(8):
        for j in range(2 * nq):
                i, kk = (j // 2, j % 2) if Opt.qord == 0 else (j % nq, j // nq)
                if Opt.qord == 2 and kk: i = nq - 1 - i
                c = acc(eta, i, nt)
                mf.append(f"{MF} {c}, {aq(A_W + (nt%4)*8 + kk*4)}, {aq(A_X + xset*40 + (i*2+kk)*4)}, {c}")
    n = len(mf)
    fl = []
    for nt in range(8):
        n2 = nt + 2
        rs = w_reads(nq, slot, n2) if n2 < 8 else w_reads(nq, (slot + 1) % 4, n2 - 8)
        for k, r in enumerate(rs):
            fl.append(F(r, 4, nt * G + 1, nt * G + 4, prio=k))
    pre = {}
    if eta == 1:
        pre[3 * G] = [f"s_waitcnt vmcnt(?X:{u//2 + 1})"]
        for k, r in enumerate(x_reads(nq, xset ^ 1, xset ^ 1)):
            fl.append(F(r, 4, 3 * G + 2, 5 * G + 3, prio=100 + k))
    items = x_dma(nq, xset, u // 2 + 2, list(range(eta * nq, eta * nq + nq)))
    if nq == 4:
        pre[6 * G] = [f"s_waitcnt vmcnt(?R:{u+1}) lgkmcnt(0)", "s_barrier"]
        items += ring_dma((slot - 1) % 4, f"s{sINC0 + (1 - eta)}", u + 3)
        spread(fl, items, 0, n - 1, 200)
    else:
        pre[6 * G] = ["s_waitcnt vmcnt(?R:1) lgkmcnt(0)" if u == 0 else "s_waitcnt lgkmcnt(0)", "s_barrier"]
        spread(fl, items, 3, 5 * G, 200)
    out, over = schedule(mf, fl, 8, pre)
    return out

def attn_step(nq, slot, store):
    nslot = (slot + 1) % 4
    w3 = nq == 4
    mf = []
    for i in range(nq):
        for j in range(8):
                t, s = (j // 4, j % 4) if Opt.sord == 0 else (j % 2, j // 2)
                d = vq(Sreg(i, t))
                c = vq(NM0 + i * 4) if s == 0 else d
                mf.append(f"{MF} {d}, {aq(A_K + (t*4+s)*4)}, {Q(i,s)}, {c}")
    nA = len(mf)
    first_pv = []
    for i in range(nq):
        first_pv.append(len(mf))
        for dt in range(8):
            mf.append(f"{MF} {O(i,dt)}, {aq(A_V + dt*4)}, {vq(PT(i, slot))}, {O(i,dt)}")
        if i % 2 or (i == 4 and slot % 2):
            b = PT(i & 6)
            mf.append(f"v_smfmac_f32_16x16x64_bf16 {aq(A_L + (i//2)*4)}, {aq(A_ONES)}, v[{b}:{b+7}], v{VIX}")
    n = len(mf)
    fl = []
    so = slot * 16384
    for dt in range(8):
        for t in range(2):
            b = A_V + dt * 4 + t * 2
            fl.append(F(f"ds_read_b64_tr_b16 a[{b}:{b+1}], v{VVA+dt} offset:{so + 8192 + t*4096}", 4, 0, 12, prio=dt))
    for i in range(nq):
        dl = first_pv[i]
        for t in range(2):
            dlc = dl - 3
            if i + 3 < nq: dlc = min(dlc, 8 * (i + 3) + (4 if Opt.sord == 0 else 1) * t - 1)
            es = []
            for r in range(4):
                v = Sreg(i, t) + r
                e = F(f"v_exp_f32 v{v}, v{v}", 8, i * 8 + (t * 4 + 3 if Opt.sord == 0 else 6 + t) + Opt.delay, dlc - 1, prio=i * 8 + t * 4 + r)
                es.append(e); fl.append(e)
            for h in range(2):
                v = Sreg(i, t) + 2 * h
                fl.append(F(f"v_cvt_pk_bf16_f32 v{PT(i, slot)+t*2+h}, v{v}, v{v+1}", 4, 0, dlc, deps=es[2*h:2*h+2], prio=i * 8 + t * 4 + 2*h + 1))
    for k, r in enumerate(k_reads(nslot)):
        fl.append(F(r, Opt.ldscost if (nq == 5 and not (store and slot == 0)) else 4, nA, n - 10, prio=500 + k))
    pre = {0: ["s_waitcnt lgkmcnt(0)"]}
    vmw = "vmcnt(32) " if w3 else ""
    if w3 and store == 2:
        def lin(lds, off, cnt):
            return [((f"s_mov_b32 m0, {lds + j*1024}\ns_mov_b32 s{sT1}, {off + j*1024}\n" if j % 4 == 0 else "") +
                     f"buffer_load_dwordx4 v{VOD}, s[4:7], s{sT1} offen offset:{(j%4)*1024}{Opt.ld_wo} lds", 8 if j % 4 == 0 else 4) for j in range(cnt)]
        nx = 8 * Opt.pre_x
        if nx: spread(fl, lin(XB + slot * XW, slot * 65536 + 0x40000, nx), 0, nA - 2, 550)
        spread(fl, lin(slot * 16384, slot * 65536 + 16384, 16), nA, n - 1, 600)
        vmw = f"vmcnt({min(63, 32 + nx * (slot + 1))}) " if slot < 3 else ""
    elif w3: spread(fl, ring_dma(slot, "0x2000"), nA, n - 1, 600)
    pre[nA] = [f"s_waitcnt {vmw}lgkmcnt(0)", "s_barrier"]
    if store == 1:
        stride = SM()[1]
        if slot == 0:
            rs = [F(f"ds_read_b128 {vq(QLO + 4*q)}, v{VSR} offset:{q*1024}", 4, nA + 2, n - 8, prio=700 + q) for q in range(4)]
            fl += rs + [F(f"v_add_u32 v{VSR}, {stride*4096}, v{VSR}", 4, 0, n - 1, deps=rs, prio=800)]
        qs = [{0: [], 1: [0, 1], 2: [2, 3], 3: []}, {0: [], 1: [0, 1], 2: [2], 3: [3]}][Opt.spos][slot]
        for k, q in enumerate(qs):
            pos = 14 + k * (n // 2)
            t = f"buffer_store_dwordx4 {vq(QLO + 4*q)}, v{VOD}, s[20:23], s{sSO} offen offset:{q*1024}{Opt.st_o}"
            fl.append(F(t + (f"\ns_add_u32 s{sSO}, s{sSO}, {stride*TS}" if q == 3 else ""), 4 + 4 * (q == 3), pos, pos + 12, prio=700 + k))
    out, over = schedule(mf, fl, 8, pre)
    return out

def maxpass_mf(nq, qbase):
    return [f"{MF} {vq(PT(i))}, {aq(A_K + s*4)}, {Q(i, s, qbase)}, {vq(PT(i)) if s else 0}" for i in range(nq) for s in range(4)]
def max_finish(nq):
    L = []
    for sw in ("v_permlane32_swap_b32", "v_permlane16_swap_b32"):
        for i in range(nq): L.append(f"v_mov_b32 v{PT(i)+1}, v{PT(i)}")
        for i in range(nq): L.append(f"{sw} v{PT(i)}, v{PT(i)+1}")
        for i in range(nq): L.append(f"v_max_f32 v{PT(i)}, v{PT(i)}, v{PT(i)+1}")
    for i in range(nq):
        for r in range(4): L.append(f"v_xor_b32 v{NM0+i*4+r}, 0x80000000, v{PT(i)}")
    return L
def k4_reads(nq, f, b): return [f"ds_read_b128 {f}[{b+4*s}:{b+4*s+3}], v{VKB(nq)} offset:{s*64}" for s in range(4)]
def k4_mf(nq, f, b):
    return [f"{MF} {vq(NM0 + 4*i)}, {f}[{b+4*s}:{b+4*s+3}], {Q(i, s)}, {vq(NM0 + 4*i) if s else 0}" for i in range(nq) for s in range(4)]
def k4_max(nq):
    n = [NM0 + 4 * i for i in range(nq)]
    L = [f"v_max3_f32 v{b}, v{b}, v{b+1}, v{b+2}" for b in n] + [f"v_max_f32 v{b}, v{b}, v{b+3}" for b in n]
    return L + [f"v_pk_mul_f32 v[{b+r}:{b+r+1}], v[{b}:{b+1}], -1.0 op_sel_hi:[0,0]" for r in (2, 0) for b in n]
def shadow(plain, mfs):
    out = []; plain = list(plain)
    for m in mfs:
        out.append(m)
        c = 24 if "32x32" in m else 8
        while c > 0 and plain:
            out.append(plain.pop(0)); c -= 4 if out[-1].startswith(("v_", "s_")) else 16
    return out + plain
def zero16(b, z=ZQ): return f"{MF32} a[{b}:{b+15}], {z}, {z}, 0"
def zero_L(nq): return [zero16(A_L)]

sPR = 92
sOS, sOO = sHO, sSO
HOFF = [0, 0x40000, 0x8000, 0x48000]
def _q(t): return f"{t[0]}[{t[1]}:{t[1]+3}]"
def ACC(i, nu): return ("v", 32 + (i * 2 + nu - 6) * 4) if nu >= 6 else ("a", (i * 6 + nu) * 4)
def fa(k, nu): return vq(QLO + 16 + (k * 8 + nu) * 4)
def fb(k, i): return vq(QTOP + (k * 10 + i) * 4)
VO2, VW2, VRW, VRR, VXR, VXF = 4, 9, 13, 17, 19, 25
def ld_a(d, k, nu, so): return f"buffer_load_dwordx4 {d}, v{VW2 + nu%8//2}, s[4:7], s{so} offen offset:{(nu%2)*1024}{Opt.ld_wo} ; tag=A{nu}:{k}"
def ld_b(d, k, i, so): return f"buffer_load_dwordx4 {d}, v{VO2 + i%5}, s[8:11], s{so} offen offset:{(k%4)*1024}{Opt.ld_o} ; tag=B{i}:{k}"
def op_setup():
    L = [f"v_add_u32 v{VO2+i}, {i*TS + PAD}, v{VOD}" for i in range(5)]
    L += [f"s_lshl_b32 s{sT0}, s{sWAVE}, 13", f"s_and_b32 s{sT1}, s{sQG}, 1", f"s_lshl_b32 s{sT1}, s{sT1}, 16", f"s_add_u32 s{sT0}, s{sT0}, s{sT1}",
          f"s_mul_i32 s{sOO}, s{sQG}, {5*TS}", f"s_add_u32 s{sOO}, s{sOO}, s{sT0}", f"s_xor_b32 s{sOS}, s{sQG}, 1", f"s_mul_i32 s{sOS}, s{sOS}, {5*TS}",
          f"s_add_u32 s{sOS}, s{sOS}, s{sT0}", f"s_lshl_b32 s{sHW}, s{sWAVE}, 16"]
    return L
def op_loads0(): return [ld_b(fb(k, i), k, i, sOS if i < 5 else sOO) for k in range(2) for i in range(10)]
def xch_off(d, wg):
    return [f"s_mul_i32 s{d}, s{wg}, 20480", f"s_mul_i32 s{d+1}, s{sWAVE}, 5120", f"s_add_u32 s{d}, s{d}, s{d+1}", f"s_add_u32 s{d}, s{d}, {XCH}", f"s_add_u32 s{d+1}, s{d}, 4096"]
sOT = 30
OQ = [64, 68] + list(range(76, 112, 4))
def o_reg(k):
    if k >= 16: return 32 + 8 * (k % 4)
    late = max(0, 16 - Opt.ne)
    assert late <= len(OQ) - 3
    return OQ[k - Opt.ne] if k >= Opt.ne else OQ[late + k % (len(OQ) - late)]
def st_o(k):
    return f"buffer_store_dwordx4 {vq(o_reg(k))}, v{VOD}, s[20:23], s{sOT + k//4} offen offset:{(k%4)*1024}{Opt.st_o} ; tag=S:0"
E1 = {}

def own_word(kind):
    L = [f"s_lshl_b32 s{sT0}, s{sBR}, 3", f"s_add_u32 s{sT0}, s{sT0}, s{sB1}", f"s_lshl_b32 s{sT0}, s{sT0}, 7", f"s_lshl_b32 s{sT1}, s{sH0}, 1",
         f"s_add_u32 s{sT0}, s{sT0}, s{sT1}", f"s_add_u32 s{sT0}, s{sT0}, {FLW + (64 if kind == 2 else 0)}"]
    L += [f"v_lshl_add_u32 v1, v{VOD}, 2, s{sT0}", f"v_mov_b32 v2, {16 if kind else 0}", f"s_mov_b64 exec, {1 if kind else 3}"]
    return L + [f"global_store_dword v1, v2, s[{sWS}:{sWS+1}] sc0 sc1", "s_mov_b64 exec, -1"]
def signal(a, kind):
    if kind:
        for l in own_word(kind): a(l)
        return
    a(f"s_lshl_b32 s{sT0}, s{sBR}, 3\ns_add_u32 s{sT0}, s{sT0}, s{sB1}\ns_lshl_b32 s{sT0}, s{sT0}, 2")
    a(f"v_mov_b32 v1, s{sT0}\nv_mov_b32 v2, 1\ns_mov_b64 exec, 1")
    a(f"global_atomic_add v1, v2, s[{sDBG}:{sDBG+1}]{' offset:128' if Opt.dbg else ''} sc1\ns_mov_b64 exec, -1")
def poll_issue(a, kind):
    if kind == 0:
        a(f"s_lshl_b32 s{sT0}, s{sBR}, 5\ns_add_u32 s{sT0}, s{sT0}, {128 if Opt.dbg else 0}\nv_and_b32 v{VPA}, 7, v0\nv_lshl_add_u32 v{VPA}, v{VPA}, 2, s{sT0}")
    else:
        a(f"s_lshl_b32 s{sT0}, s{sBR}, 3\ns_add_u32 s{sT0}, s{sT0}, s{sB2}\ns_lshl_b32 s{sT0}, s{sT0}, 7\ns_add_u32 s{sT0}, s{sT0}, {FLW + (64 if kind == 2 else 0)}")
        a(f"v_and_b32 v{VPA}, 15, v0\nv_lshl_add_u32 v{VPA}, v{VPA}, 2, s{sT0}")
    b = sWS if kind else sDBG
    a(f"global_load_dword v{VPD}, v{VPA}, s[{b}:{b+1}] sc0 sc1")
def poll_wait(a, kind, lbl, done, first_wait="vmcnt(0)"):
    b = sWS if kind else sDBG
    a(f"s_mov_b32 s{sT1}, 0x20000\ns_waitcnt {first_wait}")
    a.label(lbl)
    a(f"v_cmp_gt_u32 vcc, 16, v{VPD}\ns_sub_u32 s{sT1}, s{sT1}, 1\ns_cmp_eq_u32 s{sT1}, 0\ns_cbranch_scc1 {done}")
    a(f"s_nop 2\ns_cbranch_vccz {done}")
    a(f"global_load_dword v{VPD}, v{VPA}, s[{b}:{b+1}] sc0 sc1\ns_sleep 4\ns_waitcnt vmcnt(0)\ns_branch {lbl}")

def oproj(a):
    a.label("L_op")
    pstamp(a, 9)
    n3 = sum(l.startswith("buffer_") for l in E1[4])
    pro = [f"s_lshl_b32 s{sG1}, s{sWAVE}, 14", f"s_mul_i32 s{sT1}, s{sWAVE}, {XW}", f"s_add_u32 s{sT1}, s{sT1}, {XB}"]
    for p in range(4):
        pro += [f"s_and_b32 s{sT0}, s{sPR+p}, 0x1fff", f"v_add_u32 v{VW2+p}, s{sT0}, v{VOD}", f"v_add_u32 v{VRW+p}, s{sG1}, v{VW2+p}", f"v_add_u32 v{VXR+p}, s{sT1}, v{VW2+p}"]
    pro += [f"s_waitcnt vmcnt({n3})", "s_barrier"]
    D = Opt.dt; K0 = 16 - D; K1 = K0 - Opt.lag; T0 = 80 * K1 + 40 * Opt.lag; TH = 40 * D; N = 1280
    H = Opt.hold
    od = [(k, nu, i) for part in (range(6), range(6, 8)) for k in range(H) for nu in part for i in range(10)]
    od += [(k, nu, i) for k in range(H, K1) for nu in range(8) for i in range(10)]
    for h in range(2):
        od += [(k, nu, i) for k in range(K1, K0) for nu in range(8) for i in range(5 * h, 5 * h + 5)]
        od += [(k, 2 * p + e, i) for p in range(4) for i in range(5 * h, 5 * h + 5) for e in range(2) for k in range(K0, 16)]
    def frags(k, nu, i): return (("A", k, nu + (8 if K1 <= k < K0 and i >= 5 else 0)), ("B", k, i))
    first = {}; last = {}
    for g, o in enumerate(od):
        for f in frags(*o):
            first.setdefault(f, g); last[f] = g
    done = {(i, nu): g for g, (k, nu, i) in enumerate(od)}
    B1, B2, B3 = T0 + TH - Opt.b1, T0 + TH, N - Opt.b3
    fl = []; pre = {}
    pool = [(-1, ("a", 240 + 4 * j)) for j in range(4)]
    t = 0
    for (i, nu), g in sorted(done.items(), key=lambda x: x[1]):
        if nu >= 6: continue
        t = max(g + 8, t + 3.25)
        ad = VRW + nu // 2
        lim = (B1 if i < 5 else B3) - 1
        assert t <= lim + 4, (t, lim)
        fl.append(F(f"ds_write_b128 v{ad}, {_q(ACC(i, nu))} offset:{((i%5)*2 + nu%2)*1024}", 8, min(int(t), lim), min(int(t) + 1, lim), prio=1))
        pool.append((int(t) + 5, ACC(i, nu)))
    reg = {("A", k, nu): ("v", QLO + 16 + (k * 8 + nu) * 4) for k in range(2) for nu in range(8)}
    reg.update({("B", k, i): ("v", QTOP + (k * 10 + i) * 4) for k in range(2) for i in range(10)})
    for f in reg: pool.append((last[f] + 1, reg[f]))
    SQ = []
    tg = tl = -9; prevg = prevl = None
    cache = {}; tmps = [52, 53, 54, 44, 45, 69]
    pw = None
    for f in sorted((f for f in first if f not in reg), key=lambda f: first[f]):
        kind, k, j = f
        keep = kind == "B" and k >= K0 and j < 5
        cand = sorted(x for x in pool if not keep or x[1][0] == "v")
        ag = [x for x in cand if x[1][0] == "a" and x[0] + 70 <= first[f]]
        x = ag[0] if (ag and first[f] >= T0) else cand[0]
        pool.remove(x); reg[f] = x[1]
        if keep: SQ.append((last[f] + 1, x[1][1]))
        else: pool.append((last[f] + 1, x[1]))
        if kind == "A" and k < 4 + Opt.pre_x:
            tl = max(x[0], tl + 2, 0)
            ad = VRW if k < 4 else VXR
            c = F(f"ds_read_b128 {_q(x[1])}, v{ad + j//2} offset:{(k%2)*8192 + (j%2)*1024}", 4, tl, tl + 3, deps=[prevl] if prevl else [], prio=5, depgap=0)
            prevl = c
        else:
            tg = max(x[0], tg + Opt.lgap, 0)
            key = (sHW, HOFF[k // 4] + (k % 4) * 8192) if kind == "A" else (sOS if j < 5 else sOO, HOFF[k // 4] >> 3)
            txt = ""
            if key[1] == 0: so = key[0]
            else:
                if key not in cache:
                    r = tmps[0]
                    cache = {a_: b_ for a_, b_ in cache.items() if b_ != r}; cache[key] = r
                    txt = f"s_add_u32 s{r}, s{key[0]}, {key[1]}\n"
                so = cache[key]; tmps.remove(so); tmps.append(so)
            if kind == "B" and k >= 8 and pw is None:
                pw = tg; txt = "s_waitcnt vmcnt(?P:0)\n@PW@:\n" + txt
            txt += (ld_a if kind == "A" else ld_b)(_q(x[1]), k, j, so)
            c = F(txt, 8, tg, tg + 2, deps=[prevg] if prevg else [], prio=3)
            prevg = c
        assert c.hi + 8 < first[f], (f, c.hi, first[f])
        fl.append(c)
    dist = sorted(first[f] - c.lo for f, c in zip(sorted((f for f in first if f[1] >= 2), key=lambda f: first[f]), fl[60:]) if "buffer" in c.text)
    if Opt.stamps: print("prefetch distance min/med", dist[:8], dist[len(dist) // 2], "poll wait at", pw)
    mf = [f"{MF} {_q(ACC(i, nu))}, {_q(reg[frags(k, nu, i)[0]])}, {_q(reg['B', k, i])}, {_q(ACC(i, nu)) if k else 0}" for k, nu, i in od]
    seen = set()
    for g in range(0, N, 5):
        new = {}
        for k, nu, i in od[g:g + 5]:
            for f in frags(k, nu, i):
                if f not in seen and not (f[0] == "A" and k < 4 + Opt.pre_x): new.setdefault(k, []).append(f"{f[0]}{f[2]}")
                seen.add(f)
        if new: pre[g] = [f"s_waitcnt vmcnt(?{'|'.join(v)}:{k})" for k, v in new.items()]
    for j in range(Opt.ne, 20):
        g = 3 + (j - Opt.ne) * (60 * H - 10) // (20 - Opt.ne)
        fl.append(F(st_o(j), 8, g, g + 3, prio=2))
    pre.setdefault(Opt.sig, []).extend(["s_waitcnt vmcnt(?S:0)", "@SIG@:"])
    pi = Asm(); poll_issue(pi, 2)
    pi = [l.strip() for l in pi.lines]; pi[-1] += " ; tag=P:0"
    assert Opt.sig + 2 < pw - Opt.plead
    spread(fl, [(l, 4) for l in pi], pw - Opt.plead, pw - Opt.plead + 2 * len(pi), 20)
    pre.setdefault(640, []).append("s_barrier")
    pre.setdefault(T0, []).append("@TAIL@:")
    misc = []
    for p in range(3):
        misc += [f"s_add_u32 s{sT0}, s{sWAVE}, {p+1}", f"s_and_b32 s{sT0}, s{sT0}, 3", f"s_mul_i32 s{sT1}, s{sT0}, 30720", f"s_add_u32 s{sT1}, s{sT1}, {p*10240}", f"v_add_u32 v{VRW+p}, s{sT1}, v{VOD}"]
    misc += [f"s_mul_i32 s{sT0}, s{sWAVE}, 30720", f"v_add_u32 v{VRR}, s{sT0}, v{VOD}",
             "v_and_b32 v3, 15, v0", "v_and_b32 v1, 48, v0",
             f"s_mul_i32 s{sT0}, s{sB2}, 304", f"s_mul_i32 s{sT1}, s{sQG}, 80", f"s_add_u32 s{sT0}, s{sT0}, s{sT1}", f"s_lshl_b32 s{sT0}, s{sT0}, 11",
             f"s_lshl_b32 s{sT1}, s{sBR}, 10", f"s_add_u32 s{sT0}, s{sT0}, s{sT1}", f"s_lshl_b32 s{sT1}, s{sN4}, 8",
             f"s_add_u32 s{sT0}, s{sT0}, s{sT1}", f"s_lshl_b32 s{sT1}, s{sWAVE}, 6", f"s_add_u32 s{sT0}, s{sT0}, s{sT1}",
             "v_lshl_add_u32 v2, v3, 11, v1", f"v_add_u32 v2, s{sT0}, v2",
             f"s_mov_b32 s16, s{sOUT}", f"s_mov_b32 s17, s{sOUT+1}", f"s_mov_b32 s18, {8*304*1024*2}"]
    misc += xch_off(30, 2) + ["s_xor_b32 s34, s2, 32"] + xch_off(32, 34)
    misc += [f"s_lshl_b32 s{sT0}, s{sWAVE}, 2", f"s_add_u32 s{sT0}, s{sT0}, {FLX}", f"s_lshl_b32 s{sT1}, s2, 7", f"s_add_u32 s{sT1}, s{sT1}, s{sT0}", f"v_mov_b32 v{VXF}, s{sT1}",
             "s_lshl_b32 s34, s34, 7", f"s_add_u32 s34, s34, s{sT0}", f"v_mov_b32 v{VPA}, s34", f"v_mov_b32 v{VXF+1}, 16"]
    spread(fl, [(m, 4) for m in misc], 660, 660 + 4 * len(misc), 30)
    assert 660 + 4 * len(misc) < T0
    for b in (B1, B3): pre.setdefault(b, []).extend(["s_waitcnt lgkmcnt(0)", "s_barrier"])
    def red_read(j, q): return f"ds_read_b128 {vq(q)}, v{VRR} offset:{(j // 2 % 3)*10240 + (j // 6 * 2 + j % 2)*1024}"
    def red_add(j, q, t0):
        d = ACC(t0 + j // 6, 6 + j % 2)[1]
        return [f"v_pk_add_f32 v[{d+r}:{d+r+1}], v[{d+r}:{d+r+1}], v[{q+r}:{q+r+1}]" for r in (0, 2)]
    def pack(b): return [f"v_cvt_pk_bf16_f32 v{b+r}, v{b+2*r}, v{b+2*r+1}" for r in range(4)]
    SQ.sort()
    ns = len(SQ)
    blk = []; prev = None
    for j, (fr, q) in enumerate(SQ):
        if fr < B2:
            prev = F(red_read(j, q), 4, max(B1, fr), B2 - 1, deps=[prev] if prev else [], prio=10 + j, depgap=0); fl.append(prev)
        else: blk.append(red_read(j, q))
    for j in range(30):
        q = SQ[j % ns][1]
        if j in (0, 12, 18): blk.append(f"s_waitcnt lgkmcnt({min(14, min(30, ns + j) - 1 - (j + 5 if j else 11))})")
        blk += red_add(j, q, 0)
        if j + ns < 30: blk.append(red_read(j + ns, q))
        if j % 6 == 5:
            i = j // 6; b = ACC(i, 6)[1]
            if i == 3: blk += ["s_waitcnt lgkmcnt(0)", "s_barrier"]
            blk += pack(b) + [f"buffer_store_dwordx4 {vq(b)}, v{VOD}, s[20:23], s{30 + i//4} offen offset:{(i%4)*1024}{Opt.st_o} ; tag=XS:0"]
    pre[B2] = ["@BLK@:"] + pre.get(B2, [])
    fl.append(F(f"s_waitcnt vmcnt(?XS:0)\ns_mov_b64 exec, 1\nglobal_store_dword v{VXF}, v{VXF+1}, s[{sWS}:{sWS+1}] sc0 sc1\ns_mov_b64 exec, -1", 8, B2 + Opt.xf, B2 + Opt.xf + 2))
    fl.append(F(f"global_load_dword v{VPD}, v{VPA}, s[{sWS}:{sWS+1}] sc0 sc1", 8, B2 + Opt.xp, B2 + Opt.xp + 2))
    fl.append(F(f"s_waitcnt vmcnt(0)\nv_cmp_gt_u32 vcc, 16, v{VPD}", 8, B2 + Opt.xl - 3, B2 + Opt.xl - 2))
    pre.setdefault(B2 + Opt.xl, []).append("@XL@:")
    PQ = [q for fr, q in SQ[:5]]
    pld = [f"buffer_load_dwordx4 {vq(PQ[i])}, v{VOD}, s[20:23], s{32 + i//4} offen offset:{(i%4)*1024}{Opt.ld_o}" for i in range(5)]
    RQ = [q for fr, q in SQ[5:]] + list(range(32, 72, 4))
    ne = min(len(RQ), Opt.b3)
    RQ += [b for b in range(QLO + 16, 256, 4) if b not in RQ and b not in PQ]
    for k in range(ne): fl.append(F(red_read(k, RQ[k]), 4, B3 + k, B3 + k, prio=0))
    body, over = schedule(mf, fl, 8, pre)
    k = body.index("@BLK@:")
    body = body[:k] + ["@AL@:"] + fix_hazards(blk, body[k - 26:k]) + ["@NA@:"] + body[k + 1:]
    tail = [red_read(k, RQ[k]) for k in range(ne, 30)]
    for j in range(30):
        if j % 6 == 0 and j != 6: tail.append(f"s_waitcnt lgkmcnt({min(14, 24 - j)})")
        tail += red_add(j, RQ[j], 5)
    tail += ["@XC@:", "s_waitcnt vmcnt(0)", f"s_mov_b32 s{sT0}, 0"]
    for i in range(5):
        if i == 4: tail.append("@LAST@:")
        b = ACC(5 + i, 6)[1]; q = PQ[i]
        for r in range(4): tail += [f"v_lshlrev_b32 v{40+2*r}, 16, v{q+r}", f"v_and_b32 v{41+2*r}, 0xffff0000, v{q+r}"]
        for r in range(0, 8, 2): tail.append(f"v_pk_add_f32 v[{b+r}:{b+r+1}], v[{b+r}:{b+r+1}], v[{40+r}:{41+r}]")
        if i: tail.append(f"s_mov_b32 s{sT0}, {i*32768}")
        tail += pack(b)
        tail.append(f"buffer_store_dwordx4 {vq(b)}, v2, s[16:19], s{sT0} offen{Opt.st_out}")
    body = waits.insert_lgkm(body + ["@END@:"] + tail, loop=False)
    res = [waits.resolve_vm([(E1[nq], 1, {}), (body, 1, {})])[1] for nq in (4, 5)]
    def cnt(l): return int(re.search(r"vmcnt\((\d+)", l).group(1))
    body = [l1 if (l1 == l2 or cnt(l1) <= cnt(l2)) else l2 for l1, l2 in zip(*res)]
    out = []; room = 99
    for l in body:
        if l.startswith(("buffer_", "global_")): room += 1
        elif re.fullmatch(r"s_waitcnt vmcnt\(\d+\)", l):
            if cnt(l) >= room and cnt(l): continue
            if re.fullmatch(r"s_waitcnt vmcnt\(\d+\)", out[-1] if out else ""): out.pop()
            room = cnt(l)
        out.append(l)
    k = out.index("@END@:")
    body, tail = out[:k], fix_hazards(out[k + 1:], out[k - 26:k])
    for l in fix_hazards(pro): a(l)
    for e in hazard.check(pro + body, "op")[:10]: print(e)
    a("; noalign")
    for l in body:
        if l == "@SIG@:":
            pstamp(a, 10)
            a(f"v_mov_b32 v1, {FLAG + 8}\nv_mov_b32 v2, 1\ns_mov_b64 exec, 1\nds_add_rtn_u32 v3, v1, v2\ns_mov_b64 exec, -1\ns_waitcnt lgkmcnt(0)")
            a(f"v_readfirstlane_b32 s{sT0}, v3\ns_nop 1\ns_cmp_eq_u32 s{sT0}, 3\ns_cbranch_scc1 L_sig"); a.label("L_sigr")
        elif l == "@PW@:":
            pstamp(a, 11)
            a(f"v_cmp_gt_u32 vcc, 16, v{VPD}\ns_nop 1\ns_nop 1\ns_cbranch_vccnz L_pw"); a.label("L_pwr")
            pstamp(a, 12)
        elif l == "@TAIL@:": pstamp(a, 13); pstamp(a, 9, tail=True)
        elif l == "@AL@:": pstamp(a, 10, tail=True); a("; align")
        elif l == "@NA@:": pstamp(a, 11, tail=True); a("; noalign")
        elif l == "@XL@:":
            a("s_cbranch_vccnz L_xs")
            for x in pld: a(x)
            a.label("L_xs")
        else: a(l)
    pstamp(a, 12, tail=True)
    a("; align")
    for l in tail:
        if l == "@LAST@:": a(f"s_cmp_eq_u32 s{sQG}, 3\ns_cbranch_scc1 L_fin")
        elif l == "@XC@:":
            pstamp(a, 13, tail=True)
            a("s_cbranch_vccnz L_xw"); a.label("L_xr")
        else: a(l)
    def side_code():
        a.label("L_sig")
        signal(a, 2)
        a("s_branch L_sigr")
        a.label("L_pw")
        poll_wait(a, 2, "L_pw2", "L_pwr")
        a.label("L_xw")
        poll_wait(a, 2, "L_xw2", "L_xw3")
        a.label("L_xw3")
        for l in pld: a(l)
        a("s_branch L_xr")
    return side_code

def kv_switch():
    return ["s_mov_b32 s12, s24", "s_mov_b32 s13, s25", "s_mov_b32 s14, 0x80000", "s_mov_b32 s16, s28", "s_mov_b32 s17, s29", "s_mov_b32 s18, 0x80000",
            f"s_mov_b32 s{sRAW}, 0", f"s_mov_b32 s{sDOFF}, s{sROT}", f"s_mov_b32 s{sMH}, 0xfffc0000", f"s_mov_b32 s{sML}, 0x3e000",
            f"s_movk_i32 s{sINC0}, 0x2000", f"s_movk_i32 s{sINC1}, 0x2000", f"s_movk_i32 s{sG1}, 0x1000", f"s_mov_b32 s{sG2}, 0", f"s_movk_i32 s{sG3}, 0x1000"]

TRACE = ["s_mov_b32 m0, s47", "s_add_u32 s47, s47, 1", "v_writelane_b32 v73, s98, m0", "v_writelane_b32 v75, s100, m0",
         "s_memrealtime s[98:99]", "s_memtime s[100:101]"]
def variant(a, nq, tag):
    w3 = nq == 4
    RC = VRC(nq)
    pro = ["v_lshrrev_b32 v2, 2, v30", "v_and_b32 v3, 1, v31", "v_lshl_add_u32 v3, v3, 2, v2", "v_bfe_u32 v1, v30, 1, 1", "v_xor_b32 v3, v3, v1",
           "v_lshl_add_u32 v2, v31, 3, v2", "v_lshlrev_b32 v2, 8, v2", "v_and_b32 v1, 1, v30", "v_lshl_add_u32 v2, v1, 4, v2"]
    for s in range(4): pro += [f"v_xor_b32 v1, {2*s}, v3", f"v_lshl_add_u32 v{VWA(nq)+s}, v1, 5, v2"]
    pro += ["v_bfe_u32 v1, v0, 2, 4", "v_lshrrev_b32 v2, 1, v1", "v_and_b32 v3, 3, v0", "v_xor_b32 v2, v2, v3", "v_lshlrev_b32 v2, 4, v2", "v_lshl_add_u32 v2, v1, 7, v2",
            f"v_add_u32 v{VWR(nq)[0]}, s{sM0X}, v2", f"v_xor_b32 v{VWR(nq)[1]}, 64, v{VWR(nq)[0]}"]
    if w3:
        pro += ["v_xor_b32 v1, v30, v31"]
        for j in range(4): pro += [f"v_xor_b32 v2, {4*j}, v1", "v_lshlrev_b32 v2, 4, v2", f"v_lshl_add_u32 v{VPK+j}, v31, 8, v2", f"v_mov_b32 v{VDB+j}, v{VDA+j}"]
        pro += ["v_lshrrev_b32 v2, 1, v30", "v_xor_b32 v2, v2, v31", "v_and_b32 v3, 1, v30", "v_lshlrev_b32 v3, 4, v3"]
        for j in range(4): pro += [f"v_xor_b32 v1, {4*(j%2)}, v2", "v_lshl_add_u32 v1, v1, 5, v3", f"v_lshl_add_u32 v{VPV+j}, v31, 8, v1"]
        pro += [f"v_mov_b32 v1, {FLAG}", "ds_write_b64 v1, v[32:33]", "ds_write_b64 v1, v[32:33] offset:8"]
    pro += ["s_waitcnt vmcnt(?X:0) lgkmcnt(0)", "s_barrier"]
    pro += x_reads(nq, 0, 0) + w_reads(nq, 0, 0) + w_reads(nq, 0, 1) + "\n".join(first_loads()[Opt.nfl:]).split("\n")
    pro += [f"s_mov_b32 s{sCNT}, 4", "s_waitcnt lgkmcnt(0)"]
    body = []
    for u in range(4):
        if u == 1: body.append("@SWITCH@:")
        if u == 2: body += [f"s_cmp_eq_u32 s{sCNT}, 1", "s_cselect_b32 s10, 0, s10"]
        body += qproj_unit(nq, u)
    body = waits.insert_lgkm(body)
    _, pro, body = waits.resolve_vm([("\n".join(first_loads()[:Opt.nfl]).split("\n"), 1, {}), (pro, 1, {}), (body, 4, {"R": 4 if w3 else 0, "X": 2})])
    for l in fix_hazards(pro):
        if "vmcnt" in l: pstamp(a, 4, True)
        a(l)
    pstamp(a, 1)
    for e in hazard.check(body + body, f"q{tag}")[:10]: print(e)
    a.label(f"L_q{tag}")
    a("; noalign")
    a(f"s_cmp_eq_u32 s{sCNT}, 1\ns_cselect_b32 s8, s4, s8\ns_cselect_b32 s9, s5, s9\ns_cselect_b32 s10, s6, s10\ns_cselect_b32 s{sXOFF}, s{sHO}, s{sXOFF}")
    for l in body:
        if l == "@SWITCH@:":
            if w3: a(f"s_cmp_eq_u32 s{sCNT}, 1\ns_cbranch_scc1 L_qs{tag}"); a.label(f"L_qn{tag}")
        else: a(l)
    a(f"s_sub_u32 s{sCNT}, s{sCNT}, 1\ns_cmp_lg_u32 s{sCNT}, 0\ns_cbranch_scc1 L_q{tag}")
    a("; align")
    pstamp(a, 2)
    def scale(sb): return [f"v_pk_mul_f32 v[{sb+r}:{sb+r+1}], v[{sb+r}:{sb+r+1}], s[{sSC}:{sSC+1}]" for r in range(0, 8, 2)]
    def pack(sb, d): return [f"v_cvt_pk_bf16_f32 v{d+r}, v{sb+2*r}, v{sb+2*r+1}" for r in range(3, -1, -1)]
    cv = ["v_and_b32 v1, 63, v0", f"v_lshlrev_b32 v{VOD}, 4, v1", f"s_add_u32 s{sHO}, s{sHW}, 8192", "s_waitcnt lgkmcnt(0)"] + wo_reads(nq)[:8]
    side = wo_reads(nq)[8:] + ([t for t, c in ring_dma(3, "0x2000")] if w3 else []) + k_reads(0)
    t0s, stride, cnts = SM()
    side += [f"v_add_u32 v{VSW}, s96, v{VOD}\nv_add_u32 v{VSR}, s97, v{VOD}", f"s_add_u32 s4, s{sWS}, s{sWB}\ns_addc_u32 s5, s{sWS+1}, 0\ns_mov_b32 s6, 0x80000",
             f"s_add_u32 s8, s{sWS}, s55\ns_addc_u32 s9, s{sWS+1}, 0\ns_mov_b32 s10, {19*TS}\ns_mov_b32 s{sCNT}, 8"]
    if w3:
        side += ["\n".join(own_word(0))]
        side += [f"s_lshl_b32 s{sT0}, s2, 7\ns_add_u32 s{sT0}, s{sT0}, {FLX}\nv_lshrrev_b32 v1, 2, v{VOD}\nv_add_u32 v1, s{sT0}, v1\ns_mov_b64 exec, 15\n"
                 f"global_store_dword v1, v2, s[{sWS}:{sWS+1}] sc0 sc1\ns_mov_b64 exec, -1"]
    ks = [k for k in range(27, -1, -1) if (k - 8 if k >= 8 else k + 12) // 4 < nq]
    nb = len(ks) // 4
    zs = [zero16(b) for b in range(96, 32 * nq, 16)]
    ws = wo_stores()
    for j in range(nb):
        for k in ks[4*j:4*j+4]: cv += scale(32 + 8 * k)
        pl = sum((pack(32 + 8 * k, 144 + 4 * k) for k in ks[4*j:4*j+4]), [])
        cv += shadow(weave(pl, share(side, nb, j), 2) + ([ws.pop(0)] if j >= nb - 3 else []), zs[j-1:j] if j else [])
    cv += ["v_and_b32 v1, 3, v0", "v_xor_b32 v2, v31, v1", "v_lshlrev_b32 v2, 4, v2", f"v_lshl_add_u32 v{VKB(nq)}, v1, 8, v2"] + k4_reads(nq, "v", 48)
    cv += [f"v_bfe_i32 v{VIX}, v0, 0, 1", f"v_and_b32 v{VIX}, 0xaaaaaaaa, v{VIX}", f"v_or_b32 v{VIX}, 0x44444444, v{VIX}"]
    def rd(j): return [f"v_accvgpr_read_b32 v{32+r}, a{16*j+r}" for r in range(16)] if j < 6 else k4_max(nq)
    cv += rd(0)
    mp = k4_mf(nq, "v", 48)
    for j in range(6):
        cv += scale(32) + scale(40) + (["s_waitcnt lgkmcnt(0)"] if j == 0 else [])
        cv += shadow(ws[j:j+1] + pack(32, QLO + 8 * j) + pack(40, QLO + 8 * j + 4) + rd(j + 1), mp[4*j:4*j+4] + [zero16(16 * j)] if j < 5 else [zero16(16 * j)])
    cv = waits.insert_lgkm("\n".join(cv).split("\n"), loop=False)
    cv = "\n".join(cv).split("\n")
    if Opt.trace and not w3: cv += ["s_mov_b32 s47, 0", "v_mov_b32 v73, 0", "v_mov_b32 v75, 0"]
    for l in fix_hazards(cv, body[-26:]): a(l)
    pstamp(a, 3)
    a(f"s_branch L_loop{tag}")
    if w3:
        a.label(f"L_qs{tag}")
        for l in kv_switch(): a(l)
        for j in range(4): a(f"v_mov_b32 v{VDA+j}, v{VPK+j}\nv_mov_b32 v{VDB+j}, v{VPV+j}")
        a(f"s_branch L_qn{tag}")
    def og_rd(j): return [f"v_accvgpr_read_b32 v{32 + 16*(j%2) + r}, a{A_O + 16*j + r}" for r in range(16)] if j < 2 * nq else []
    def og_mul(j):
        tb = 32 + 16 * (j % 2); rc = RC[j // 2]
        return [f"v_pk_mul_f32 v[{tb+r}:{tb+r+1}], v[{tb+r}:{tb+r+1}], v[{rc}:{rc+1}] op_sel_hi:[1,0]" for r in range(0, 16, 2)]
    def og_cvt(k, d):
        tb = 32 + 8 * (k % 4)
        return [f"v_cvt_pk_bf16_f32 v{d+r}, v{tb+2*r}, v{tb+2*r+1}" for r in range(4)]
    def steps(store):
        body = []
        for st in range(4):
            if Opt.trace and not w3: body += TRACE
            if not store and not w3:
                if st == 2: body.append("s_waitcnt vmcnt(0)")
                if st == 3: body.append("@EV@:")
            body += attn_step(nq, st, store)
        for e in hazard.check(body + body, f"a{tag}")[:10]: print(e)
        return body
    a.label(f"L_t1{tag}")
    mv = [f"v_mov_b64 v[{QTOP+r}:{QTOP+r+1}], v[{QLO+r}:{QLO+r+1}]" for r in range(0, nq * 16, 2)]
    sc = [f"s_mov_b32 s{sHEAD}, 1", f"s_mov_b32 s{sLAST}, 1", f"s_mov_b32 s{sREDO}, 0", f"s_mov_b32 s{sCNT}, 8"]
    EV1 = 8 - max(cnts[:3])
    if not w3: sc += [f"s_cmp_eq_u32 s{sWAVE}, 0\ns_cselect_b32 s{sEV}, {EV1}, -1"]
    sc += [f"v_add_u32 v1, 8192, v{VOD}"]
    pre = [f"buffer_load_dwordx4 {fa(st, nu)}, v{1 if st else VOD}, s[4:7], s{sPR + nu//2} offen offset:{(nu%2)*1024}{Opt.ld_wo}" for st in range(2) for nu in range(8)]
    def wr(k): return [f"ds_write_b128 v{VSW}, {vq(QLO + 4*(k%4))} offset:{k*1024}"] if k >= 0 else []
    t1 = k4_reads(nq, "a", A_V) + shadow(mv + sc + ["s_waitcnt lgkmcnt(0)"], zero_L(nq) + [zero16(0), zero16(16)])
    mp = k4_mf(nq, "a", A_V)
    n = 2 * nq
    for j in range(n):
        if j: t1 += og_mul(j)
        ld = share(pre, n - 1, j) if j < n - 1 else []
        pl = wr(2*j - 2) + og_cvt(2*j, QLO + 8*(j%2)) + wr(2*j - 1) + og_cvt(2*j + 1, QLO + 8*(j%2) + 4) + ld[:1] + og_rd(j + 1)[:8 if j else 0] + ld[1:] + og_rd(j + 1)[8:16 if j else 0]
        if j == n - 1: pl += k4_max(nq)[:n] + wr(2*j) + wr(2*j + 1) + k4_max(nq)[n:]
        t1 += shadow(pl, ([zero16(16 * j)] if j > 1 else []) + (share(mp, n - 2, j) if j < n - 2 else []))
    t1 = waits.insert_lgkm("\n".join(t1).split("\n"), loop=False)
    t1 = "\n".join(t1).split("\n")
    for l in fix_hazards(t1): a(l)
    pstamp(a, 5); pstamp(a, 6)
    a("; noalign")
    if not w3 or cnts[3]:
        a.label(f"L_loopS{tag}")
        bodyS = steps(1)
        for e in hazard.check(t1[-26:] + bodyS, f"t1{tag}")[:10]: print(e)
        for l in bodyS: a(l)
        a(f"s_sub_u32 s{sCNT}, s{sCNT}, 1\ns_cmp_lg_u32 s{sCNT}, s{sSX}\ns_cbranch_scc1 L_loopS{tag}")
    a.label(f"L_loop{tag}")
    body = steps(0)
    for e in hazard.check(cv[-26:] + body, f"t0{tag}")[:10] + hazard.check(t1[-26:] + body, f"t1{tag}")[:10]: print(e)
    for l in body:
        if l == "@EV@:":
            a(f"s_cmp_eq_u32 s{sCNT}, s{sEV}\ns_cbranch_scc1 L_ev{tag}"); a.label(f"L_evr{tag}")
        else: a(l)
    if w3:
        a(f"s_sub_u32 s{sCNT}, s{sCNT}, 1\ns_cmp_lg_u32 s{sCNT}, s{sLAST}\ns_cbranch_scc1 L_loop{tag}\ns_cmp_eq_u32 s{sLAST}, 0\ns_cbranch_scc1 L_ep{tag}")
        bodyL = steps(2)
        for e in hazard.check(body[-26:] + bodyL, "bl")[:10]: print(e)
        for l in bodyL: a(l)
        a("s_nop 1")
        a.label(f"L_ep{tag}")
    else: a(f"s_sub_u32 s{sCNT}, s{sCNT}, 1\ns_cmp_lg_u32 s{sCNT}, 0\ns_cbranch_scc1 L_loop{tag}")
    a("; align")
    if Opt.stamps:
        a(f"s_cmp_eq_u32 s{sHEAD}, 1\ns_cbranch_scc1 L_ps{tag}")
        pstamp(a, 4)
        a.label(f"L_ps{tag}")
        pstamp(a, 7)
    ep = [f"s_lshl_b32 s{sT0}, s{sHEAD}, 2", f"s_add_u32 s{sT0}, s{sT0}, {FLAG}", f"v_mov_b32 v1, s{sT0}", "v_mov_b32 v2, 1"]
    ep += [f"v_accvgpr_read_b32 v{32+r}, a{A_L+r}" for r in range(8 if w3 else 12)]
    ep += [f"v_add_f32 v{RC[i]}, v{32+2*i}, v{33+2*i}" for i in range(nq)]
    ep += [f"v_add_f32 v3, v{RC[0]}, v{RC[1]}", f"v_add_f32 v32, v{RC[2]}, v{RC[3]}"]
    if not w3: ep += ["v_add_f32 v42, v42, v43", f"v_add_f32 v{RC[4]}, v{RC[4]}, v42", f"v_add_f32 v3, v3, v{RC[4]}"]
    ep += ["v_add_f32 v3, v3, v32", f"v_cmp_ngt_f32 vcc, s{sTHR}, v3"]
    ep += [f"v_rcp_f32 v{RC[i]}, v{RC[i]}" for i in range(nq)]
    ep = fix_hazards(ep, body[-26:])
    if w3:
        for e in hazard.check(bodyL[-26:] + ["s_nop 1"] + ep, "ble")[:10]: print(e)
    for l in ep: a(l)
    a(f"s_cbranch_vccnz L_ovf{tag}")
    a.label(f"L_nof{tag}")
    if not w3:
        a(f"s_cmp_eq_u32 s{sEV}, 0\ns_cbranch_scc1 L_evw"); a.label("L_evwr")
    a("s_waitcnt lgkmcnt(0)\ns_barrier\nds_read_b32 v3, v1")
    ep = og_rd(0) + og_mul(0) + og_rd(1)[:12] + ["s_waitcnt lgkmcnt(0)", f"v_readfirstlane_b32 s{sT0}, v3"] + og_rd(1)[12:]
    for l in fix_hazards(ep): a(l)
    a(f"s_andn2_b32 s{sT0}, s{sT0}, s{sREDO}\ns_cmp_lg_u32 s{sT0}, 0\ns_cbranch_scc1 L_redo{tag}")
    a(f"s_cmp_eq_u32 s{sHEAD}, 0\ns_cbranch_scc1 L_t1{tag}")
    e1 = op_setup() + [f"s_add_u32 s{sOT+i}, s{sOOFF}, {i*TS + 4096}" if i < nq else f"s_mov_b32 s{sOT+i}, {FLW}" for i in range(5)]
    rest = []
    ne = min(4 * nq, Opt.ne)
    for k in range(4 * nq):
        if k % 2 == 0 and k: rest += (og_rd(k // 2) if k > 2 else []) + og_mul(k // 2)
        rest += og_cvt(k, o_reg(k)) + [st_o(j) for j in range(ne) if min(j * 4 * nq // ne, j + 2) == k]
    e1 += weave(rest, op_loads0(), Opt.ldgap if not w3 else Opt.ldgap * 4 // 5)
    E1[nq] = list(e1)
    if Opt.trace and not w3:
        e1 += [f"s_lshl_b32 s{sT0}, s2, 9", f"s_add_u32 s{sT0}, s{sT0}, {STAMP_OFF + 131072}", "v_lshlrev_b32 v1, 2, v0", f"v_add_u32 v1, s{sT0}, v1",
               "v_cmp_gt_u32 vcc, 64, v0", "s_nop 4", "s_mov_b64 exec, vcc", "s_cbranch_execz L_tr",
               f"global_store_dword v1, v73, s[{sWS}:{sWS+1}]", f"global_store_dword v1, v75, s[{sWS}:{sWS+1}] offset:256", "L_tr:", "s_mov_b64 exec, -1"]
    for l in fix_hazards(e1): a(l)
    pstamp(a, 8)
    a("s_branch L_op")
    a.label(f"L_ovf{tag}")
    a(f"ds_write_b32 v1, v2\ns_branch L_nof{tag}")
    if not w3:
        a.label(f"L_ev{tag}")
        a(f"s_cmp_eq_u32 s{sHEAD}, 1\ns_cbranch_scc1 L_evh")
        a(f"s_cmp_eq_u32 s{sEV}, {Opt.ev1}\ns_cbranch_scc1 L_ev2\ns_cmp_eq_u32 s{sEV}, 1\ns_cbranch_scc1 L_ev1")
        signal(a, 0)
        a(f"s_mov_b32 s{sEV}, {Opt.ev1}\ns_branch L_evr{tag}")
        a.label("L_ev2")
        poll_issue(a, 0)
        a(f"s_mov_b32 s{sEV}, 1\ns_branch L_evr{tag}")
        a.label("L_ev1")
        a(f"s_mov_b32 s{sEV}, -1")
        poll_wait(a, 0, "L_pw0", f"L_evr{tag}")
        a.label("L_evh")
        if EV1 != 1: a(f"s_cmp_eq_u32 s{sEV}, 1\ns_cbranch_scc1 L_evp")
        signal(a, 1)
        if EV1 != 1: a(f"s_mov_b32 s{sEV}, 1\ns_branch L_evr{tag}")
        a.label("L_evp")
        poll_issue(a, 1)
        a(f"s_mov_b32 s{sEV}, 0\ns_branch L_evr{tag}")
        a.label("L_evw")
        a(f"s_mov_b32 s{sEV}, -1")
        poll_wait(a, 1, "L_pw1", "L_evwr")
    a.label(f"L_redo{tag}")
    a(f"s_mov_b32 s{sREDO}, 1\ns_waitcnt vmcnt(0) lgkmcnt(0)\ns_barrier")
    for l in kv_switch(): a(l)
    a(f"s_lshl_b32 s{sRAW}, s{sHEAD}, 18")
    rp = doff_update()
    if w3:
        for sl in range(4): rp += flat(ring_dma(sl, "0x2000")) + ["s_waitcnt vmcnt(16)"]
    for l in fix_hazards(rp): a(l)
    a("v_and_b32 v1, 15, v0\nv_lshlrev_b32 v1, 8, v1\nv_and_b32 v2, 48, v0\nv_add_u32 v1, v1, v2")
    a(f"s_lshl_b32 s{sT0}, s{sHEAD}, 18\ns_mov_b32 s{sCNT}, 64")
    for i in range(nq): a(f"v_mov_b32 v{NM0+i}, 0xff800000")
    a.label(f"L_rl{tag}")
    rb = [f"buffer_load_dwordx4 a[{A_K+4*s}:{A_K+4*s+3}], v1, s[12:15], s{sT0} offen offset:{s*64}" for s in range(4)]
    rb += ["s_waitcnt vmcnt(0)"] + maxpass_mf(nq, QTOP) + ["s_nop 7"]
    for i in range(nq):
        b = PT(i)
        rb += [f"v_max3_f32 v{NM0+i}, v{NM0+i}, v{b}, v{b+1}", f"v_max3_f32 v{NM0+i}, v{NM0+i}, v{b+2}, v{b+3}"]
    rb.append(f"s_add_u32 s{sT0}, s{sT0}, 0x1000")
    for l in fix_hazards(rb): a(l)
    a(f"s_sub_u32 s{sCNT}, s{sCNT}, 1\ns_cmp_lg_u32 s{sCNT}, 0\ns_cbranch_scc1 L_rl{tag}")
    rb = [f"v_mov_b32 v{PT(i)}, v{NM0+i}" for i in range(nq)] + max_finish(nq) + [zero16(b) for b in range(0, 32 * nq, 16)] + zero_L(nq)
    rb += ["s_waitcnt vmcnt(0)", "s_barrier"] + k_reads(0) + [f"s_mov_b32 s{sCNT}, 8", "s_nop 7"]
    for l in fix_hazards(rb): a(l)
    a(f"s_branch L_loop{tag}")

def first_loads():
    def w(item, off):
        return [(f"s_add_u32 m0, s99, {item*16384}\ns_add_u32 s98, s100, {off}\n" if j == 0 else "") +
                f"buffer_load_dwordx4 v{VDA+j}, s[12:15], s98 offen offset:{j*1024}{Opt.nt_kv} lds ; tag=R:{item}" for j in range(4)]
    def x(b): return [t.replace(f"s{sT0}", "s98") for t, c in x_dma(5, b, b)]
    return w(0, 0) + x(0) + w(1, 256) + w(2, 0x80000) + x(1)

def late_setup():
    L = [f"s_add_u32 s{sWS}, s{sWS}, {Opt.wsb << 20}", f"s_addc_u32 s{sWS+1}, s{sWS+1}, 0"] if Opt.wsb else []
    assert (Opt.wsb << 20) + FLX + 32768 <= WS_BYTES and not (Opt.wsb and Opt.stamps and not Opt.dbg)
    for s in range(4):
        L += [f"v_or_b32 v2, {4*s}, v31", "v_xor_b32 v2, v2, v30", "v_lshlrev_b32 v2, 4, v2", f"v_lshl_add_u32 v{VKA+s}, v30, 8, v2"]
    L += ["v_lshrrev_b32 v2, 2, v30", "v_lshl_add_u32 v2, v31, 2, v2", "v_and_b32 v3, 7, v2", "v_lshlrev_b32 v2, 8, v2", "v_and_b32 v1, 3, v30", "v_lshl_add_u32 v2, v1, 3, v2"]
    for dt in range(8): L += [f"v_xor_b32 v1, {dt}, v3", f"v_lshl_add_u32 v{VVA+dt}, v1, 5, v2"]
    L += ["v_lshrrev_b32 v1, 4, v0", "v_xnor_b32 v1, v1, v0", "v_bfe_i32 v1, v1, 1, 1", "v_and_b32 v1, 0x3f803f80, v1"] + [f"v_accvgpr_write_b32 a{A_ONES+r}, v1" for r in range(4)]
    L += ["v_lshrrev_b32 v3, 1, v30", "v_xor_b32 v3, v3, v31"]
    for kk in range(2):
        L += [f"v_xor_b32 v2, {4*kk}, v3", "v_lshlrev_b32 v2, 4, v2", "v_lshl_add_u32 v2, v30, 7, v2", f"v_add_u32 v{VXA+kk}, s{sM0X}, v2"]
    L += [f"s_lshl_b32 s{sT0}, s{sB1}, 5", f"s_add_u32 s{sT0}, s{sT0}, s{sH0}", f"s_lshl_b32 s{sT0}, s{sT0}, 18",
          f"s_add_u32 s24, s86, s{sT0}", "s_addc_u32 s25, s87, 0", f"s_add_u32 s28, s88, s{sT0}", "s_addc_u32 s29, s89, 0",
          f"s_mov_b32 s20, s{sWS}", f"s_mov_b32 s21, s{sWS+1}", f"s_mov_b32 s22, {FLW}", "s_mov_b32 s23, 0x20000",
          f"s_lshl_b32 s{sT0}, s{sBR}, 3", f"s_add_u32 s{sT0}, s{sT0}, s{sB1}", f"s_mul_i32 s{sT0}, s{sT0}, {19*TS}",
          f"s_mul_i32 s{sOOFF}, s{sWAVE}, {5*TS}", f"s_add_u32 s{sOOFF}, s{sOOFF}, s{sT0}", f"s_add_u32 s{sOOFF}, s{sOOFF}, {PAD}", f"s_lshl_b32 s{sT0}, s{sH0}, 12", f"s_add_u32 s{sOOFF}, s{sOOFF}, s{sT0}",
          f"s_mov_b32 s{sSC}, {f2u(SCALE):#x}", f"s_mov_b32 s{sSC+1}, {f2u(SCALE):#x}", f"s_mov_b32 s{sTHR}, {f2u(2.0**Opt.thr):#x}", "s_mov_b32 s7, 0x20000",
          f"s_and_b32 s{sB2}, s2, 3", f"s_lshl_b32 s{sB2}, s{sB2}, 1", f"s_lshr_b32 s{sT0}, s2, 7", f"s_add_u32 s{sB2}, s{sB2}, s{sT0}",
          f"s_bfe_u32 s{sQG}, s2, 0x20005", f"s_bfe_u32 s{sN4}, s2, 0x20003",
          f"s_movk_i32 s{sINC0}, 256", f"s_mov_b32 s{sINC1}, {524288-256}", f"s_mov_b32 s{sG1}, 0x20000", f"s_mov_b32 s{sG2}, 0x40000", f"s_mov_b32 s{sG3}, 0x60000",
          "s_mov_b32 s16, s12", "s_mov_b32 s17, s13", "s_mov_b32 s18, s14", "s_mov_b32 s19, 0x20000",
          f"s_mov_b32 s{sRAW}, 0x80100", f"s_mov_b32 s{sDOFF}, 0x80100", f"s_mov_b32 s{sMH}, -1", f"s_mov_b32 s{sML}, 0"]
    L += [f"s_lshl_b32 s{sT0}, s{sB1}, 4", f"s_lshr_b32 s{sT1}, s{sH0}, 1", f"s_add_u32 s{sT1}, s{sT0}, s{sT1}", f"s_and_b32 s{sT0}, s{sT1}, 3",
          f"s_mul_i32 s{sHW}, s{sT0}, {WN}", f"s_lshl_b32 s{sHO}, s{sT0}, 8", f"s_lshr_b32 s{sT1}, s{sT1}, 2", f"s_lshl_b32 s{sT1}, s{sT1}, 1", f"s_and_b32 s{sT0}, s{sWAVE}, 1",
          f"s_add_u32 s{sT1}, s{sT1}, s{sT0}", f"s_lshl_b32 s{sT0}, s{sT1}, 14", f"s_add_u32 s{sHW}, s{sHW}, s{sT0}", f"s_lshl_b32 s{sT1}, s{sT1}, 16",
          f"s_add_u32 s{sHO}, s{sHO}, s{sT1}", f"s_add_u32 s6, s{sT1}, 0x10000", f"s_mov_b32 s4, s{sWO}", f"s_mov_b32 s5, s{sWO+1}",
          f"s_lshr_b32 s{sT0}, s{sWAVE}, 1", f"s_lshl_b32 s{sT1}, s{sT0}, 7", f"s_add_u32 s{sHO}, s{sHO}, s{sT1}", f"s_lshl_b32 s{sT1}, s{sT0}, 12", f"s_add_u32 s{sHW}, s{sHW}, s{sT1}",
          f"s_mul_i32 s{sWB}, s{sBR}, {4*WN}", f"s_add_u32 s{sWB}, s{sWB}, {WOP + PAD}", f"s_add_u32 s{sHW}, s{sHW}, s{sWB}",
          f"s_mul_i32 s{sT0}, s{sN4}, {WN}", f"s_add_u32 s{sWB}, s{sWB}, s{sT0}", f"s_and_b32 s{sT0}, s{sQG}, 1", f"s_lshl_b32 s{sT0}, s{sT0}, 19", f"s_add_u32 s{sWB}, s{sWB}, s{sT0}"]
    t0s, stride, cnts = SM()
    L += [f"s_mul_i32 s{sT0}, s{sWAVE}, {(5 - t0s[1])*TS}", f"s_sub_u32 s{sSO}, s{sOOFF}, s{sT0}", f"s_add_u32 s{sT0}, s{sOOFF}, {(t0s[3] - 15)*TS}",
          f"s_mul_i32 s96, s{sWAVE}, {XW}", f"s_add_u32 s96, s96, {XB}", f"s_mul_i32 s97, s{sWAVE}, {t0s[1]*4096}", f"s_add_u32 s97, s97, {XB}",
          f"s_cmp_eq_u32 s{sWAVE}, 3", f"s_cselect_b32 s97, {XB + t0s[3]*4096}, s97", f"s_cselect_b32 s{sSO}, s{sT0}, s{sSO}", f"s_cselect_b32 s{sSX}, {8 - cnts[3]}, {8 - cnts[1]}",
          f"s_cmp_eq_u32 s{sWAVE}, 0", f"s_cselect_b32 s{sSX}, {8 - cnts[0]}, s{sSX}", f"s_cselect_b32 s{sEV}, {Opt.ev0}, -1",
          f"s_mov_b32 s{sHEAD}, 0", f"s_mov_b32 s{sREDO}, 0", f"s_mov_b32 s{sLAST}, 0", f"s_lshl_b32 s{sT1}, s{sWAVE}, 16"]
    L += [f"s_lshl_b32 s55, s{sBR}, 3", f"s_add_u32 s55, s55, s{sB2}", f"s_mul_i32 s55, s55, {19*TS}"]
    for p in range(4): L += [f"s_add_u32 s{sT0}, s{sWAVE}, {p+1}", f"s_and_b32 s{sT0}, s{sT0}, 3", f"s_lshl_b32 s{sT0}, s{sT0}, 11", f"s_add_u32 s{sPR+p}, s{sT0}, s{sT1}"]
    if Opt.rot: L += [f"s_lshr_b32 s{sROT}, s2, 5", f"s_xor_b32 s{sROT}, s{sROT}, s2", f"s_and_b32 s{sROT}, s{sROT}, 31", f"s_lshl_b32 s{sROT}, s{sROT}, 13"]
    else: L += [f"s_mov_b32 s{sROT}, 0"]
    return L

def kernel():
    a = Asm()
    a("s_cmp_ge_u32 s2, 256\ns_cbranch_scc1 L_end")
    a("s_load_dwordx8 s[84:91], s[0:1], 0\ns_load_dwordx2 s[92:93], s[0:1], 32\ns_load_dwordx8 s[40:47], s[0:1], 40\ns_load_dwordx2 s[94:95], s[0:1], 72")
    a(f"s_load_dwordx2 s[{sOUT}:{sOUT+1}], s[0:1], 80\ns_load_dwordx2 s[{sDBG}:{sDBG+1}], s[0:1], 88\ns_load_dwordx2 s[{sWS}:{sWS+1}], s[0:1], 96")
    pstamp(a, 0)
    a(f"v_lshrrev_b32 v2, 6, v0\nv_and_b32 v1, 63, v0\nv_readfirstlane_b32 s{sWAVE}, v2")
    if Opt.code_pf:
        a("s_getpc_b64 s[96:97]\ns_bfe_u32 s48, s2, 0x20003\ns_lshl_b32 s48, s48, 15\nv_lshlrev_b32 v3, 7, v0\nv_add_u32 v3, s48, v3")
        a("v_min_u32 v3, CODE_SIZE, v3\nglobal_load_dword a240, v3, s[96:97]")
    a(f"s_bfe_u32 s{sBR}, s2, 0x10002\ns_lshr_b32 s{sB1}, s2, 5\ns_and_b32 s{sH0}, s2, 3\ns_lshl_b32 s{sH0}, s{sH0}, 3")
    a(f"s_bfe_u32 s{sT0}, s2, 0x20003\ns_lshl_b32 s{sT0}, s{sT0}, 1\ns_add_u32 s{sH0}, s{sH0}, s{sT0}")
    a("v_and_b32 v30, 15, v1\nv_lshrrev_b32 v31, 4, v1")
    a("v_and_b32 v33, 7, v1\nv_xor_b32 v33, v33, v31\nv_lshrrev_b32 v34, 3, v1")
    for jj in range(4):
        a(f"v_xor_b32 v32, {4*(jj%2)}, v33\nv_lshlrev_b32 v32, 4, v32\nv_lshl_add_u32 v32, v34, 10, v32\nv_add_u32 v{VXD+jj}, {jj*8192 - jj*1024}, v32")
    a("v_lshrrev_b32 v2, 1, v30\nv_xor_b32 v2, v2, v31\nv_and_b32 v3, 1, v30\nv_lshlrev_b32 v3, 4, v3\nv_lshl_add_u32 v3, v31, 13, v3")
    for j in range(4):
        a(f"v_xor_b32 v32, {(j>>1)<<2}, v2\nv_lshl_add_u32 v32, v32, 5, v3\nv_add_u32 v{VDA+j}, {j*32768 - j*1024}, v32")
    a(f"s_mul_i32 s{sM0X}, s{sWAVE}, 10240\ns_add_u32 s{sM0X}, s{sM0X}, {XB}\ns_mul_i32 s{sXOFF}, s{sWAVE}, {80*1024}")
    a(f"s_mov_b32 s10, 311296\ns_mov_b32 s11, 0x20000\ns_mov_b32 s15, 0x20000\ns_lshl_b32 s99, s{sWAVE}, 12\ns_lshl_b32 s100, s{sWAVE}, 17")
    a(f"s_mul_i32 s{sT0}, s{sB1}, 311296\ns_lshl_b32 s{sT1}, s{sH0}, 8\ns_sub_u32 s14, 0x400000, s{sT1}")
    a(f"s_waitcnt lgkmcnt(0)\ns_cmp_eq_u32 s{sBR}, 1")
    pstamp(a, 1, True)
    for r in range(8): a(f"s_cselect_b32 s{84+r}, s{40+r}, s{84+r}")
    a(f"s_cselect_b32 s{sWO}, s94, s92\ns_cselect_b32 s{sWO+1}, s95, s93")
    a(f"s_add_u32 s8, s84, s{sT0}\ns_addc_u32 s9, s85, 0\ns_add_u32 s12, s90, s{sT1}\ns_addc_u32 s13, s91, 0")
    if Opt.stamps: stamp_start(a, 40)
    zs = [f"{MF32} v[{r}:{r+15}], {ZQ}, {ZQ}, 0" for r in range(240, 31, -16)] + [zero16(16 * k) for k in range(6)] + zero_L(5)
    ls = []
    for l in late_setup():
        if l.startswith(("s_addc", "s_cselect")): ls[-1] += "\n" + l
        else: ls.append(l)
    fl = first_loads()[:Opt.nfl]
    sh = fl[:2] + weave([f"v_accvgpr_write_b32 a{A_Z+r}, 0" for r in range(4)] + weave(ls, zs, 4), fl[2:], Opt.fgap)
    for l in fix_hazards("\n".join(sh).split("\n")): a(l)
    pstamp(a, 3, True)
    a(f"s_cmp_eq_u32 s{sWAVE}, 3\ns_cbranch_scc1 L_var4")
    variant(a, 5, "5")
    a.label("L_var4")
    variant(a, 4, "4")
    side_code = oproj(a)
    a.label("L_fin")
    if Opt.stamps:
        a("s_waitcnt vmcnt(0)\ns_barrier")
        pstamp(a, 14)
        if Opt.dbg:
            a("s_memrealtime s[44:45]\ns_waitcnt lgkmcnt(0)\ns_sub_u32 s44, s44, s40\nv_mov_b32 v1, 0\ns_cmp_lg_u32 s3, 0\ns_cbranch_scc1 L_end\ns_mov_b64 exec, 1")
            for j, (k0, k1) in enumerate([(0, 1), (1, 3), (3, 4), (6, 7), (7, 8), (8, 14), (0, 14)]):
                a(f"s_sub_u32 s48, s{72+2*k1}, s{72+2*k0}\nv_mov_b32 v2, s48\nglobal_atomic_add v1, v2, s[{sDBG}:{sDBG+1}] offset:{4*j} sc1\nglobal_atomic_umax v1, v2, s[{sDBG}:{sDBG+1}] offset:{32+4*j} sc1\ns_nop 1")
            a(f"v_mov_b32 v2, s44\nglobal_atomic_add v1, v2, s[{sDBG}:{sDBG+1}] offset:28 sc1\nglobal_atomic_umax v1, v2, s[{sDBG}:{sDBG+1}] offset:60 sc1\ns_endpgm")
        stamp_end(a, 40, sWS, 32, 0, 2, 48)
        pdump(a, sWS, 15, 2)
    a.label("L_end")
    a("s_endpgm")
    side_code()
    return a.text()

HDR = open("cdna_kernels/" + NAME + ".s.ref").read().split("; Override launch")[0]

def build(fname):
    k = NAME + "_kernel"
    txt = HDR + f"; @launch grid=(256,1,1) block=(256,1,1) lds={LDS1}\n" + '.amdgcn_target "amdgcn-amd-amdhsa--gfx950"\n.text\n'
    txt += kernel_open(k)
    post = f"L_code_end:\n.set CODE_SIZE, L_code_end - {k} - 256\n"
    body = kernel().rstrip("\n").split("\n")
    if Opt.al:
        body, nn, ne = align.align(txt, body, post)
    txt += "\n".join(body) + "\n" + post
    txt += '.section .rodata,"a"\n' + kernel_desc(k, 512, 256)
    open(fname, "w").write(txt)

if __name__ == "__main__":
    out = sys.argv[1] if len(sys.argv) > 1 else "cdna_kernels/" + NAME + ".s"
    for kv in sys.argv[2:]:
        k, v = kv.split("=")
        cur = getattr(Opt, k)
        if isinstance(cur, bool): v = v == "1"
        elif isinstance(cur, int): v = int(v)
        else: v = (" " + v.replace("+", " ")) if v else ""
        setattr(Opt, k, v)
    build(out)
```

```python
import sys, math, struct, re
sys.path.insert(0, "tools")
from asmlib import *
from sched import *
import hazard, waits, align

def f2u(x): return struct.unpack("<I", struct.pack("<f", x))[0]
SCALE = math.log2(math.e) / math.sqrt(128.0)

class Opt:
    stamps = False
    clk = False
    trace = False
    nt_kv = " nt"
    nt_x = " nt"
    st_o = " sc1"
    ld_o = " sc1"
    ld_wo = " sc1"
    st_out = ""
    delay = 4
    ldscost = 8
    poll_ks = 9
    bpos = 3
    al = True
    rot = 1
    code_pf = True
    thr = 32
    ldgap = 8
    sm = 2
    spos = 0
    ssch = " 12,2,2,2,2"
    sig_ks = 6
    se = False
    dbg = False
    wsb = 0
    qord = 0
    och = 2
    bspan = 50
    bg = 134
    sord = 0
    fgap = 6
    nfl = 26
    pre_x = 2

def vq(b): return f"v[{b}:{b+3}]"
def aq(b): return f"a[{b}:{b+3}]"
MF = "v_mfma_f32_16x16x32_bf16"
MF32 = "v_mfma_f32_32x32x16_bf16"

def pstamp(a, k, early=False):
    if Opt.se and k == 1 and not early: k = 5
    elif Opt.se and 1 <= k <= 5 and not early: return
    if early and not Opt.se: return
    if Opt.stamps: a(f"{'s_memtime' if Opt.clk else 's_memrealtime'} s[{72+2*k}:{73+2*k}]")
def pdump(a, ws, n, rec):
    a("s_waitcnt lgkmcnt(0)")
    for k in range(16): a(f"v_mov_b32 v{32+k}, s{72+2*min(k, n-1)}")
    a(f"s_lshl_b32 s48, s{rec}, 6\ns_add_u32 s48, s48, {STAMP_OFF + 65536}\nv_mov_b32 v48, s48")
    a("v_cmp_eq_u32 vcc, 0, v0\ns_and_saveexec_b64 s[46:47], vcc")
    a(f"s_cbranch_execz L_pd")
    for k in range(4): a(f"global_store_dwordx4 v48, v[{32+4*k}:{35+4*k}], s[{ws}:{ws+1}] offset:{16*k}")
    a("s_waitcnt vmcnt(0)")
    a.label("L_pd")
    a("s_mov_b64 exec, s[46:47]")

def fix_hazards(lines, prefix=()):
    out = list(prefix)
    npre = len(out)
    for l in lines:
        while True:
            win = out[-26:] + [l]
            new = hazard.check(win)[len(hazard.check(win[:-1])):]
            if not new: break
            need = max(int(m.group(1)) - int(m.group(2)) for m in (re.search(r"need (\d+) have (\d+)", e) for e in new))
            out.append(f"s_nop {need-1}")
        out.append(l)
    return out[npre:]

def flat(items):
    r = []
    for (t, c) in items: r += t.split("\n")
    return r

def spread(fl, items, lo, hi, prio):
    prev = None
    n = len(items)
    for k, (txt, cost) in enumerate(items):
        p = lo + (k * (hi - lo + 1)) // n
        nx = max(p, lo + ((k + 1) * (hi - lo + 1)) // n - 1)
        f = F(txt, cost, p, nx, deps=[prev] if prev else [], prio=prio + k, depgap=1 if (hi - lo + 1) >= n else 0)
        fl.append(f); prev = f

def weave(main, extra, every, start=0):
    out = []; extra = list(extra)
    for k, l in enumerate(main):
        out.append(l)
        if k >= start and (k - start) % every == every - 1 and extra: out.append(extra.pop(0))
    return out + extra

VKA, VVA, VDA, VDB, VXD, VXA = 4, 8, 16, 20, 24, 28
VPK, VPV = 240, 244
VOD, VSR, VSW = 24, 25, 27
def VRC(nq): return [26, 28, 30, 20, 22] if nq == 5 else [26, 28, 30, 72]
VPA, VPD = 29, 31
S0, P0, NM0, QLO, QTOP = 32, 56, 76, 96, 176
A_O, A_K, A_V, A_L, A_ONES, A_Z = 0, 160, 192, 224, 244, 248
A_X, A_W = 96, 176
XB, XBUF = 65536, 40960
XW = 20480
FLAG = XB + 2 * XBUF
LDS1 = FLAG + 64
sWAVE = 3
sDOFF, sINC0, sINC1, sXOFF, sM0X, sCNT, sHEAD, sREDO, sLAST, sEV = 30, 31, 32, 33, 34, 35, 36, 37, 26, 27
sSC = 38
sT0, sT1, sOOFF, sTHR = 48, 49, 50, 51
sG1, sG2, sG3 = 52, 53, 54
sDBG, sOUT, sWS = 56, 58, 60
sBR, sB1, sH0, sB2, sQG, sN4 = 62, 63, 64, 65, 66, 67
sWO = 68
sHO, sHW = 70, 71
sRAW, sROT, sMH, sML = 0, 1, 44, 45
sSO, sSX, sWB = 68, 69, 46
PAD = 256
TS, WN = 131072 + PAD, 0x100000 + PAD
WOP = (2 * 8 * 19 + 2) * TS
FLW = WOP + 8 * WN + PAD
def SM(): return [((0, 1, 2, 0), 3, (7, 6, 6, 0)), ((0, 5, 10, 15), 1, (5, 5, 5, 4)), ((0, 1, 2, 18), 3, (6, 6, 6, 1))][Opt.sm]
def VWR(nq): return (2, 3) if nq == 5 else (252, 253)
def VWA(nq): return 20 if nq == 5 else 248

def O(i, dt): return aq(A_O + (i * 8 + dt) * 4)
def Q(i, s, base=QTOP): return vq(base + (i * 4 + s) * 4)
def Sreg(i, t): return S0 + (i % 3) * 8 + t * 4
def PT(i, slot=0): return P0 + 4 * i if i < 4 else 16 + 4 * (slot % 2)
VIX = 74
def VKB(nq): return 72 if nq == 5 else 92
ZQ = aq(A_Z)

def acc_loc(eta, i, s):
    fi = i * 4 + s
    if eta == 0: return ("v", 32 + 8 * (8 + fi))
    if fi >= 12: return ("v", 32 + 8 * (fi - 12))
    return ("a", 8 * fi)
def acc(eta, i, nt):
    f, b = acc_loc(eta, i, nt // 2)
    b += (nt % 2) * 4
    return f"{f}[{b}:{b+3}]"

def doff_update():
    return [f"s_add_u32 s{sT1}, s{sRAW}, s{sROT}", f"s_and_b32 s{sT1}, s{sT1}, s{sML}", f"s_and_b32 s{sDOFF}, s{sRAW}, s{sMH}", f"s_or_b32 s{sDOFF}, s{sDOFF}, s{sT1}"]
def ring_dma(slot, inc, tag=0):
    res = []
    for g in range(4):
        srd = "s[12:15]" if g < 2 else "s[16:19]"
        vb = VDA if g < 2 else VDB
        for j in range(4):
            t = ""; c = 4
            so = f"s{sDOFF}" if g == 0 else f"s{sT1}"
            if j == 0:
                t = f"s_mov_b32 m0, {slot*16384 + g*4096}\n"
                t += f"s_add_u32 s{sT1}, s{sDOFF}, s{sG1 + g - 1}\n" if g else f"s_add_u32 s{sRAW}, s{sRAW}, {inc}\n"
                c = 8
            t += f"buffer_load_dwordx4 v{vb+j}, {srd}, {so} offen offset:{j*1024}{Opt.nt_kv} lds ; tag=R:{tag}"
            res.append((t, c))
    res.append(("\n".join(doff_update()), 8))
    return res

def x_dma(nq, buf, tag, js=None):
    res = []
    js = list(range(2 * nq)) if js is None else js
    for j in js:
        G, jj = j // 4, j % 4
        t = ""; c = 4
        if jj == 0 or j == js[0]:
            t = f"s_add_u32 m0, s{sM0X}, {buf*XBUF + G*4096}\ns_add_u32 s{sT0}, s{sXOFF}, {G*32768}\n"; c = 8
        t += f"buffer_load_dwordx4 v{VXD+jj}, s[8:11], s{sT0} offen offset:{jj*1024}{Opt.nt_x} lds ; tag=X:{tag}"
        if j == 2 * nq - 1:
            t += f"\ns_add_u32 s{sXOFF}, s{sXOFF}, 128"; c = 8
        res.append((t, c))
    return res

def wo_reads(nq):
    return [f"ds_read_b64_tr_b16 a[{A_V + f*4 + t*2}:{A_V + f*4 + t*2 + 1}], v{VWR(nq)[(f//2)%2]} offset:{(f//4)*4096 + t*2048 + (f%2)*8}" for f in range(8) for t in range(2)]
def wo_stores():
    return [f"buffer_store_dwordx4 {aq(A_V + f*4)}, v{VOD}, s[20:23], s{sHW if f < 4 else sHO} offen offset:{(f%4)*1024}{Opt.st_o}" for f in range(8)]

def w_reads(nq, slot, nt):
    r = []
    for kk in range(2):
        for h in range(2):
            b = A_W + (nt % 4) * 8 + kk * 4 + h * 2
            r.append(f"ds_read_b64_tr_b16 a[{b}:{b+1}], v{VWA(nq) + nt//2} offset:{slot*16384 + kk*8192 + h*1024 + (nt%2)*8}")
    return r
def x_reads(nq, xset, buf):
    r = []
    for i in range(nq):
        for kk in range(2):
            b = A_X + xset * 40 + (i * 2 + kk) * 4
            r.append(f"ds_read_b128 a[{b}:{b+3}], v{VXA+kk} offset:{buf*XBUF + i*2048}")
    return r
def k_reads(slot):
    r = []
    for t in range(2):
        for s in range(4):
            b = A_K + (t * 4 + s) * 4
            r.append(f"ds_read_b128 a[{b}:{b+3}], v{VKA+s} offset:{slot*16384 + t*4096}")
    return r

def qproj_unit(nq, u):
    slot, eta, xset = u % 4, u % 2, (u // 2) % 2
    G = 2 * nq
    mf = []
    for nt in range(8):
        for j in range(2 * nq):
                i, kk = (j // 2, j % 2) if Opt.qord == 0 else (j % nq, j // nq)
                if Opt.qord == 2 and kk: i = nq - 1 - i
                c = acc(eta, i, nt)
                mf.append(f"{MF} {c}, {aq(A_W + (nt%4)*8 + kk*4)}, {aq(A_X + xset*40 + (i*2+kk)*4)}, {c}")
    n = len(mf)
    fl = []
    for nt in range(8):
        n2 = nt + 2
        rs = w_reads(nq, slot, n2) if n2 < 8 else w_reads(nq, (slot + 1) % 4, n2 - 8)
        for k, r in enumerate(rs):
            fl.append(F(r, 4, nt * G + 1, nt * G + 4, prio=k))
    pre = {}
    if eta == 1:
        pre[3 * G] = [f"s_waitcnt vmcnt(?X:{u//2 + 1})"]
        for k, r in enumerate(x_reads(nq, xset ^ 1, xset ^ 1)):
            fl.append(F(r, 4, 3 * G + 2, 5 * G + 3, prio=100 + k))
    items = x_dma(nq, xset, u // 2 + 2, list(range(eta * nq, eta * nq + nq)))
    if nq == 4:
        pre[6 * G] = [f"s_waitcnt vmcnt(?R:{u+1}) lgkmcnt(0)", "s_barrier"]
        items += ring_dma((slot - 1) % 4, f"s{sINC0 + (1 - eta)}", u + 3)
        spread(fl, items, 0, n - 1, 200)
    else:
        pre[6 * G] = ["s_waitcnt vmcnt(?R:1) lgkmcnt(0)" if u == 0 else "s_waitcnt lgkmcnt(0)", "s_barrier"]
        spread(fl, items, 3, 5 * G, 200)
    out, over = schedule(mf, fl, 8, pre)
    return out

def attn_step(nq, slot, store):
    nslot = (slot + 1) % 4
    w3 = nq == 4
    mf = []
    for i in range(nq):
        for j in range(8):
                t, s = (j // 4, j % 4) if Opt.sord == 0 else (j % 2, j // 2)
                d = vq(Sreg(i, t))
                c = vq(NM0 + i * 4) if s == 0 else d
                mf.append(f"{MF} {d}, {aq(A_K + (t*4+s)*4)}, {Q(i,s)}, {c}")
    nA = len(mf)
    first_pv = []
    for i in range(nq):
        first_pv.append(len(mf))
        for dt in range(8):
            mf.append(f"{MF} {O(i,dt)}, {aq(A_V + dt*4)}, {vq(PT(i, slot))}, {O(i,dt)}")
        if i % 2 or (i == 4 and slot % 2):
            b = PT(i & 6)
            mf.append(f"v_smfmac_f32_16x16x64_bf16 {aq(A_L + (i//2)*4)}, {aq(A_ONES)}, v[{b}:{b+7}], v{VIX}")
    n = len(mf)
    fl = []
    so = slot * 16384
    for dt in range(8):
        for t in range(2):
            b = A_V + dt * 4 + t * 2
            fl.append(F(f"ds_read_b64_tr_b16 a[{b}:{b+1}], v{VVA+dt} offset:{so + 8192 + t*4096}", 4, 0, 12, prio=dt))
    for i in range(nq):
        dl = first_pv[i]
        for t in range(2):
            dlc = dl - 3
            if i + 3 < nq: dlc = min(dlc, 8 * (i + 3) + (4 if Opt.sord == 0 else 1) * t - 1)
            es = []
            for r in range(4):
                v = Sreg(i, t) + r
                e = F(f"v_exp_f32 v{v}, v{v}", 8, i * 8 + (t * 4 + 3 if Opt.sord == 0 else 6 + t) + Opt.delay, dlc - 1, prio=i * 8 + t * 4 + r)
                es.append(e); fl.append(e)
            for h in range(2):
                v = Sreg(i, t) + 2 * h
                fl.append(F(f"v_cvt_pk_bf16_f32 v{PT(i, slot)+t*2+h}, v{v}, v{v+1}", 4, 0, dlc, deps=es[2*h:2*h+2], prio=i * 8 + t * 4 + 2*h + 1))
    for k, r in enumerate(k_reads(nslot)):
        fl.append(F(r, Opt.ldscost if (nq == 5 and not (store and slot == 0)) else 4, nA, n - 10, prio=500 + k))
    pre = {0: ["s_waitcnt lgkmcnt(0)"]}
    vmw = "vmcnt(32) " if w3 else ""
    if w3 and store == 2:
        def lin(lds, off, cnt):
            return [((f"s_mov_b32 m0, {lds + j*1024}\ns_mov_b32 s{sT1}, {off + j*1024}\n" if j % 4 == 0 else "") +
                     f"buffer_load_dwordx4 v{VOD}, s[4:7], s{sT1} offen offset:{(j%4)*1024}{Opt.ld_wo} lds", 8 if j % 4 == 0 else 4) for j in range(cnt)]
        nx = 8 * Opt.pre_x
        if nx: spread(fl, lin(XB + slot * XW, slot * 65536 + 0x40000, nx), 0, nA - 2, 550)
        spread(fl, lin(slot * 16384, slot * 65536 + 16384, 16), nA, n - 1, 600)
        vmw = f"vmcnt({min(63, 32 + nx * (slot + 1))}) " if slot < 3 else ""
    elif w3: spread(fl, ring_dma(slot, "0x2000"), nA, n - 1, 600)
    pre[nA] = [f"s_waitcnt {vmw}lgkmcnt(0)", "s_barrier"]
    if store == 1:
        stride = SM()[1]
        if slot == 0:
            rs = [F(f"ds_read_b128 {vq(QLO + 4*q)}, v{VSR} offset:{q*1024}", 4, nA + 2, n - 8, prio=700 + q) for q in range(4)]
            fl += rs + [F(f"v_add_u32 v{VSR}, {stride*4096}, v{VSR}", 4, 0, n - 1, deps=rs, prio=800)]
        qs = [{0: [], 1: [0, 1], 2: [2, 3], 3: []}, {0: [], 1: [0, 1], 2: [2], 3: [3]}][Opt.spos][slot]
        for k, q in enumerate(qs):
            pos = 14 + k * (n // 2)
            t = f"buffer_store_dwordx4 {vq(QLO + 4*q)}, v{VOD}, s[20:23], s{sSO} offen offset:{q*1024}{Opt.st_o}"
            fl.append(F(t + (f"\ns_add_u32 s{sSO}, s{sSO}, {stride*TS}" if q == 3 else ""), 4 + 4 * (q == 3), pos, pos + 12, prio=700 + k))
    out, over = schedule(mf, fl, 8, pre)
    return out

def maxpass_mf(nq, qbase):
    return [f"{MF} {vq(PT(i))}, {aq(A_K + s*4)}, {Q(i, s, qbase)}, {vq(PT(i)) if s else 0}" for i in range(nq) for s in range(4)]
def max_finish(nq):
    L = []
    for sw in ("v_permlane32_swap_b32", "v_permlane16_swap_b32"):
        for i in range(nq): L.append(f"v_mov_b32 v{PT(i)+1}, v{PT(i)}")
        for i in range(nq): L.append(f"{sw} v{PT(i)}, v{PT(i)+1}")
        for i in range(nq): L.append(f"v_max_f32 v{PT(i)}, v{PT(i)}, v{PT(i)+1}")
    for i in range(nq):
        for r in range(4): L.append(f"v_xor_b32 v{NM0+i*4+r}, 0x80000000, v{PT(i)}")
    return L
def k4_reads(nq, f, b): return [f"ds_read_b128 {f}[{b+4*s}:{b+4*s+3}], v{VKB(nq)} offset:{s*64}" for s in range(4)]
def k4_mf(nq, f, b):
    return [f"{MF} {vq(NM0 + 4*i)}, {f}[{b+4*s}:{b+4*s+3}], {Q(i, s)}, {vq(NM0 + 4*i) if s else 0}" for i in range(nq) for s in range(4)]
def k4_max(nq):
    n = [NM0 + 4 * i for i in range(nq)]
    L = [f"v_max3_f32 v{b}, v{b}, v{b+1}, v{b+2}" for b in n] + [f"v_max_f32 v{b}, v{b}, v{b+3}" for b in n]
    return L + [f"v_pk_mul_f32 v[{b+r}:{b+r+1}], v[{b}:{b+1}], -1.0 op_sel_hi:[0,0]" for r in (2, 0) for b in n]
def shadow(plain, mfs):
    out = []; plain = list(plain)
    for m in mfs:
        out.append(m)
        c = 24 if "32x32" in m else 8
        while c > 0 and plain:
            out.append(plain.pop(0)); c -= 4 if out[-1].startswith(("v_", "s_")) else 16
    return out + plain
def share(items, n, k):
    return items[k * len(items) // n:(k + 1) * len(items) // n]
def zero16(b, z=ZQ): return f"{MF32} a[{b}:{b+15}], {z}, {z}, 0"
def zero_L(nq): return [zero16(A_L)]

def _qs(f, b, n): return [(f, b + 4 * k) for k in range(n)]
AQ = [_qs("v", QLO + 16, 8), _qs("v", QLO + 48, 8), _qs("a", 160, 8), _qs("v", 32, 8)]
BQ = [_qs("v", QLO, 4) + _qs("a", 192, 16), _qs("v", QTOP, 20)]
sPR = 92
def _q(t): return f"{t[0]}[{t[1]}:{t[1]+3}]"
def fa(st, nu): return _q(AQ[st][nu])
def fb(hb, st, i): return _q(BQ[hb][st * 5 + i])
VO2, VW2, VRW, VRR, VXR = 4, 9, 13, 16, 19
def ld_a(st, nu, tag):
    so = f"s{sHW}" if st == 0 else f"s{sG1 + st - 1}"
    return f"buffer_load_dwordx4 {fa(st, nu)}, v{VW2 + nu//2}, s[4:7], {so} offen offset:{(nu%2)*1024}{Opt.ld_wo} ; tag=A{st}{nu}:{tag}"
def ld_b(hb, st, i, tag):
    return f"buffer_load_dwordx4 {fb(hb, st, i)}, v{VO2 + i}, s[8:11], s{sHO} offen offset:{st*1024}{Opt.ld_o} ; tag=B{st}{i}:{tag}"
def op_wsoff():
    return [f"s_add_u32 s{sG1 + st - 1}, s{sHW}, {st*8192}" for st in range(1, 4)]
def out_off():
    return [f"s_mul_i32 s{sT0}, s{sB2}, 304", f"s_mul_i32 s{sT1}, s{sQG}, 80", f"s_add_u32 s{sT0}, s{sT0}, s{sT1}", f"s_lshl_b32 s{sT0}, s{sT0}, 11"]
def op_setup():
    L = []
    for i in range(5): L.append(f"v_add_u32 v{VO2+i}, {i*TS + PAD}, v{VOD}")
    for p in range(4):
        L += [f"s_and_b32 s{sT0}, s{sPR+p}, 0x1fff", f"v_add_u32 v{VW2+p}, s{sT0}, v{VOD}"]
    L += [f"s_lshl_b32 s{sHO}, s{sWAVE}, 13", f"s_lshl_b32 s{sHW}, s{sWAVE}, 16"]
    return L
def b_order():
    c = Opt.och
    return [(g * c + j % c, j // c, 40 * c * g + 1 + j * (40 * c * Opt.bspan // 100) // (5 * c)) for g in range(4 // c) for j in range(5 * c)]
def op_loads0(): return [ld_b(0, st, i, 0) for st, i, g in b_order()]
sOT = 30
def o_plan():
    when = [t - 1 for t, n in enumerate(int(x) for x in Opt.ssch.split(",")) for _ in range(n)]
    assert len(when) == 20
    bq = {st * 5 + i: g // 40 for st, i, g in b_order()}
    slots = sorted(range(20), key=lambda j: bq[j]); spare = [64, 68, 76, 80, 84, 88, 92]
    plan = []
    for t in when:
        ok = [j for j in slots if bq[j] > t]
        if ok: plan.append((QTOP + 4 * ok[0], t)); slots.remove(ok[0])
        else: plan.append((spare.pop(0), t))
    return plan
def st_o(k):
    return f"buffer_store_dwordx4 {vq(o_plan()[k][0])}, v{VOD}, s[20:23], s{sOT + k//4} offen offset:{(k%4)*1024}{Opt.st_o} ; tag=S:0"
E1 = {}
def op_advance():
    return [f"s_add_u32 s{sHW}, s{sHW}, 0x40000", f"s_cmp_ge_u32 s{sHW}, 0x100000", f"s_cselect_b32 s{sT0}, {0x100000 - 0x8000}, 0",
            f"s_sub_u32 s{sHW}, s{sHW}, s{sT0}", f"s_lshr_b32 s{sHO}, s{sHW}, 3"] + op_wsoff()

def own_word(kind):
    L = [f"s_lshl_b32 s{sT0}, s{sBR}, 3", f"s_add_u32 s{sT0}, s{sT0}, s{sB1}", f"s_lshl_b32 s{sT0}, s{sT0}, 7", f"s_lshl_b32 s{sT1}, s{sH0}, 1",
         f"s_add_u32 s{sT0}, s{sT0}, s{sT1}", f"s_add_u32 s{sT0}, s{sT0}, {FLW + (64 if kind == 2 else 0)}"]
    L += [f"v_lshl_add_u32 v1, v{VOD}, 2, s{sT0}", f"v_mov_b32 v2, {16 if kind else 0}", f"s_mov_b64 exec, {1 if kind else 3}"]
    return L + [f"global_store_dword v1, v2, s[{sWS}:{sWS+1}] sc0 sc1", "s_mov_b64 exec, -1"]
def signal(a, kind):
    if kind:
        for l in own_word(kind): a(l)
        return
    a(f"s_lshl_b32 s{sT0}, s{sBR}, 3\ns_add_u32 s{sT0}, s{sT0}, s{sB1}\ns_lshl_b32 s{sT0}, s{sT0}, 2")
    a(f"v_mov_b32 v1, s{sT0}\nv_mov_b32 v2, 1\ns_mov_b64 exec, 1")
    a(f"global_atomic_add v1, v2, s[{sDBG}:{sDBG+1}]{' offset:128' if Opt.dbg else ''} sc1\ns_mov_b64 exec, -1")
def poll_issue(a, kind):
    if kind == 0:
        a(f"s_lshl_b32 s{sT0}, s{sBR}, 5\ns_add_u32 s{sT0}, s{sT0}, {128 if Opt.dbg else 0}\nv_and_b32 v{VPA}, 7, v0\nv_lshl_add_u32 v{VPA}, v{VPA}, 2, s{sT0}")
    else:
        a(f"s_lshl_b32 s{sT0}, s{sBR}, 3\ns_add_u32 s{sT0}, s{sT0}, s{sB2}\ns_lshl_b32 s{sT0}, s{sT0}, 7\ns_add_u32 s{sT0}, s{sT0}, {FLW + (64 if kind == 2 else 0)}")
        a(f"v_and_b32 v{VPA}, 15, v0\nv_lshl_add_u32 v{VPA}, v{VPA}, 2, s{sT0}")
    b = sWS if kind else sDBG
    a(f"global_load_dword v{VPD}, v{VPA}, s[{b}:{b+1}] sc0 sc1")
def poll_wait(a, kind, lbl, done, first_wait="vmcnt(0)"):
    b = sWS if kind else sDBG
    a(f"s_mov_b32 s{sT1}, 0x20000\ns_waitcnt {first_wait}")
    a.label(lbl)
    a(f"v_cmp_gt_u32 vcc, 16, v{VPD}\ns_sub_u32 s{sT1}, s{sT1}, 1\ns_cmp_eq_u32 s{sT1}, 0\ns_cbranch_scc1 {done}")
    a(f"s_nop 2\ns_cbranch_vccz {done}")
    a(f"global_load_dword v{VPD}, v{VPA}, s[{b}:{b+1}] sc0 sc1\ns_sleep 4\ns_waitcnt vmcnt(0)\ns_branch {lbl}")

def oproj(a):
    a.label("L_op")
    pstamp(a, 9)
    n3 = sum(l.startswith("buffer_") for l in E1[4])
    pro = [f"s_lshl_b32 s{sT0}, s{sWAVE}, 14"] + [f"v_add_u32 v{VRW+p}, s{sT0}, v{VW2+p}" for p in range(4)] + [f"s_waitcnt vmcnt({n3})", "s_barrier"]
    if Opt.pre_x: pro = [f"s_mul_i32 s{sT1}, s{sWAVE}, {XW}", f"s_add_u32 s{sT1}, s{sT1}, {XB}"] + [f"v_add_u32 v{VXR+p}, s{sT1}, v{VW2+p}" for p in range(4)] + pro
    pro += [f"ds_read_b128 {fa(st, nu)}, v{VRW + nu//2} offset:{(st-2)*8192 + (nu%2)*1024}" for nu in range(8) for st in (2, 3)]
    pro += op_advance() + [f"s_mov_b32 s{sCNT}, 6"]
    def order(c, iouter=False):
        if iouter: return [(st, 2 * p + e, i) for p in range(4) for i in range(5) for e in range(2) for st in range(4)]
        return [(g * c + j, nu, i) for g in range(4 // c) for nu in range(8) for i in range(5) for j in range(c)]
    def mfs(od, hb, tag):
        mf = [f"{MF} {aq((i*8+nu)*4)}, {fa(st, nu)}, {fb(hb, st, i)}, {0 if tag == 0 and st == 0 else aq((i*8+nu)*4)}" for st, nu, i in od]
        seen = set(f"A{st}{nu}" for st in range(4) for nu in range(8) if tag == 0 or (tag == 1 and st < Opt.pre_x))
        pre = {}
        run = 4 if od[0][2] == od[3][2] else 10
        for k in range(0, 160, run):
            new = [t for st, nu, i in od[k:k + run] for t in (f"A{st}{nu}", f"B{st}{i}") if t not in seen]
            seen.update(new)
            if new: pre[k] = [f"s_waitcnt vmcnt(?{'|'.join(dict.fromkeys(new))}:{tag})"]
        return mf, pre
    def half(hb, tag, peel=False):
        od = order(Opt.och)
        mf, pre = mfs(od, hb, tag)
        fl = []
        for st, i, g in b_order(): fl.append(F(ld_b(hb ^ 1, st, i, tag + 1), 4, g, g + 3, prio=g))
        for q in range(4):
            ks = [k for k in range(20) if o_plan()[k][1] == tag * 4 + q] if peel else []
            for j, k in enumerate(ks): fl.append(F(st_o(k), 4, 40 * q + 6 + 30 * j // len(ks), min(40 * q + 39, 40 * q + 10 + 30 * j // len(ks)), prio=200))
            pre[40 * q] = [f"@HOOK{hb}{q}@:"] + pre.get(40 * q, [])
        for st in range(4):
            for nu in range(8):
                t = ld_a(st, nu, tag + 1)
                if tag == 0 and st < Opt.pre_x: t = f"ds_read_b128 {fa(st, nu)}, v{VXR + nu//2} offset:{st*8192 + (nu%2)*1024}"
                g = max(k for k, o in enumerate(od) if o[:2] == (st, nu)) + 1 + (st % Opt.och) * (2 if nu < 7 else 0)
                fl.append(F(t, 4, min(159, g), min(159, g + 3), prio=100 + nu))
        out, over = schedule(mf, fl, 4, pre)
        return out + op_advance() + ([] if peel else [f"s_sub_u32 s{sCNT}, s{sCNT}, 1"])
    od = order(4, True)
    mf, tpre = mfs(od, 1, 7)
    fl = []
    RQ = [b for f, b in AQ[0][:6] + AQ[1][:6] + BQ[0][:4] + AQ[0][6:] + AQ[1][6:] + BQ[1][:10]]
    AC = [48, 64, 72, 80, 88]
    for g, (st, nu, i) in enumerate(od):
        if st < 3: continue
        b = (i * 8 + nu) * 4
        if nu < 6: fl.append(F(f"ds_write_b128 v{VRW + nu//2}, a[{b}:{b+3}] offset:{(i*2 + nu%2)*1024}", 8, max(g + 6, 12), max(g + 8, 16)))
        elif g + 6 < 159:
            for r in range(4): fl.append(F(f"v_accvgpr_read_b32 v{AC[i] + (nu%2)*4 + r}, a{b+r}", 4, g + 5, 159, prio=50))
    misc = []
    for p in range(1, 4):
        misc += [f"s_add_u32 s{sT0}, s{sWAVE}, {p}", f"s_and_b32 s{sT0}, s{sT0}, 3", f"s_mul_i32 s{sT0}, s{sT0}, 30720",
                 f"s_add_u32 s{sT0}, s{sT0}, {(p-1)*10240}", f"v_add_u32 v{VRW+p-1}, s{sT0}, v{VOD}"]
    misc += [f"s_mul_i32 s{sT0}, s{sWAVE}, 30720", f"v_add_u32 v{VRR}, s{sT0}, v{VOD}",
             "v_and_b32 v3, 15, v0", "v_and_b32 v1, 48, v0",
             *out_off(), f"s_lshl_b32 s{sT1}, s{sBR}, 10", f"s_add_u32 s{sT0}, s{sT0}, s{sT1}", f"s_lshl_b32 s{sT1}, s{sN4}, 8",
             f"s_add_u32 s{sT0}, s{sT0}, s{sT1}", f"s_lshl_b32 s{sT1}, s{sWAVE}, 6", f"s_add_u32 s{sT0}, s{sT0}, s{sT1}",
             "v_lshl_add_u32 v2, v3, 11, v1", f"v_add_u32 v2, s{sT0}, v2",
             f"s_mov_b32 s16, s{sOUT}", f"s_mov_b32 s17, s{sOUT+1}", f"s_mov_b32 s18, {8*304*1024*2}"]
    spread(fl, [(m, 4) for m in misc], 0, 2 * len(misc), 10)
    BG = Opt.bg
    rds = []
    for i in range(5):
        for p in range(3):
            for e in range(2):
                b = RQ[i * 6 + p * 2 + e]
                rds.append(f"ds_read_b128 v[{b}:{b+3}], v{VRR} offset:{p*10240 + (i*2+e)*1024}")
    ne = min(16, 160 - BG)
    for k, r in enumerate(rds[:ne]): fl.append(F(r, 4, BG + k, BG + k, prio=k))
    tpre[BG] = ["s_waitcnt lgkmcnt(0)", "s_barrier"]
    tail, over = schedule(mf, fl, 8, tpre)
    assert max(k for k, l in enumerate(tail) if "ds_write" in l) < tail.index("s_barrier")
    done = set(tail)
    tail += rds[ne:]
    for i in range(5):
        for e in range(2):
            for r in range(4):
                l = f"v_accvgpr_read_b32 v{AC[i] + e*4 + r}, a{(i*8+6+e)*4+r}"
                if l not in done: tail.append(l)
    OF = 32
    for i in range(5):
        if i == 4: tail.append("@LAST@:")
        if i != 1: tail.append(f"s_waitcnt lgkmcnt({min(14, 6 * (4 - i))})")
        for p in range(3):
            for e in range(2):
                for r in range(0, 4, 2):
                    d = AC[i] + e * 4 + r; b = RQ[i * 6 + p * 2 + e] + r
                    tail.append(f"v_pk_add_f32 v[{d}:{d+1}], v[{d}:{d+1}], v[{b}:{b+1}]")
        b = AC[i]; d = OF + i * 4
        tail.append(f"s_mov_b32 s{sT0}, {i*32768}")
        for r in range(4): tail.append(f"v_cvt_pk_bf16_f32 v{d+r}, v{b+2*r}, v{b+2*r+1}")
        tail.append(f"buffer_store_dwordx4 v[{d}:{d+3}], v2, s[16:19], s{sT0} offen{Opt.st_out}")
    tail = waits.insert_lgkm(tail, loop=False)
    per = {f"{t}{st}{j}": 2 for t in "AB" for st in range(4) for j in range(8)}
    peel = waits.insert_lgkm(pro + ["@PEEL@:"] + half(0, 0, True) + half(1, 1, True), loop=False)
    peel = peel[peel.index("@PEEL@:") + 1:]
    body = half(0, 2) + ["@MID@:"] + half(1, 3)
    last = half(0, 6)
    SW = "s_waitcnt vmcnt(?S:0)"
    sk = Opt.sig_ks
    if sk < 8: peel.insert(peel.index(f"@HOOK{sk//4}{sk%4}@:"), SW)
    cut = body[:body.index(f"@HOOK0{sk % 4}@:")] + [SW]
    res = []
    for nq in (4, 5):
        r = waits.resolve_vm([(E1[nq], 1, {}), (pro, 1, {}), (peel, 1, {}), (body, 2, per), (last, 1, {}), (tail, 1, {})])[1:]
        res.append(r + [waits.resolve_vm([(E1[nq], 1, {}), (pro, 1, {}), (peel, 1, {}), (cut, 1, {})])[3][-1:]])
    def cnt(l): return int(re.search(r"vmcnt\((\d+)", l).group(1))
    pro, peel, body, last, tail, swait = [[l1 if (l1 == l2 or cnt(l1) <= cnt(l2)) else l2 for l1, l2 in zip(x, y)] for x, y in zip(*res)]
    for l1, l2 in zip(body, last):
        if "vmcnt" in l1: assert cnt(l1) <= cnt(l2)
    def sig(ret):
        pstamp(a, 10)
        a(f"v_mov_b32 v1, {FLAG + 8}\nv_mov_b32 v2, 1\ns_mov_b64 exec, 1\nds_add_rtn_u32 v3, v1, v2\ns_mov_b64 exec, -1\ns_waitcnt lgkmcnt(0)")
        a(f"v_readfirstlane_b32 s{sT0}, v3\ns_nop 1\ns_cmp_lg_u32 s{sT0}, 3\ns_cbranch_scc1 {ret}")
        signal(a, 2)
    for l in fix_hazards(pro): a(l)
    for e in hazard.check(pro + peel + body + body, "op")[:10]: print(e)
    a("; noalign")
    for l in peel:
        if l == f"@HOOK{sk//4}{sk%4}@:":
            sig("L_or_sig"); a.label("L_or_sig")
        elif not l.startswith("@"): a(l)
    a.label("L_opl")
    ks = Opt.poll_ks
    assert 8 <= ks < 12
    npw = sum(l.startswith("buffer_") for l in body[body.index(f"@HOOK0{ks % 4}@:"):body.index("@HOOK10@:")])
    for l in body:
        if l == "@MID@:":
            a(f"s_cmp_eq_u32 s{sCNT}, 1\ns_cbranch_scc1 L_opt"); continue
        m = re.match(r"@HOOK(\d)(\d)@:", l)
        if not m: a(l); continue
        hb, st = int(m.group(1)), int(m.group(2))
        if (hb, st) == ((ks // 4) % 2, ks % 4):
            a(f"s_cmp_eq_u32 s{sCNT}, {8 - ks // 4}\ns_cbranch_scc1 L_oe_pi"); a.label("L_or_pi")
        if (hb, st) == (0, sk - 8):
            a(f"s_cmp_eq_u32 s{sCNT}, 6\ns_cbranch_scc1 L_oe_sig"); a.label("L_or_sig")
        if (hb, st) == (1, 0):
            a(f"s_cmp_eq_u32 s{sCNT}, 5\ns_cbranch_scc1 L_oe_pw"); a.label("L_or_pw")
    a("s_branch L_opl")
    a.label("L_opt")
    pstamp(a, 13)
    tl = fix_hazards(tail, last[-26:])
    k = max(j for j, l in enumerate(tl) if l.startswith("v_mfma"))
    for l in tl[:k + 1]: a(l)
    a("; align")
    for l in tl[k + 1:]:
        if l == "@LAST@:": a(f"s_cmp_eq_u32 s{sQG}, 3\ns_cbranch_scc1 L_fin")
        else: a(l)
    def side_code():
        a.label("L_oe_pi")
        poll_issue(a, 2)
        a("s_branch L_or_pi")
        if sk >= 8:
            a.label("L_oe_sig")
            a(swait[0])
            sig("L_or_sig")
            a("s_branch L_or_sig")
        a.label("L_oe_pw")
        pstamp(a, 11); pstamp(a, 12)
        poll_wait(a, 2, "L_pw2", "L_or_pw", f"vmcnt({npw})")
    return side_code

def kv_switch():
    return ["s_mov_b32 s12, s24", "s_mov_b32 s13, s25", "s_mov_b32 s14, 0x80000", "s_mov_b32 s16, s28", "s_mov_b32 s17, s29", "s_mov_b32 s18, 0x80000",
            f"s_mov_b32 s{sRAW}, 0", f"s_mov_b32 s{sDOFF}, s{sROT}", f"s_mov_b32 s{sMH}, 0xfffc0000", f"s_mov_b32 s{sML}, 0x3e000",
            f"s_movk_i32 s{sINC0}, 0x2000", f"s_movk_i32 s{sINC1}, 0x2000", f"s_movk_i32 s{sG1}, 0x1000", f"s_mov_b32 s{sG2}, 0", f"s_movk_i32 s{sG3}, 0x1000"]

TRACE = ["s_mov_b32 m0, s47", "s_add_u32 s47, s47, 1", "v_writelane_b32 v73, s98, m0", "v_writelane_b32 v75, s100, m0",
         "s_memrealtime s[98:99]", "s_memtime s[100:101]"]
def variant(a, nq, tag):
    w3 = nq == 4
    RC = VRC(nq)
    pro = ["v_lshrrev_b32 v2, 2, v30", "v_and_b32 v3, 1, v31", "v_lshl_add_u32 v3, v3, 2, v2", "v_bfe_u32 v1, v30, 1, 1", "v_xor_b32 v3, v3, v1",
           "v_lshl_add_u32 v2, v31, 3, v2", "v_lshlrev_b32 v2, 8, v2", "v_and_b32 v1, 1, v30", "v_lshl_add_u32 v2, v1, 4, v2"]
    for s in range(4): pro += [f"v_xor_b32 v1, {2*s}, v3", f"v_lshl_add_u32 v{VWA(nq)+s}, v1, 5, v2"]
    pro += ["v_bfe_u32 v1, v0, 2, 4", "v_lshrrev_b32 v2, 1, v1", "v_and_b32 v3, 3, v0", "v_xor_b32 v2, v2, v3", "v_lshlrev_b32 v2, 4, v2", "v_lshl_add_u32 v2, v1, 7, v2",
            f"v_add_u32 v{VWR(nq)[0]}, s{sM0X}, v2", f"v_xor_b32 v{VWR(nq)[1]}, 64, v{VWR(nq)[0]}"]
    if w3:
        pro += ["v_xor_b32 v1, v30, v31"]
        for j in range(4): pro += [f"v_xor_b32 v2, {4*j}, v1", "v_lshlrev_b32 v2, 4, v2", f"v_lshl_add_u32 v{VPK+j}, v31, 8, v2", f"v_mov_b32 v{VDB+j}, v{VDA+j}"]
        pro += ["v_lshrrev_b32 v2, 1, v30", "v_xor_b32 v2, v2, v31", "v_and_b32 v3, 1, v30", "v_lshlrev_b32 v3, 4, v3"]
        for j in range(4): pro += [f"v_xor_b32 v1, {4*(j%2)}, v2", "v_lshl_add_u32 v1, v1, 5, v3", f"v_lshl_add_u32 v{VPV+j}, v31, 8, v1"]
        pro += [f"v_mov_b32 v1, {FLAG}", "ds_write_b64 v1, v[32:33]", "ds_write_b64 v1, v[32:33] offset:8"]
    pro += ["s_waitcnt vmcnt(?X:0) lgkmcnt(0)", "s_barrier"]
    pro += x_reads(nq, 0, 0) + w_reads(nq, 0, 0) + w_reads(nq, 0, 1) + "\n".join(first_loads()[Opt.nfl:]).split("\n")
    pro += [f"s_mov_b32 s{sCNT}, 4", "s_waitcnt lgkmcnt(0)"]
    body = []
    for u in range(4):
        if u == 1: body.append("@SWITCH@:")
        if u == 2: body += [f"s_cmp_eq_u32 s{sCNT}, 1", "s_cselect_b32 s10, 0, s10"]
        body += qproj_unit(nq, u)
    body = waits.insert_lgkm(body)
    _, pro, body = waits.resolve_vm([("\n".join(first_loads()[:Opt.nfl]).split("\n"), 1, {}), (pro, 1, {}), (body, 4, {"R": 4 if w3 else 0, "X": 2})])
    for l in fix_hazards(pro):
        if "vmcnt" in l: pstamp(a, 4, True)
        a(l)
    pstamp(a, 1)
    for e in hazard.check(body + body, f"q{tag}")[:10]: print(e)
    a.label(f"L_q{tag}")
    a("; noalign")
    a(f"s_cmp_eq_u32 s{sCNT}, 1\ns_cselect_b32 s8, s4, s8\ns_cselect_b32 s9, s5, s9\ns_cselect_b32 s10, s6, s10\ns_cselect_b32 s{sXOFF}, s{sHO}, s{sXOFF}")
    for l in body:
        if l == "@SWITCH@:":
            if w3: a(f"s_cmp_eq_u32 s{sCNT}, 1\ns_cbranch_scc1 L_qs{tag}"); a.label(f"L_qn{tag}")
        else: a(l)
    a(f"s_sub_u32 s{sCNT}, s{sCNT}, 1\ns_cmp_lg_u32 s{sCNT}, 0\ns_cbranch_scc1 L_q{tag}")
    a("; align")
    pstamp(a, 2)
    def scale(sb): return [f"v_pk_mul_f32 v[{sb+r}:{sb+r+1}], v[{sb+r}:{sb+r+1}], s[{sSC}:{sSC+1}]" for r in range(0, 8, 2)]
    def pack(sb, d): return [f"v_cvt_pk_bf16_f32 v{d+r}, v{sb+2*r}, v{sb+2*r+1}" for r in range(3, -1, -1)]
    cv = ["v_and_b32 v1, 63, v0", f"v_lshlrev_b32 v{VOD}, 4, v1", f"s_add_u32 s{sHO}, s{sHW}, 8192", "s_waitcnt lgkmcnt(0)"] + wo_reads(nq)[:8]
    side = wo_reads(nq)[8:] + ([t for t, c in ring_dma(3, "0x2000")] if w3 else []) + k_reads(0)
    t0s, stride, cnts = SM()
    side += [f"v_add_u32 v{VSW}, s96, v{VOD}\nv_add_u32 v{VSR}, s97, v{VOD}", f"s_add_u32 s4, s{sWS}, s{sWB}\ns_addc_u32 s5, s{sWS+1}, 0\ns_mov_b32 s6, 0x100000",
             f"s_add_u32 s8, s{sWS}, s55\ns_addc_u32 s9, s{sWS+1}, 0\ns_mov_b32 s10, s101\ns_mov_b32 s{sCNT}, 8"]
    if w3: side += ["\n".join(own_word(0))]
    ks = [k for k in range(27, -1, -1) if (k - 8 if k >= 8 else k + 12) // 4 < nq]
    nb = len(ks) // 4
    zs = [zero16(b) for b in range(96, 32 * nq, 16)]
    ws = wo_stores()
    for j in range(nb):
        for k in ks[4*j:4*j+4]: cv += scale(32 + 8 * k)
        pl = sum((pack(32 + 8 * k, 144 + 4 * k) for k in ks[4*j:4*j+4]), [])
        cv += shadow(weave(pl, share(side, nb, j), 2) + ([ws.pop(0)] if j >= nb - 3 else []), zs[j-1:j] if j else [])
    cv += ["v_and_b32 v1, 3, v0", "v_xor_b32 v2, v31, v1", "v_lshlrev_b32 v2, 4, v2", f"v_lshl_add_u32 v{VKB(nq)}, v1, 8, v2"] + k4_reads(nq, "v", 48)
    cv += [f"v_bfe_i32 v{VIX}, v0, 0, 1", f"v_and_b32 v{VIX}, 0xaaaaaaaa, v{VIX}", f"v_or_b32 v{VIX}, 0x44444444, v{VIX}"]
    def rd(j): return [f"v_accvgpr_read_b32 v{32+r}, a{16*j+r}" for r in range(16)] if j < 6 else k4_max(nq)
    cv += rd(0)
    mp = k4_mf(nq, "v", 48)
    for j in range(6):
        cv += scale(32) + scale(40) + (["s_waitcnt lgkmcnt(0)"] if j == 0 else [])
        cv += shadow(ws[j:j+1] + pack(32, QLO + 8 * j) + pack(40, QLO + 8 * j + 4) + rd(j + 1), mp[4*j:4*j+4] + [zero16(16 * j)] if j < 5 else [zero16(16 * j)])
    cv = waits.insert_lgkm("\n".join(cv).split("\n"), loop=False)
    cv = "\n".join(cv).split("\n")
    if Opt.trace and not w3: cv += ["s_mov_b32 s47, 0", "v_mov_b32 v73, 0", "v_mov_b32 v75, 0"]
    for l in fix_hazards(cv, body[-26:]): a(l)
    pstamp(a, 3)
    a(f"s_branch L_loop{tag}")
    if w3:
        a.label(f"L_qs{tag}")
        for l in kv_switch(): a(l)
        for j in range(4): a(f"v_mov_b32 v{VDA+j}, v{VPK+j}\nv_mov_b32 v{VDB+j}, v{VPV+j}")
        a(f"s_branch L_qn{tag}")
    def og_rd(j): return [f"v_accvgpr_read_b32 v{32 + 16*(j%2) + r}, a{A_O + 16*j + r}" for r in range(16)] if j < 2 * nq else []
    def og_mul(j):
        tb = 32 + 16 * (j % 2); rc = RC[j // 2]
        return [f"v_pk_mul_f32 v[{tb+r}:{tb+r+1}], v[{tb+r}:{tb+r+1}], v[{rc}:{rc+1}] op_sel_hi:[1,0]" for r in range(0, 16, 2)]
    def og_cvt(k, d):
        tb = 32 + 8 * (k % 4)
        return [f"v_cvt_pk_bf16_f32 v{d+r}, v{tb+2*r}, v{tb+2*r+1}" for r in range(4)]
    def steps(store):
        body = []
        for st in range(4):
            if Opt.trace and not w3: body += TRACE
            if not store and not w3:
                if st == 2: body.append("s_waitcnt vmcnt(0)")
                if st == 3: body.append("@EV@:")
            body += attn_step(nq, st, store)
        for e in hazard.check(body + body, f"a{tag}")[:10]: print(e)
        return body
    a.label(f"L_t1{tag}")
    mv = [f"v_mov_b64 v[{QTOP+r}:{QTOP+r+1}], v[{QLO+r}:{QLO+r+1}]" for r in range(0, nq * 16, 2)]
    sc = [f"s_mov_b32 s{sHEAD}, 1", f"s_mov_b32 s{sLAST}, 1", f"s_mov_b32 s{sREDO}, 0", f"s_mov_b32 s{sCNT}, 8"]
    EV1 = 8 - max(cnts[:3])
    if not w3: sc += [f"s_cmp_eq_u32 s{sWAVE}, 0\ns_cselect_b32 s{sEV}, {EV1}, -1"]
    sc += [f"v_add_u32 v1, 8192, v{VOD}"]
    pre = [f"buffer_load_dwordx4 {fa(st, nu)}, v{1 if st else VOD}, s[4:7], s{sPR + nu//2} offen offset:{(nu%2)*1024}{Opt.ld_wo}" for st in range(2) for nu in range(8)]
    def wr(k): return [f"ds_write_b128 v{VSW}, {vq(QLO + 4*(k%4))} offset:{k*1024}"] if k >= 0 else []
    t1 = k4_reads(nq, "a", A_V) + shadow(mv + sc + ["s_waitcnt lgkmcnt(0)"], zero_L(nq) + [zero16(0), zero16(16)])
    mp = k4_mf(nq, "a", A_V)
    n = 2 * nq
    for j in range(n):
        if j: t1 += og_mul(j)
        ld = share(pre, n - 1, j) if j < n - 1 else []
        pl = wr(2*j - 2) + og_cvt(2*j, QLO + 8*(j%2)) + wr(2*j - 1) + og_cvt(2*j + 1, QLO + 8*(j%2) + 4) + ld[:1] + og_rd(j + 1)[:8 if j else 0] + ld[1:] + og_rd(j + 1)[8:16 if j else 0]
        if j == n - 1: pl += k4_max(nq)[:n] + wr(2*j) + wr(2*j + 1) + k4_max(nq)[n:]
        t1 += shadow(pl, ([zero16(16 * j)] if j > 1 else []) + (share(mp, n - 2, j) if j < n - 2 else []))
    t1 = waits.insert_lgkm("\n".join(t1).split("\n"), loop=False)
    t1 = "\n".join(t1).split("\n")
    for l in fix_hazards(t1): a(l)
    pstamp(a, 5); pstamp(a, 6)
    a("; noalign")
    if not w3 or cnts[3]:
        a.label(f"L_loopS{tag}")
        bodyS = steps(1)
        for e in hazard.check(t1[-26:] + bodyS, f"t1{tag}")[:10]: print(e)
        for l in bodyS: a(l)
        a(f"s_sub_u32 s{sCNT}, s{sCNT}, 1\ns_cmp_lg_u32 s{sCNT}, s{sSX}\ns_cbranch_scc1 L_loopS{tag}")
    a.label(f"L_loop{tag}")
    body = steps(0)
    for e in hazard.check(cv[-26:] + body, f"t0{tag}")[:10] + hazard.check(t1[-26:] + body, f"t1{tag}")[:10]: print(e)
    for l in body:
        if l == "@EV@:":
            a(f"s_cmp_eq_u32 s{sCNT}, s{sEV}\ns_cbranch_scc1 L_ev{tag}"); a.label(f"L_evr{tag}")
        else: a(l)
    if w3:
        a(f"s_sub_u32 s{sCNT}, s{sCNT}, 1\ns_cmp_lg_u32 s{sCNT}, s{sLAST}\ns_cbranch_scc1 L_loop{tag}\ns_cmp_eq_u32 s{sLAST}, 0\ns_cbranch_scc1 L_ep{tag}")
        bodyL = steps(2)
        for e in hazard.check(body[-26:] + bodyL, "bl")[:10]: print(e)
        for l in bodyL: a(l)
        a("s_nop 1")
        a.label(f"L_ep{tag}")
    else: a(f"s_sub_u32 s{sCNT}, s{sCNT}, 1\ns_cmp_lg_u32 s{sCNT}, 0\ns_cbranch_scc1 L_loop{tag}")
    a("; align")
    if Opt.stamps:
        a(f"s_cmp_eq_u32 s{sHEAD}, 1\ns_cbranch_scc1 L_ps{tag}")
        pstamp(a, 4)
        a.label(f"L_ps{tag}")
        pstamp(a, 7)
    ep = [f"s_lshl_b32 s{sT0}, s{sHEAD}, 2", f"s_add_u32 s{sT0}, s{sT0}, {FLAG}", f"v_mov_b32 v1, s{sT0}", "v_mov_b32 v2, 1"]
    ep += [f"v_accvgpr_read_b32 v{32+r}, a{A_L+r}" for r in range(8 if w3 else 12)]
    ep += [f"v_add_f32 v{RC[i]}, v{32+2*i}, v{33+2*i}" for i in range(nq)]
    ep += [f"v_add_f32 v3, v{RC[0]}, v{RC[1]}", f"v_add_f32 v32, v{RC[2]}, v{RC[3]}"]
    if not w3: ep += ["v_add_f32 v42, v42, v43", f"v_add_f32 v{RC[4]}, v{RC[4]}, v42", f"v_add_f32 v3, v3, v{RC[4]}"]
    ep += ["v_add_f32 v3, v3, v32", f"v_cmp_ngt_f32 vcc, s{sTHR}, v3"]
    ep += [f"v_rcp_f32 v{RC[i]}, v{RC[i]}" for i in range(nq)]
    ep = fix_hazards(ep, body[-26:])
    if w3:
        for e in hazard.check(bodyL[-26:] + ["s_nop 1"] + ep, "ble")[:10]: print(e)
    for l in ep: a(l)
    a(f"s_cbranch_vccnz L_ovf{tag}")
    a.label(f"L_nof{tag}")
    if not w3:
        a(f"s_cmp_eq_u32 s{sEV}, 0\ns_cbranch_scc1 L_evw"); a.label("L_evwr")
    a("s_waitcnt lgkmcnt(0)\ns_barrier\nds_read_b32 v3, v1")
    ep = og_rd(0) + og_mul(0) + og_rd(1)[:12] + ["s_waitcnt lgkmcnt(0)", f"v_readfirstlane_b32 s{sT0}, v3"] + og_rd(1)[12:]
    for l in fix_hazards(ep): a(l)
    a(f"s_andn2_b32 s{sT0}, s{sT0}, s{sREDO}\ns_cmp_lg_u32 s{sT0}, 0\ns_cbranch_scc1 L_redo{tag}")
    a(f"s_cmp_eq_u32 s{sHEAD}, 0\ns_cbranch_scc1 L_t1{tag}")
    e1 = op_setup() + [f"s_add_u32 s{sOT+i}, s{sOOFF}, {i*TS + 4096}" if i < nq else f"s_mov_b32 s{sOT+i}, {FLW}" for i in range(5)]
    rest = []
    ne = min(4 * nq, int(Opt.ssch.split(",")[0]))
    for k in range(4 * nq):
        if k % 2 == 0 and k: rest += (og_rd(k // 2) if k > 2 else []) + og_mul(k // 2)
        rest += og_cvt(k, o_plan()[k][0]) + [st_o(j) for j in range(ne) if j * 4 * nq // ne == k]
    e1 += weave(rest, op_loads0(), Opt.ldgap if not w3 else Opt.ldgap * 4 // 5)
    E1[nq] = list(e1)
    if Opt.trace and not w3:
        e1 += [f"s_lshl_b32 s{sT0}, s2, 9", f"s_add_u32 s{sT0}, s{sT0}, {STAMP_OFF + 131072}", "v_lshlrev_b32 v1, 2, v0", f"v_add_u32 v1, s{sT0}, v1",
               "v_cmp_gt_u32 vcc, 64, v0", "s_nop 4", "s_mov_b64 exec, vcc", "s_cbranch_execz L_tr",
               f"global_store_dword v1, v73, s[{sWS}:{sWS+1}]", f"global_store_dword v1, v75, s[{sWS}:{sWS+1}] offset:256", "L_tr:", "s_mov_b64 exec, -1"]
    for l in fix_hazards(e1): a(l)
    pstamp(a, 8)
    a("s_branch L_op")
    a.label(f"L_ovf{tag}")
    a(f"ds_write_b32 v1, v2\ns_branch L_nof{tag}")
    if not w3:
        a.label(f"L_ev{tag}")
        a(f"s_cmp_eq_u32 s{sHEAD}, 1\ns_cbranch_scc1 L_evh")
        a(f"s_cmp_eq_u32 s{sEV}, 2\ns_cbranch_scc1 L_ev2\ns_cmp_eq_u32 s{sEV}, 1\ns_cbranch_scc1 L_ev1")
        signal(a, 0)
        a(f"s_mov_b32 s{sEV}, 2\ns_branch L_evr{tag}")
        a.label("L_ev2")
        poll_issue(a, 0)
        a(f"s_mov_b32 s{sEV}, 1\ns_branch L_evr{tag}")
        a.label("L_ev1")
        a(f"s_mov_b32 s{sEV}, -1")
        poll_wait(a, 0, "L_pw0", f"L_evr{tag}")
        a.label("L_evh")
        if EV1 != 1: a(f"s_cmp_eq_u32 s{sEV}, 1\ns_cbranch_scc1 L_evp")
        signal(a, 1)
        if EV1 != 1: a(f"s_mov_b32 s{sEV}, 1\ns_branch L_evr{tag}")
        a.label("L_evp")
        poll_issue(a, 1)
        a(f"s_mov_b32 s{sEV}, 0\ns_branch L_evr{tag}")
        a.label("L_evw")
        a(f"s_mov_b32 s{sEV}, -1")
        poll_wait(a, 1, "L_pw1", "L_evwr")
    a.label(f"L_redo{tag}")
    a(f"s_mov_b32 s{sREDO}, 1\ns_waitcnt vmcnt(0) lgkmcnt(0)\ns_barrier")
    for l in kv_switch(): a(l)
    a(f"s_lshl_b32 s{sRAW}, s{sHEAD}, 18")
    rp = doff_update()
    if w3:
        for sl in range(4): rp += flat(ring_dma(sl, "0x2000")) + ["s_waitcnt vmcnt(16)"]
    for l in fix_hazards(rp): a(l)
    a("v_and_b32 v1, 15, v0\nv_lshlrev_b32 v1, 8, v1\nv_and_b32 v2, 48, v0\nv_add_u32 v1, v1, v2")
    a(f"s_lshl_b32 s{sT0}, s{sHEAD}, 18\ns_mov_b32 s{sCNT}, 64")
    for i in range(nq): a(f"v_mov_b32 v{NM0+i}, 0xff800000")
    a.label(f"L_rl{tag}")
    rb = [f"buffer_load_dwordx4 a[{A_K+4*s}:{A_K+4*s+3}], v1, s[12:15], s{sT0} offen offset:{s*64}" for s in range(4)]
    rb += ["s_waitcnt vmcnt(0)"] + maxpass_mf(nq, QTOP) + ["s_nop 7"]
    for i in range(nq):
        b = PT(i)
        rb += [f"v_max3_f32 v{NM0+i}, v{NM0+i}, v{b}, v{b+1}", f"v_max3_f32 v{NM0+i}, v{NM0+i}, v{b+2}, v{b+3}"]
    rb.append(f"s_add_u32 s{sT0}, s{sT0}, 0x1000")
    for l in fix_hazards(rb): a(l)
    a(f"s_sub_u32 s{sCNT}, s{sCNT}, 1\ns_cmp_lg_u32 s{sCNT}, 0\ns_cbranch_scc1 L_rl{tag}")
    rb = [f"v_mov_b32 v{PT(i)}, v{NM0+i}" for i in range(nq)] + max_finish(nq) + [zero16(b) for b in range(0, 32 * nq, 16)] + zero_L(nq)
    rb += ["s_waitcnt vmcnt(0)", "s_barrier"] + k_reads(0) + [f"s_mov_b32 s{sCNT}, 8", "s_nop 7"]
    for l in fix_hazards(rb): a(l)
    a(f"s_branch L_loop{tag}")

def first_loads():
    def w(item, off):
        return [(f"s_add_u32 m0, s99, {item*16384}\ns_add_u32 s98, s100, {off}\n" if j == 0 else "") +
                f"buffer_load_dwordx4 v{VDA+j}, s[12:15], s98 offen offset:{j*1024}{Opt.nt_kv} lds ; tag=R:{item}" for j in range(4)]
    def x(b): return [t.replace(f"s{sT0}", "s98") for t, c in x_dma(5, b, b)]
    return w(0, 0) + x(0) + w(1, 256) + w(2, 0x80000) + x(1)

def late_setup():
    L = [f"s_add_u32 s{sWS}, s{sWS}, {Opt.wsb << 20}", f"s_addc_u32 s{sWS+1}, s{sWS+1}, 0"] if Opt.wsb else []
    assert (Opt.wsb << 20) + FLW + 4096 <= WS_BYTES and not (Opt.wsb and Opt.stamps and not Opt.dbg)
    for s in range(4):
        L += [f"v_or_b32 v2, {4*s}, v31", "v_xor_b32 v2, v2, v30", "v_lshlrev_b32 v2, 4, v2", f"v_lshl_add_u32 v{VKA+s}, v30, 8, v2"]
    L += ["v_lshrrev_b32 v2, 2, v30", "v_lshl_add_u32 v2, v31, 2, v2", "v_and_b32 v3, 7, v2", "v_lshlrev_b32 v2, 8, v2", "v_and_b32 v1, 3, v30", "v_lshl_add_u32 v2, v1, 3, v2"]
    for dt in range(8): L += [f"v_xor_b32 v1, {dt}, v3", f"v_lshl_add_u32 v{VVA+dt}, v1, 5, v2"]
    L += ["v_lshrrev_b32 v1, 4, v0", "v_xnor_b32 v1, v1, v0", "v_bfe_i32 v1, v1, 1, 1", "v_and_b32 v1, 0x3f803f80, v1"] + [f"v_accvgpr_write_b32 a{A_ONES+r}, v1" for r in range(4)]
    L += ["v_lshrrev_b32 v3, 1, v30", "v_xor_b32 v3, v3, v31"]
    for kk in range(2):
        L += [f"v_xor_b32 v2, {4*kk}, v3", "v_lshlrev_b32 v2, 4, v2", "v_lshl_add_u32 v2, v30, 7, v2", f"v_add_u32 v{VXA+kk}, s{sM0X}, v2"]
    L += [f"s_lshl_b32 s{sT0}, s{sB1}, 5", f"s_add_u32 s{sT0}, s{sT0}, s{sH0}", f"s_lshl_b32 s{sT0}, s{sT0}, 18",
          f"s_add_u32 s24, s86, s{sT0}", "s_addc_u32 s25, s87, 0", f"s_add_u32 s28, s88, s{sT0}", "s_addc_u32 s29, s89, 0",
          f"s_mov_b32 s20, s{sWS}", f"s_mov_b32 s21, s{sWS+1}", f"s_mov_b32 s22, {FLW}", "s_mov_b32 s23, 0x20000",
          f"s_lshl_b32 s{sT0}, s{sBR}, 3", f"s_add_u32 s{sT0}, s{sT0}, s{sB1}", f"s_mul_i32 s{sT0}, s{sT0}, {19*TS}",
          f"s_mul_i32 s{sOOFF}, s{sWAVE}, {5*TS}", f"s_add_u32 s{sOOFF}, s{sOOFF}, s{sT0}", f"s_add_u32 s{sOOFF}, s{sOOFF}, {PAD}", f"s_lshl_b32 s{sT0}, s{sH0}, 12", f"s_add_u32 s{sOOFF}, s{sOOFF}, s{sT0}",
          f"s_mov_b32 s{sSC}, {f2u(SCALE):#x}", f"s_mov_b32 s{sSC+1}, {f2u(SCALE):#x}", f"s_mov_b32 s{sTHR}, {f2u(2.0**Opt.thr):#x}", "s_mov_b32 s7, 0x20000",
          f"s_and_b32 s{sB2}, s2, 3", f"s_lshl_b32 s{sB2}, s{sB2}, 1", f"s_lshr_b32 s{sT0}, s2, 7", f"s_add_u32 s{sB2}, s{sB2}, s{sT0}",
          f"s_bfe_u32 s{sQG}, s2, 0x20005", f"s_bfe_u32 s{sN4}, s2, 0x20003",
          f"s_movk_i32 s{sINC0}, 256", f"s_mov_b32 s{sINC1}, {524288-256}", f"s_mov_b32 s{sG1}, 0x20000", f"s_mov_b32 s{sG2}, 0x40000", f"s_mov_b32 s{sG3}, 0x60000",
          "s_mov_b32 s16, s12", "s_mov_b32 s17, s13", "s_mov_b32 s18, s14", "s_mov_b32 s19, 0x20000",
          f"s_mov_b32 s{sRAW}, 0x80100", f"s_mov_b32 s{sDOFF}, 0x80100", f"s_mov_b32 s{sMH}, -1", f"s_mov_b32 s{sML}, 0"]
    L += [f"s_lshl_b32 s{sT0}, s{sB1}, 4", f"s_lshr_b32 s{sT1}, s{sH0}, 1", f"s_add_u32 s{sT1}, s{sT0}, s{sT1}", f"s_and_b32 s{sT0}, s{sT1}, 3",
          f"s_mul_i32 s{sHW}, s{sT0}, {WN}", f"s_lshl_b32 s{sHO}, s{sT0}, 8", f"s_lshr_b32 s{sT1}, s{sT1}, 2", f"s_lshl_b32 s{sT1}, s{sT1}, 1", f"s_and_b32 s{sT0}, s{sWAVE}, 1",
          f"s_add_u32 s{sT1}, s{sT1}, s{sT0}", f"s_lshl_b32 s{sT0}, s{sT1}, 14", f"s_add_u32 s{sHW}, s{sHW}, s{sT0}", f"s_lshl_b32 s{sT1}, s{sT1}, 16",
          f"s_add_u32 s{sHO}, s{sHO}, s{sT1}", f"s_add_u32 s6, s{sT1}, 0x10000", f"s_mov_b32 s4, s{sWO}", f"s_mov_b32 s5, s{sWO+1}",
          f"s_lshr_b32 s{sT0}, s{sWAVE}, 1", f"s_lshl_b32 s{sT1}, s{sT0}, 7", f"s_add_u32 s{sHO}, s{sHO}, s{sT1}", f"s_lshl_b32 s{sT1}, s{sT0}, 12", f"s_add_u32 s{sHW}, s{sHW}, s{sT1}",
          f"s_mul_i32 s{sWB}, s{sBR}, {4*WN}", f"s_add_u32 s{sWB}, s{sWB}, {WOP + PAD}", f"s_add_u32 s{sHW}, s{sHW}, s{sWB}",
          f"s_mul_i32 s{sT0}, s{sN4}, {WN}", f"s_add_u32 s{sWB}, s{sWB}, s{sT0}"]
    t0s, stride, cnts = SM()
    L += [f"s_mul_i32 s{sT0}, s{sWAVE}, {(5 - t0s[1])*TS}", f"s_sub_u32 s{sSO}, s{sOOFF}, s{sT0}", f"s_add_u32 s{sT0}, s{sOOFF}, {(t0s[3] - 15)*TS}",
          f"s_mul_i32 s96, s{sWAVE}, {XW}", f"s_add_u32 s96, s96, {XB}", f"s_mul_i32 s97, s{sWAVE}, {t0s[1]*4096}", f"s_add_u32 s97, s97, {XB}",
          f"s_cmp_eq_u32 s{sWAVE}, 3", f"s_cselect_b32 s97, {XB + t0s[3]*4096}, s97", f"s_cselect_b32 s{sSO}, s{sT0}, s{sSO}", f"s_cselect_b32 s{sSX}, {8 - cnts[3]}, {8 - cnts[1]}",
          f"s_cmp_eq_u32 s{sWAVE}, 0", f"s_cselect_b32 s{sSX}, {8 - cnts[0]}, s{sSX}", f"s_cselect_b32 s{sEV}, 4, -1",
          f"s_mov_b32 s{sHEAD}, 0", f"s_mov_b32 s{sREDO}, 0", f"s_mov_b32 s{sLAST}, 0", f"s_lshl_b32 s{sT1}, s{sWAVE}, 16"]
    L += [f"s_lshl_b32 s55, s{sBR}, 3", f"s_add_u32 s55, s55, s{sB2}", "s_mul_i32 s55, s55, 19", f"s_mul_i32 s101, s{sQG}, 5", "s_add_u32 s55, s55, s101",
          f"s_mul_i32 s55, s55, {TS}", "s_sub_u32 s101, 19, s101", f"s_mul_i32 s101, s101, {TS}"]
    for p in range(4): L += [f"s_add_u32 s{sT0}, s{sWAVE}, {p+1}", f"s_and_b32 s{sT0}, s{sT0}, 3", f"s_lshl_b32 s{sT0}, s{sT0}, 11", f"s_add_u32 s{sPR+p}, s{sT0}, s{sT1}"]
    if Opt.rot: L += [f"s_lshr_b32 s{sROT}, s2, 5", f"s_xor_b32 s{sROT}, s{sROT}, s2", f"s_and_b32 s{sROT}, s{sROT}, 31", f"s_lshl_b32 s{sROT}, s{sROT}, 13"]
    else: L += [f"s_mov_b32 s{sROT}, 0"]
    return L

def kernel():
    a = Asm()
    a("s_cmp_ge_u32 s2, 256\ns_cbranch_scc1 L_end")
    a("s_load_dwordx8 s[84:91], s[0:1], 0\ns_load_dwordx2 s[92:93], s[0:1], 32\ns_load_dwordx8 s[40:47], s[0:1], 40\ns_load_dwordx2 s[94:95], s[0:1], 72")
    a(f"s_load_dwordx2 s[{sOUT}:{sOUT+1}], s[0:1], 80\ns_load_dwordx2 s[{sDBG}:{sDBG+1}], s[0:1], 88\ns_load_dwordx2 s[{sWS}:{sWS+1}], s[0:1], 96")
    pstamp(a, 0)
    a(f"v_lshrrev_b32 v2, 6, v0\nv_and_b32 v1, 63, v0\nv_readfirstlane_b32 s{sWAVE}, v2")
    if Opt.code_pf:
        a("s_getpc_b64 s[96:97]\ns_bfe_u32 s48, s2, 0x20003\ns_lshl_b32 s48, s48, 15\nv_lshlrev_b32 v3, 7, v0\nv_add_u32 v3, s48, v3")
        a("v_min_u32 v3, CODE_SIZE, v3\nglobal_load_dword a255, v3, s[96:97]")
    a(f"s_bfe_u32 s{sBR}, s2, 0x10002\ns_lshr_b32 s{sB1}, s2, 5\ns_and_b32 s{sH0}, s2, 3\ns_lshl_b32 s{sH0}, s{sH0}, 3")
    a(f"s_bfe_u32 s{sT0}, s2, 0x20003\ns_lshl_b32 s{sT0}, s{sT0}, 1\ns_add_u32 s{sH0}, s{sH0}, s{sT0}")
    a("v_and_b32 v30, 15, v1\nv_lshrrev_b32 v31, 4, v1")
    a("v_and_b32 v33, 7, v1\nv_xor_b32 v33, v33, v31\nv_lshrrev_b32 v34, 3, v1")
    for jj in range(4):
        a(f"v_xor_b32 v32, {4*(jj%2)}, v33\nv_lshlrev_b32 v32, 4, v32\nv_lshl_add_u32 v32, v34, 10, v32\nv_add_u32 v{VXD+jj}, {jj*8192 - jj*1024}, v32")
    a("v_lshrrev_b32 v2, 1, v30\nv_xor_b32 v2, v2, v31\nv_and_b32 v3, 1, v30\nv_lshlrev_b32 v3, 4, v3\nv_lshl_add_u32 v3, v31, 13, v3")
    for j in range(4):
        a(f"v_xor_b32 v32, {(j>>1)<<2}, v2\nv_lshl_add_u32 v32, v32, 5, v3\nv_add_u32 v{VDA+j}, {j*32768 - j*1024}, v32")
    a(f"s_mul_i32 s{sM0X}, s{sWAVE}, 10240\ns_add_u32 s{sM0X}, s{sM0X}, {XB}\ns_mul_i32 s{sXOFF}, s{sWAVE}, {80*1024}")
    a(f"s_mov_b32 s10, 311296\ns_mov_b32 s11, 0x20000\ns_mov_b32 s15, 0x20000\ns_lshl_b32 s99, s{sWAVE}, 12\ns_lshl_b32 s100, s{sWAVE}, 17")
    a(f"s_mul_i32 s{sT0}, s{sB1}, 311296\ns_lshl_b32 s{sT1}, s{sH0}, 8\ns_sub_u32 s14, 0x400000, s{sT1}")
    a(f"s_waitcnt lgkmcnt(0)\ns_cmp_eq_u32 s{sBR}, 1")
    pstamp(a, 1, True)
    for r in range(8): a(f"s_cselect_b32 s{84+r}, s{40+r}, s{84+r}")
    a(f"s_cselect_b32 s{sWO}, s94, s92\ns_cselect_b32 s{sWO+1}, s95, s93")
    a(f"s_add_u32 s8, s84, s{sT0}\ns_addc_u32 s9, s85, 0\ns_add_u32 s12, s90, s{sT1}\ns_addc_u32 s13, s91, 0")
    if Opt.stamps: stamp_start(a, 40)
    zs = [f"{MF32} v[{r}:{r+15}], {ZQ}, {ZQ}, 0" for r in range(240, 31, -16)] + [zero16(16 * k) for k in range(6)] + zero_L(5)
    ls = []
    for l in late_setup():
        if l.startswith(("s_addc", "s_cselect")): ls[-1] += "\n" + l
        else: ls.append(l)
    fl = first_loads()[:Opt.nfl]
    sh = fl[:2] + weave([f"v_accvgpr_write_b32 a{A_Z+r}, 0" for r in range(4)] + weave(ls, zs, 4), fl[2:], Opt.fgap)
    for l in fix_hazards("\n".join(sh).split("\n")): a(l)
    pstamp(a, 3, True)
    a(f"s_cmp_eq_u32 s{sWAVE}, 3\ns_cbranch_scc1 L_var4")
    variant(a, 5, "5")
    a.label("L_var4")
    variant(a, 4, "4")
    side_code = oproj(a)
    a.label("L_fin")
    if Opt.stamps:
        a("s_waitcnt vmcnt(0)\ns_barrier")
        pstamp(a, 14)
        if Opt.dbg:
            a("s_memrealtime s[44:45]\ns_waitcnt lgkmcnt(0)\ns_sub_u32 s44, s44, s40\nv_mov_b32 v1, 0\ns_cmp_lg_u32 s3, 0\ns_cbranch_scc1 L_end\ns_mov_b64 exec, 1")
            for j, (k0, k1) in enumerate([(0, 1), (1, 3), (3, 4), (6, 7), (7, 8), (8, 14), (0, 14)]):
                a(f"s_sub_u32 s48, s{72+2*k1}, s{72+2*k0}\nv_mov_b32 v2, s48\nglobal_atomic_add v1, v2, s[{sDBG}:{sDBG+1}] offset:{4*j} sc1\nglobal_atomic_umax v1, v2, s[{sDBG}:{sDBG+1}] offset:{32+4*j} sc1\ns_nop 1")
            a(f"v_mov_b32 v2, s44\nglobal_atomic_add v1, v2, s[{sDBG}:{sDBG+1}] offset:28 sc1\nglobal_atomic_umax v1, v2, s[{sDBG}:{sDBG+1}] offset:60 sc1\ns_endpgm")
        stamp_end(a, 40, sWS, 32, 0, 2, 48)
        pdump(a, sWS, 15, 2)
    a.label("L_end")
    a("s_endpgm")
    side_code()
    return a.text()

HDR = open("cdna_kernels/" + NAME + ".s.ref").read().split("; Override launch")[0]

def build(fname):
    k = NAME + "_kernel"
    txt = HDR + f"; @launch grid=(256,1,1) block=(256,1,1) lds={LDS1}\n" + '.amdgcn_target "amdgcn-amd-amdhsa--gfx950"\n.text\n'
    txt += kernel_open(k)
    post = f"L_code_end:\n.set CODE_SIZE, L_code_end - {k} - 256\n"
    body = kernel().rstrip("\n").split("\n")
    if Opt.al:
        body, nn, ne = align.align(txt, body, post)
    txt += "\n".join(body) + "\n" + post
    txt += '.section .rodata,"a"\n' + kernel_desc(k, 512, 256)
    open(fname, "w").write(txt)

if __name__ == "__main__":
    out = sys.argv[1] if len(sys.argv) > 1 else "cdna_kernels/" + NAME + ".s"
    for kv in sys.argv[2:]:
        k, v = kv.split("=")
        cur = getattr(Opt, k)
        if isinstance(cur, bool): v = v == "1"
        elif isinstance(cur, int): v = int(v)
        else: v = (" " + v.replace("+", " ")) if v else ""
        setattr(Opt, k, v)
    build(out)
```
